```python
import torch

def _softmax(x, axis=-1):
    return torch.softmax(x, dim=axis)
def _gelu(x):
    return torch.nn.functional.gelu(x, approximate="tanh")
def _silu(x):
    return torch.nn.functional.silu(x)
def _sigmoid(x):
    return torch.sigmoid(x)
def _layernorm(x, axis=-1, eps=1e-5):
    m = x.mean(dim=axis, keepdim=True)
    v = x.var(dim=axis, keepdim=True, unbiased=False)
    return (x - m) / torch.sqrt(v + eps)
def _scatter_add(tgt, idx, src, axis=0):
    return tgt.clone().index_add_(axis, idx, src)
def _segment_sum(src, seg, n):
    out = torch.zeros((n,) + src.shape[1:], dtype=src.dtype)
    return out.index_add_(0, seg, src)
def _pad(x, pw):
    flat = tuple(v for pair in reversed(pw) for v in pair)
    return torch.nn.functional.pad(x, flat)

kernel_name = 'standalone__dense_activation_mish__prompt'

def setup_inputs():

    _w = (lambda a: (lambda t: t.to(torch.bfloat16) if t.is_floating_point() else t)(torch.as_tensor(a)))
    B, S, D, F = 1, 2048, 512, 1792
    return {
        "x": _w((lambda *s: torch.randn(*s, dtype=torch.bfloat16) * 0.05)(B, S, D)),
        "w1": _w((lambda *s: torch.randn(*s, dtype=torch.bfloat16) * 3.2)(D, F) * (D ** -0.5)),
        "b1": _w((lambda *s: torch.randn(*s, dtype=torch.bfloat16) * 0.05)(F)),
        "w2": _w((lambda *s: torch.randn(*s, dtype=torch.bfloat16) * 0.05)(F, D) * (F ** -0.5)),
    }

def reference(x, w1, b1, w2):
    h = torch.einsum("bsd,df->bsf", x, w1) + b1
    sp = torch.log1p(torch.exp(-torch.abs(h))) + torch.where(h > 0, h, torch.zeros_like(h))
    act = h * torch.tanh(sp)
    return torch.einsum("bsf,fd->bsd", act, w2)
```

```python
import sys, argparse
ap = argparse.ArgumentParser()
ap.add_argument("--stamps", type=int, default=0)
ap.add_argument("--rot", type=int, default=0)
ap.add_argument("--depth", type=int, default=10)
ap.add_argument("--name", default="standalone__dense_activation_mish__prompt")
args = ap.parse_args()
KN = args.name + "_kernel"

M32S = 115712
FLAGOFF = 114688
WS_SIZE = 64 * M32S
STAMP_OFF = 16 << 20

L = []
def A(s):
    for ln in s.split("\n"):
        L.append("    " + ln if not ln.endswith(":") else ln)

sW = 3
sX_, sWW, sB, sA, sL, sD = 20, 24, 28, 32, 36, 40
def srd(b): return f"s[{b}:{b+3}]"
s_mt, s_ft, s_fg, s_fl, s_m64, s_nt, s_wm, s_wf = 44, 45, 46, 47, 48, 49, 50, 51
s_c, s_kc, s_xbase, s_wbase, s_soX, s_soW, s_ldX, s_ldW = 52, 53, 54, 55, 56, 57, 58, 59
s_stage, s_delta, s_t0, s_t1, s_w2base, s_P, s_Q = 60, 61, 62, 63, 64, 65, 66
s_actst, s_flagP, s_flagC, s_actld, s_spin, s_outb = 67, 68, 69, 70, 71, 72
s_cl2e = 74
s_half = 76
s_so = 78
s_k32 = 79
s_stamp0 = 80
v_lane = 1
vDX = [2, 3, 4, 5]; vDW = [6, 7, 8, 9]; vD2 = [10, 11, 12, 13]
vRX = [14, 15, 16, 17]; vRW = [18, 19]; vR2P = [20, 21]; vR2Q = [22, 23]
v_l16 = 24; v_flagoff = 25; v_armoff = 26; v_arm = 27; v_poll = 28; v_one = 29; v_two = 30
v_bo = 31; v_redw = 32; v_redr = 33; v_outo = 34
vT = list(range(36, 64))
ACC = 64
def acc(mi, j): return ACC + 32 * mi + 16 * j
BIAS = 128
XF = 160
WF = 176
MT = 192
AF = 128

stamp_names = []
stamp_regs = list(range(80, 102, 2)) + [4, 6, 8]
def stamp(name):
    if not args.stamps: return
    i = len(stamp_names); stamp_names.append(name)
    r = stamp_regs[i]
    A(f"s_memtime s[{r}:{r+1}]")

vmq = []
def vm(tag): vmq.append(tag)
def wait_vm(tag):
    idx = max(i for i, t in enumerate(vmq) if t == tag)
    n = len(vmq) - 1 - idx
    assert n <= 63, n
    A(f"s_waitcnt vmcnt({n})")

hdr = f"""; fused dense -> mish -> dense, one launch, 256 persistent workgroups
; @launch grid=(256,1,1) block=(256,1,1) lds=163840
.amdgcn_target "amdgcn-amd-amdhsa--gfx950"
.text
.globl {KN}
.p2align 8
.type {KN},@function
{KN}:"""

A("s_cmp_ge_u32 s2, 256")
A("s_cbranch_scc1 L_end")
A("s_load_dwordx8 s[4:11], s[0:1], 0")
A("s_load_dwordx4 s[12:15], s[0:1], 32")
A("s_load_dwordx2 s[16:17], s[0:1], 48")
if args.stamps:
    A("s_memrealtime s[18:19]")
stamp("start")
A(f"v_and_b32 v{v_lane}, 63, v0")
A(f"v_lshrrev_b32 v{vT[0]}, 6, v0")
A(f"s_and_b32 s{s_t0}, s2, 7")
A(f"v_readfirstlane_b32 s{sW}, v{vT[0]}")
A(f"s_lshr_b32 s{s_t1}, s2, 3")
A(f"s_and_b32 s{s_fg}, s{s_t0}, 1")
A(f"s_and_b32 s{s_fl}, s{s_t1}, 7")
A(f"s_mov_b32 s{s_nt}, s{s_fl}")
A(f"s_lshr_b32 s{s_t1}, s{s_t1}, 3")
A(f"s_lshl_b32 s{s_m64}, s{s_t0}, 2")
A(f"s_add_u32 s{s_m64}, s{s_m64}, s{s_t1}")
A(f"s_lshr_b32 s{s_mt}, s{s_t0}, 1")
A(f"s_lshl_b32 s{s_mt}, s{s_mt}, 2")
A(f"s_add_u32 s{s_mt}, s{s_mt}, s{s_t1}")
A(f"s_mul_i32 s{s_ft}, s{s_fg}, 7")
A(f"s_add_u32 s{s_ft}, s{s_ft}, s{s_fl}")
A(f"s_and_b32 s{s_wm}, s{sW}, 1")
A(f"s_lshr_b32 s{s_wf}, s{sW}, 1")
if args.rot == 1:
    A(f"s_lshl_b32 s{s_kc}, s{s_mt}, 1\ns_add_u32 s{s_kc}, s{s_kc}, s{s_fl}\ns_and_b32 s{s_kc}, s{s_kc}, 7")
elif args.rot == 2:
    A(f"s_add_u32 s{s_kc}, s{s_mt}, s{s_fl}\ns_and_b32 s{s_kc}, s{s_kc}, 1\ns_lshl_b32 s{s_kc}, s{s_kc}, 2")
else:
    A(f"s_mov_b32 s{s_kc}, 0")
A(f"s_lshl_b32 s{s_xbase}, s{s_mt}, 17\ns_lshl_b32 s{s_t0}, s{sW}, 15\ns_add_u32 s{s_xbase}, s{s_xbase}, s{s_t0}")
A(f"s_mul_i32 s{s_wbase}, s{sW}, 57344\ns_lshl_b32 s{s_t0}, s{s_ft}, 8\ns_add_u32 s{s_wbase}, s{s_wbase}, s{s_t0}")
a, b, c, d = vT[0], vT[1], vT[2], vT[3]
A(f"v_lshrrev_b32 v{a}, 3, v{v_lane}")
A(f"v_lshrrev_b32 v{b}, 4, v{v_lane}")
A(f"v_and_b32 v{c}, 7, v{v_lane}")
A(f"v_xor_b32 v{d}, v{c}, v{b}")
A(f"v_lshlrev_b32 v{d}, 4, v{d}")
A(f"v_lshl_add_u32 v{vDX[0]}, v{a}, 10, v{d}")
A(f"v_xor_b32 v{d}, 64, v{vDX[0]}")
A(f"v_add_u32 v{vDX[1]}, 7168, v{d}")
A(f"v_add_u32 v{vDX[2]}, {2*7168}, v{vDX[0]}")
A(f"v_add_u32 v{vDX[3]}, {3*7168}, v{d}")
A(f"v_and_b32 v{d}, 15, v{v_lane}")
A(f"v_lshlrev_b32 v{vT[4]}, 2, v{b}")
A(f"v_xor_b32 v{d}, v{d}, v{vT[4]}")
A(f"v_lshlrev_b32 v{d}, 4, v{d}")
A(f"v_mul_u32_u24 v{vT[4]}, 3584, v{b}")
A(f"v_add_u32 v{vDW[0]}, v{vT[4]}, v{d}")
for i in range(1, 4):
    A(f"v_add_u32 v{vDW[i]}, {i*(4*3584-1024)}, v{vDW[0]}")
A(f"v_lshrrev_b32 v{vT[5]}, 5, v{v_lane}")
A(f"v_lshlrev_b32 v{v_bo}, 3, v{vT[5]}")
A("s_waitcnt lgkmcnt(0)")
stamp("karg")
A(f"s_mov_b32 s{sX_}, s4\ns_mov_b32 s{sX_+1}, s5\ns_mov_b32 s{sX_+2}, 2097152\ns_mov_b32 s{sX_+3}, 0x20000")
A(f"s_mov_b32 s{sWW}, s6\ns_mov_b32 s{sWW+1}, s7\ns_mov_b32 s{sWW+2}, 1835008\ns_mov_b32 s{sWW+3}, 0x20000")
A(f"s_mov_b32 s{sB}, s8\ns_mov_b32 s{sB+1}, s9\ns_mov_b32 s{sB+2}, 3584\ns_mov_b32 s{sB+3}, 0x20000")
A(f"s_mov_b32 s{sA}, s16\ns_mov_b32 s{sA+1}, s17\ns_mov_b32 s{sA+2}, {WS_SIZE}\ns_mov_b32 s{sA+3}, 0x20000")
A(f"s_mov_b32 s{sL}, s16\ns_mov_b32 s{sL+1}, s17\ns_mov_b32 s{sL+2}, {WS_SIZE}\ns_mov_b32 s{sL+3}, 0x20000")
A(f"s_mov_b32 s{sD}, s14\ns_mov_b32 s{sD+1}, s15\ns_mov_b32 s{sD+2}, 256\ns_mov_b32 s{sD+3}, 0x20000")
A(f"s_lshl_b32 s{s_ldX}, s{sW}, 12")
A(f"s_cmp_eq_u32 s{s_fl}, 7")
A("s_cbranch_scc1 L_pro_skip")

def set_soffs():
    A(f"s_lshl_b32 s{s_t0}, s{s_kc}, 7\ns_add_u32 s{s_soX}, s{s_xbase}, s{s_t0}")
    A(f"s_mul_i32 s{s_t0}, s{s_kc}, 229376\ns_add_u32 s{s_soW}, s{s_wbase}, s{s_t0}")
    A(f"s_add_u32 s{s_kc}, s{s_kc}, 1\ns_and_b32 s{s_kc}, s{s_kc}, 7")
def dma(vo, srdb, so, i):
    return f"buffer_load_dwordx4 v{vo}, {srd(srdb)}, s{so} offen offset:{1024*i} lds"

for ch in range(2):
    set_soffs()
    A(f"s_add_u32 m0, s{s_ldX}, {ch*32768}")
    A("s_nop 0")
    for i in range(4): A(dma(vDX[i], sX_, s_soX, i))
    A(f"s_add_u32 m0, s{s_ldX}, {ch*32768+16384}")
    A("s_nop 0")
    for i in range(4): A(dma(vDW[i], sWW, s_soW, i))
    if ch == 0:
        A(f"s_lshl_b32 s{s_t0}, s{s_ft}, 8\ns_lshl_b32 s{s_t1}, s{s_wf}, 7\ns_add_u32 s{s_t0}, s{s_t0}, s{s_t1}")
        for fi in range(2):
            for g in range(4):
                r = BIAS + 8 * fi + 2 * g
                A(f"buffer_load_dwordx2 v[{r}:{r+1}], v{v_bo}, {srd(sB)}, s{s_t0} offen offset:{64*fi+16*g}")
A("L_pro_skip:")
stamp("pro_issued")
h = vT[5]; t = vT[6]; tq = vT[7]; e = vT[8]; f = vT[9]
A(f"v_and_b32 v{d}, 1, v{b}")
A(f"v_lshlrev_b32 v{e}, 2, v{d}")
A(f"v_xor_b32 v{e}, v{c}, v{e}")
A(f"v_lshlrev_b32 v{e}, 4, v{e}")
A(f"v_lshl_add_u32 v{vD2[0]}, v{a}, 10, v{e}")
for i in range(1, 4):
    A(f"v_add_u32 v{vD2[i]}, {i*7168}, v{vD2[0]}")
A(f"v_and_b32 v{e}, 31, v{v_lane}")
A(f"s_lshl_b32 s{s_t0}, s{s_wm}, 13")
A(f"v_lshl_add_u32 v{e}, v{e}, 7, s{s_t0}")
A(f"v_bfe_u32 v{f}, v{v_lane}, 1, 3")
A(f"v_xor_b32 v{f}, v{f}, v{h}")
A(f"v_lshl_add_u32 v{vRX[0]}, v{f}, 4, v{e}")
for s in range(1, 4):
    A(f"v_xor_b32 v{vRX[s]}, {32*s}, v{vRX[0]}")
A(f"v_and_b32 v{e}, 3, v{v_lane}")
A(f"v_lshlrev_b32 v{e}, 3, v{e}")
A(f"v_lshl_add_u32 v{e}, v{d}, 5, v{e}")
A(f"v_bfe_u32 v{tq}, v{v_lane}, 2, 2")
A(f"v_lshl_add_u32 v{f}, v{h}, 3, v{tq}")
A(f"v_lshl_add_u32 v{f}, v{f}, 8, v{e}")
A(f"s_lshl_b32 s{s_t0}, s{s_wf}, 1")
A(f"v_xor_b32 v{t}, s{s_t0}, v{tq}")
A(f"v_lshl_add_u32 v{f}, v{t}, 6, v{f}")
A(f"v_add_u32 v{vRW[0]}, 16384, v{f}")
A(f"v_xor_b32 v{vRW[1]}, 64, v{vRW[0]}")
A(f"v_lshl_add_u32 v{f}, v{h}, 2, v{tq}")
A(f"v_lshl_add_u32 v{f}, v{f}, 7, v{e}")
A(f"v_bfe_u32 v{t}, v{v_lane}, 3, 1")
A(f"v_lshl_add_u32 v{f}, v{t}, 6, v{f}")
A(f"s_lshl_b32 s{s_P}, s{sW}, 14\ns_add_u32 s{s_P}, s{s_P}, 98304")
A(f"s_mul_i32 s{s_Q}, s{sW}, 24576")
A(f"v_add_u32 v{vR2P[0]}, s{s_P}, v{f}")
A(f"v_xor_b32 v{vR2P[1]}, 64, v{vR2P[0]}")
A(f"v_add_u32 v{vR2Q[0]}, s{s_Q}, v{f}")
A(f"v_xor_b32 v{vR2Q[1]}, 64, v{vR2Q[0]}")
A(f"v_lshlrev_b32 v{v_l16}, 4, v{v_lane}")
A(f"v_min_u32 v{v_flagoff}, 6, v{v_lane}")
A(f"v_lshlrev_b32 v{v_flagoff}, 2, v{v_flagoff}")
A(f"v_mov_b32 v{v_one}, 1\nv_mov_b32 v{v_two}, 2")
A(f"s_lshl_b32 s{s_t0}, s{s_mt}, 1\ns_add_u32 s{s_t0}, s{s_t0}, s{s_fg}\ns_lshl_b32 s{s_t0}, s{s_t0}, 2")
A(f"s_and_b32 s{s_t1}, s{s_m64}, 30\ns_add_u32 s{s_t1}, s{s_t1}, s{s_wf}\ns_lshl_b32 s{s_t1}, s{s_t1}, 2")
A(f"s_sub_u32 s{s_t1}, s{s_t1}, s{s_t0}")
A(f"v_mul_lo_u32 v{v_armoff}, v{h}, s{s_t1}")
A(f"v_add_u32 v{v_armoff}, s{s_t0}, v{v_armoff}")
A(f"v_and_b32 v{e}, 31, v{v_lane}")
A(f"v_lshl_add_u32 v{e}, v{e}, 8, s{s_Q}")
A(f"v_xor_b32 v{f}, v{c}, v{h}")
A(f"v_lshl_add_u32 v{v_redw}, v{f}, 4, v{e}")
A(f"s_lshl_b32 s{s_t0}, s{sW}, 11")
A(f"v_lshl_add_u32 v{e}, v{a}, 8, s{s_t0}")
A(f"v_lshlrev_b32 v{f}, 1, v{c}")
A(f"v_xor_b32 v{f}, v{f}, v{a}")
A(f"v_lshl_add_u32 v{v_redr}, v{f}, 4, v{e}")
A(f"v_lshlrev_b32 v{e}, 4, v{c}")
A(f"v_lshl_add_u32 v{v_outo}, v{a}, 10, v{e}")
A(f"s_mul_i32 s{s_w2base}, s{sW}, 458752\ns_lshl_b32 s{s_t0}, s{s_nt}, 7\ns_add_u32 s{s_w2base}, s{s_w2base}, s{s_t0}")
A(f"s_lshl_b32 s{s_t0}, s{s_mt}, 1\ns_add_u32 s{s_t0}, s{s_t0}, s{s_wm}")
A(f"s_mul_i32 s{s_t0}, s{s_t0}, {2*M32S}")
A(f"s_lshl_b32 s{s_t1}, s{s_ft}, 1\ns_add_u32 s{s_t1}, s{s_t1}, s{s_wf}")
A(f"s_lshl_b32 s{s_actst}, s{s_t1}, 12\ns_add_u32 s{s_actst}, s{s_actst}, s{s_t0}")
A(f"s_mul_i32 s{s_flagP}, s{s_t1}, 37\ns_lshr_b32 s{s_flagP}, s{s_flagP}, 8")
A(f"s_mul_i32 s{s_flagP}, s{s_flagP}, 100\ns_lshl_b32 s{s_t1}, s{s_t1}, 2\ns_add_u32 s{s_flagP}, s{s_flagP}, s{s_t1}")
A(f"s_add_u32 s{s_flagP}, s{s_flagP}, s{s_t0}\ns_add_u32 s{s_flagP}, s{s_flagP}, {FLAGOFF}")
A(f"s_mul_i32 s{s_t0}, s{s_m64}, {2*M32S}")
A(f"s_lshl_b32 s{s_flagC}, s{sW}, 7\ns_add_u32 s{s_flagC}, s{s_flagC}, s{s_t0}\ns_add_u32 s{s_flagC}, s{s_flagC}, {FLAGOFF}")
A(f"s_mul_i32 s{s_actld}, s{sW}, 28672\ns_add_u32 s{s_actld}, s{s_actld}, s{s_t0}")
A(f"s_lshl_b32 s{s_outb}, s{s_m64}, 16\ns_lshl_b32 s{s_t0}, s{sW}, 13\ns_add_u32 s{s_outb}, s{s_outb}, s{s_t0}\ns_lshl_b32 s{s_t0}, s{s_nt}, 7\ns_add_u32 s{s_outb}, s{s_outb}, s{s_t0}")
A(f"s_mov_b32 s{s_cl2e}, 0xbfb8aa3b\ns_mov_b32 s{s_cl2e+1}, 0xbfb8aa3b")
A(f"s_mov_b32 s{s_half}, 0.5\ns_mov_b32 s{s_half+1}, 0.5")
A(f"s_mov_b32 s{s_spin}, 0")
A(f"s_mov_b32 s{s_stage}, 0")
A(f"s_mov_b32 s{s_k32}, 32768")
A(f"s_cmp_eq_u32 s{s_fl}, 7")
A("s_cbranch_scc1 L_spare")
set_soffs()
A(f"s_add_u32 s{s_ldX}, s{s_ldX}, 65536\ns_add_u32 s{s_ldW}, s{s_ldX}, 16384")
A(f"s_mov_b32 s{s_c}, 0")
A("s_waitcnt vmcnt(8)")
stamp("c0_landed")
A("s_barrier")
def rd_x(buf, mi, s): return f"ds_read_b128 v[{XF+8*buf+4*mi}:{XF+8*buf+4*mi+3}], v{vRX[s]} offset:{4096*mi}"
def rd_w(buf, fi, s, a_):
    r = WF + 8 * buf + 4 * fi + 2 * a_
    return f"ds_read_b64_tr_b16 v[{r}:{r+1}], v{vRW[fi]} offset:{4096*s+1024*a_}"
def reads(buf, s): return [rd_x(buf, 0, s), rd_w(buf, 0, s, 0), rd_w(buf, 0, s, 1), rd_w(buf, 1, s, 0), rd_w(buf, 1, s, 1), rd_x(buf, 1, s)]
for r in reads(0, 0): A(r)
for fi in range(2):
    for g in range(4):
        for p in range(2):
            src = BIAS + 8 * fi + 2 * g + p
            for mi in range(2):
                A(f"v_lshlrev_b32 v{acc(mi,fi)+4*g+2*p}, 16, v{src}")
                A(f"v_and_b32 v{acc(mi,fi)+4*g+2*p+1}, 0xffff0000, v{src}")
A("s_nop 1")
def mfma1(buf, mi, fi):
    D = acc(mi, fi)
    return f"v_mfma_f32_32x32x16_bf16 v[{D}:{D+15}], v[{WF+8*buf+4*fi}:{WF+8*buf+4*fi+3}], v[{XF+8*buf+4*mi}:{XF+8*buf+4*mi+3}], v[{D}:{D+15}]"
A(".p2align 3")
A("L_loop:")
dm = [(s_ldX, vDX, sX_, s_soX), (s_ldW, vDW, sWW, s_soW)]
for s in range(4):
    buf = s & 1
    nxt = reads(buf ^ 1, (s + 1) & 3)
    ld, vo, sr, so = dm[s >> 1]
    i0 = 2 * (s & 1)
    A("s_waitcnt lgkmcnt(3)")
    A(mfma1(buf, 0, 0))
    if s == 3:
        A("s_waitcnt lgkmcnt(0)")
        A(f"s_add_u32 s{s_stage}, s{s_stage}, 1")
        A(f"s_cmp_eq_u32 s{s_stage}, 3")
        A(f"s_cselect_b32 s{s_delta}, {-65536 & 0xffffffff:#x}, s{s_k32}")
        A(f"s_cselect_b32 s{s_stage}, 0, s{s_stage}")
        for r in vRX + vRW: A(f"v_add_u32 v{r}, s{s_delta}, v{r}")
        A(f"s_cmp_eq_u32 s{s_c}, 7")
        A("s_cbranch_scc1 L_nowait")
        A("s_waitcnt vmcnt(6)")
        A("L_nowait:")
        A("s_barrier")
        for r in nxt[:3]: A(r)
        A(mfma1(buf, 0, 1))
        for r in nxt[3:]: A(r)
    else:
        for r in nxt[:3]: A(r)
        A("s_waitcnt lgkmcnt(4)")
        A(mfma1(buf, 0, 1))
        for r in nxt[3:]: A(r)
        A("s_waitcnt lgkmcnt(6)")
    if i0 == 0: A(f"s_mov_b32 m0, s{ld}")
    A(mfma1(buf, 1, 1))
    A(dma(vo[i0], sr, so, i0))
    A(mfma1(buf, 1, 0))
    A(dma(vo[i0+1], sr, so, i0 + 1))
A(f"s_add_u32 s{s_c}, s{s_c}, 1")
A(f"s_cmp_ge_u32 s{s_c}, 6")
A("s_cbranch_scc1 L_w2mode")
set_soffs()
A(f"s_add_u32 s{s_ldX}, s{s_ldX}, 32768")
A(f"s_cmp_ge_u32 s{s_ldX}, 98304")
A(f"s_cselect_b32 s{s_t0}, 98304, 0")
A(f"s_sub_u32 s{s_ldX}, s{s_ldX}, s{s_t0}")
A(f"s_add_u32 s{s_ldW}, s{s_ldX}, 16384")
A("s_branch L_loop")
A("L_spare:")
A(f"s_mov_b32 s{s_c}, 6")
A(f"s_cmp_lg_u32 s{sW}, 0")
A("s_cbranch_scc1 L_spare2")
A(f"v_and_b32 v{vT[10]}, 15, v{v_lane}")
A(f"v_lshlrev_b32 v{vT[10]}, 4, v{vT[10]}")
A(f"v_bfe_u32 v{vT[11]}, v{v_lane}, 4, 1")
A(f"s_mov_b32 s{s_t0}, {2*M32S}")
A(f"v_mul_lo_u32 v{vT[11]}, v{vT[11]}, s{s_t0}")
A(f"v_add_u32 v{vT[10]}, v{vT[10]}, v{vT[11]}")
A(f"s_mul_i32 s{s_t0}, s{s_mt}, {4*M32S}\ns_lshl_b32 s{s_t1}, s{s_fg}, 8\ns_add_u32 s{s_t0}, s{s_t0}, s{s_t1}\ns_add_u32 s{s_t0}, s{s_t0}, {FLAGOFF}")
for i in range(4): A(f"v_mov_b32 v{vT[12+i]}, 0")
assert vT[12] % 2 == 0
A(f"buffer_store_dwordx4 v[{vT[12]}:{vT[15]}], v{vT[10]}, {srd(sA)}, s{s_t0} offen sc1")
A("s_waitcnt vmcnt(0)")
A("s_mov_b64 exec, 1")
A(f"buffer_store_dword v{v_one}, v{v_armoff}, {srd(sD)}, 0 offen sc1")
A("s_mov_b64 exec, -1")
A("L_spare2:")
A(f"s_mov_b32 s{sA+2}, 0")
A("L_w2mode:")
A(f"s_cmp_eq_u32 s{s_c}, 8")
A("s_cbranch_scc1 L_p1done")
A(f"s_cmp_eq_u32 s{s_c}, 7")
A("s_cbranch_scc1 L_w2next")
A(f"s_mov_b32 s{sX_}, s10\ns_mov_b32 s{sX_+1}, s11\ns_mov_b32 s{sX_+2}, 1835008")
A(f"s_mov_b32 s{sWW}, s10\ns_mov_b32 s{sWW+1}, s11")
for i in range(4):
    A(f"v_mov_b32 v{vDX[i]}, v{vD2[i]}\nv_mov_b32 v{vDW[i]}, v{vD2[i]}")
A(f"s_sub_u32 s{s_soX}, s{s_w2base}, 65536")
A(f"s_sub_u32 s{s_ldX}, s{s_P}, 8192")
A("L_w2next:")
A(f"s_add_u32 s{s_soX}, s{s_soX}, 65536\ns_add_u32 s{s_soW}, s{s_soX}, 32768")
A(f"s_add_u32 s{s_ldX}, s{s_ldX}, 8192\ns_add_u32 s{s_ldW}, s{s_ldX}, 4096")
A("s_branch L_loop")
A("L_p1done:")
stamp("p1done")
for g in range(4):
    for i in range(4): vm(f"g{g}")

def w2_dma_group(g):
    base, off = (s_Q, 4096 * (g - 4)) if g < 10 else (s_P, 4096 * (g - 10))
    out = [(f"s_add_u32 m0, s{base}, {off}\ns_add_u32 s{s_soX}, s{s_w2base}, {32768*g}\n" + dma(vD2[0], sX_, s_soX, 0), f"g{g}")]
    for i in range(1, 4): out.append((dma(vD2[i], sX_, s_soX, i), f"g{g}"))
    return out
def w2_reads(g):
    out = []
    vb, off = (vR2P, 4096 * g) if g < 4 else ((vR2Q, 4096 * (g - 4)) if g < 10 else (vR2P, 4096 * (g - 10)))
    for i in range(4):
        j = 4 * g + i; ks, a_ = j >> 1, j & 1
        for ni in range(2):
            r = (ks * 2 + ni) * 4 + 2 * a_
            out.append(f"ds_read_b64_tr_b16 a[{r}:{r+1}], v{vb[ni]} offset:{off+1024*i}")
    return out

def mish_frag(mi, fi, s, tb, ob):
    hb = acc(mi, fi) + 8 * s
    U, N, D = tb, tb + 8, tb + 16
    P = lambda r: f"v[{r}:{r+1}]"
    o = []
    for p in range(4): o.append(f"v_pk_mul_f32 {P(U+2*p)}, {P(hb+2*p)}, s[{s_cl2e}:{s_cl2e+1}]")
    for i in range(8): o.append(f"v_exp_f32 v{U+i}, v{U+i}")
    for p in range(4): o.append(f"v_pk_add_f32 {P(N+2*p)}, {P(U+2*p)}, s[{s_half}:{s_half+1}]")
    for p in range(4): o.append(f"v_pk_fma_f32 {P(D+2*p)}, {P(U+2*p)}, {P(U+2*p)}, {P(N+2*p)}")
    for i in range(8): o.append(f"v_rcp_f32 v{D+i}, v{D+i}")
    for p in range(4): o.append(f"v_pk_mul_f32 {P(N+2*p)}, {P(N+2*p)}, {P(D+2*p)} clamp")
    for p in range(4): o.append(f"v_pk_mul_f32 {P(N+2*p)}, {P(N+2*p)}, {P(hb+2*p)}")
    for p in range(4): o.append(f"v_cvt_pk_bf16_f32 v{ob+p}, v{N+2*p}, v{N+2*p+1}")
    return o

A("s_nop 7")
A(f"s_add_u32 s{s_so}, s{s_actst}, {M32S}")
OUTB = MT + 24
for mi in range(2):
    side = []
    for g in (4, 5, 6) if mi == 0 else (7, 8, 9): side += w2_dma_group(g)
    rds = [] if mi == 0 else (w2_reads(0) + w2_reads(1) + w2_reads(2) + w2_reads(3))
    if mi == 1: wait_vm("g3")
    k = 0
    for fr in range(4):
        fi, s = fr >> 1, fr & 1
        ob = OUTB + 16 * mi + 4 * fr
        body = mish_frag(mi, fi, s, MT, ob)
        for n, ins in enumerate(body):
            A(ins)
            if n in (6, 18, 30):
                i_, tg = side.pop(0); A(i_); vm(tg)
            if rds and n % 5 == 2: A(rds.pop(0))
        A(f"buffer_store_dwordx4 v[{ob}:{ob+3}], v{v_l16}, {srd(sA)}, s{s_actst if mi == 0 else s_so} offen offset:{1024*fr} sc1")
        vm(f"st{mi}")
    assert not side and not rds
    if mi == 0:
        A(f"buffer_load_dword v{v_arm}, v{v_armoff}, {srd(sD)}, 0 offen sc1"); vm("arm")
    stamp(f"mish{mi}")
wait_vm("arm")
A("L_armchk:")
A(f"v_cmp_eq_u32 vcc, 1, v{v_arm}")
A(f"s_add_u32 s{s_spin}, s{s_spin}, 1")
A("s_cmp_eq_u64 vcc, -1")
A("s_cbranch_scc1 L_armok")
A(f"s_cmp_ge_u32 s{s_spin}, 200000")
A("s_cbranch_scc1 L_armok")
A(f"buffer_load_dword v{v_arm}, v{v_armoff}, {srd(sD)}, 0 offen sc1")
A("s_waitcnt vmcnt(0)")
A("s_branch L_armchk")
A("L_armok:")
def flag(v):
    A("s_mov_b64 exec, 1")
    A(f"buffer_store_dword v{v}, off, {srd(sA)}, s{s_flagP} sc1"); vm("flag")
    A("s_mov_b64 exec, -1")
flag(v_one)
stamp("flagA")
A("s_waitcnt lgkmcnt(0)")
for g in (10, 11):
    for i_, tg in w2_dma_group(g): A(i_); vm(tg)
wait_vm("st1")
flag(v_two)
stamp("flagB")
for g in (12, 13):
    for i_, tg in w2_dma_group(g): A(i_); vm(tg)
def poll_issue():
    A(f"buffer_load_dword v{v_poll}, v{v_flagoff}, {srd(sL)}, s{s_flagC} offen sc1")
poll_issue(); vm("poll")
for g in range(4, 10):
    for r in w2_reads(g): A(r)
wait_vm("g11")
for g in (10, 11):
    for r in w2_reads(g): A(r)
wait_vm("poll")
for g in (12, 13):
    for r in w2_reads(g): A(r)
def poll_loop(lbl, val):
    A(f"{lbl}:")
    A(f"v_cmp_le_u32 vcc, {val}, v{v_poll}")
    A(f"s_add_u32 s{s_spin}, s{s_spin}, 1")
    A("s_cmp_eq_u64 vcc, -1")
    A(f"s_cbranch_scc1 {lbl}_ok")
    A(f"s_cmp_ge_u32 s{s_spin}, 200000")
    A(f"s_cbranch_scc1 {lbl}_ok")
    poll_issue()
    A("s_waitcnt vmcnt(0)")
    A(f"s_branch {lbl}")
    A(f"{lbl}_ok:")
stamp("w2done")
poll_loop("L_pollA", 1)
stamp("pollA")
DEP = args.depth
NF = 56
def af(i): return AF + 4 * (i % 32)
def act_load(i):
    mi, ks = divmod(i, 28)
    if ks % 4 == 0: A(f"s_add_u32 s{s_so}, s{s_actld}, {mi*M32S + ks*1024}")
    A(f"buffer_load_dwordx4 v[{af(i)}:{af(i)+3}], v{v_l16}, {srd(sL)}, s{s_so} offen offset:{(ks%4)*1024} sc1"); vm(f"a{i}")
vmq.clear()
PB = 28 - DEP - 6
issued = 0
for i in range(DEP): act_load(i); issued += 1
A("s_waitcnt lgkmcnt(0)")
redw = []
for ni in range(2):
    for g in range(4):
        redw.append((ni, g))
for i in range(NF):
    mi, ks = divmod(i, 28)
    wait_vm(f"a{i}")
    for ni in range(2):
        D = acc(mi, ni); wr = (ks * 2 + ni) * 4
        C = "0" if ks == 0 else f"v[{D}:{D+15}]"
        A(f"v_mfma_f32_32x32x16_bf16 v[{D}:{D+15}], a[{wr}:{wr+3}], v[{af(i)}:{af(i)+3}], {C}")
    if i == PB:
        poll_issue(); vm("pollB")
    if issued < NF:
        if issued == 28:
            wait_vm("pollB")
            poll_loop("L_pollB", 2)
            stamp("pollB")
        act_load(issued); issued += 1
    if mi == 1 and 8 <= ks < 16:
        ni, g = redw[ks - 8]
        if ks == 8:
            for gg in range(1, 4): A(f"v_xor_b32 v{vT[gg]}, {32*gg}, v{v_redw}")
        va = v_redw if g == 0 else vT[g]
        r = acc(0, ni) + 4 * g
        A(f"ds_write_b128 v{va}, v[{r}:{r+3}] offset:{128*ni}")
stamp("p2done")
A(f"s_mov_b32 s{sB}, s12\ns_mov_b32 s{sB+1}, s13\ns_mov_b32 s{sB+2}, 2097152")
A(f"v_xor_b32 v{vT[4]}, 16, v{v_redr}")
A(f"v_add_u32 v{vT[5]}, 49152, v{v_redr}")
A(f"v_add_u32 v{vT[6]}, 49152, v{vT[4]}")
A("s_nop 7")
for ni, g in redw:
    va = v_redw if g == 0 else vT[g]
    r = acc(1, ni) + 4 * g
    if (ni, g) == (1, 0): A("s_nop 0")
    A(f"ds_write_b128 v{va}, v[{r}:{r+3}] offset:{8192+128*ni}")
A("s_waitcnt lgkmcnt(0)")
A("s_barrier")
R = 128
for mi in range(2):
    for src in range(4):
        for e_ in range(2):
            va = [[v_redr, vT[4]], [vT[5], vT[6]]][src >> 1][e_]
            r = R + 32 * mi + 8 * src + 4 * e_
            A(f"ds_read_b128 v[{r}:{r+3}], v{va} offset:{(src & 1)*24576 + 8192*mi}")
P = lambda r: f"v[{r}:{r+1}]"
for mi in range(2):
    b_ = R + 32 * mi
    A(f"s_waitcnt lgkmcnt({12 - 8*mi})")
    for p in range(4): A(f"v_pk_add_f32 {P(b_+2*p)}, {P(b_+2*p)}, {P(b_+8+2*p)}")
    A(f"s_waitcnt lgkmcnt({8 - 8*mi})")
    for p in range(4): A(f"v_pk_add_f32 {P(b_+16+2*p)}, {P(b_+16+2*p)}, {P(b_+24+2*p)}")
    for p in range(4): A(f"v_pk_add_f32 {P(b_+2*p)}, {P(b_+2*p)}, {P(b_+16+2*p)}")
    for p in range(4): A(f"v_cvt_pk_bf16_f32 v{b_+8+p}, v{b_+2*p}, v{b_+2*p+1}")
    if mi == 1: A(f"s_add_u32 s{s_outb}, s{s_outb}, 32768")
    A(f"buffer_store_dwordx4 v[{b_+8}:{b_+11}], v{v_outo}, {srd(sB)}, s{s_outb} offen")
if args.stamps:
    A("s_waitcnt vmcnt(0)")
    stamp("end")
    A("s_memrealtime s[14:15]")
    A("s_waitcnt lgkmcnt(0)")
    n = len(stamp_names)
    A("v_mov_b32 v64, s18\nv_mov_b32 v65, s14")
    for i in range(n): A(f"v_mov_b32 v{66+i}, s{stamp_regs[i]}")
    A(f"v_mov_b32 v{66+n}, s{s_spin}")
    A(f"s_mov_b32 s{sL+2}, 0x10000000")
    A(f"s_lshl_b32 s{s_t0}, s2, 2\ns_add_u32 s{s_t0}, s{s_t0}, s{sW}\ns_lshl_b32 s{s_t0}, s{s_t0}, 7\ns_add_u32 s{s_t0}, s{s_t0}, {STAMP_OFF}")
    A("s_mov_b64 exec, 1")
    for q in range(5):
        A(f"buffer_store_dwordx4 v[{64+4*q}:{67+4*q}], off, {srd(sL)}, s{s_t0} offset:{16*q}")
A("L_end:")
A("s_endpgm")
tail = f""".section .rodata,"a"
.p2align 6
.amdhsa_kernel {KN}
  .amdhsa_next_free_vgpr 512
  .amdhsa_next_free_sgpr 102
  .amdhsa_accum_offset 256
  .amdhsa_group_segment_fixed_size 0
  .amdhsa_kernarg_size 56
  .amdhsa_user_sgpr_count 2
  .amdhsa_user_sgpr_kernarg_segment_ptr 1
  .amdhsa_system_sgpr_workgroup_id_x 1
.end_amdhsa_kernel"""
print(hdr)
print("\n".join(L))
print(tail)
if args.stamps:
    print("; STAMPS: " + " ".join(stamp_names))
```

```python
import sys, argparse
ap = argparse.ArgumentParser()
ap.add_argument("--stamps", type=int, default=0)
ap.add_argument("--rot", type=int, default=0)
ap.add_argument("--depth", type=int, default=10)
ap.add_argument("--pad", default="")
ap.add_argument("--padwg", type=int, default=-1)
ap.add_argument("--name", default="standalone__dense_activation_mish__prompt")
args = ap.parse_args()
KN = args.name + "_kernel"

M32S = 115712
FLAGOFF = 114688
WS_SIZE = 64 * M32S
STAMP_OFF = 16 << 20

L = []
def A(s):
    for ln in s.split("\n"):
        L.append("    " + ln if not ln.endswith(":") else ln)

sW = 3
sX_, sWW, sB, sA, sL, sD = 20, 24, 28, 32, 36, 40
def srd(b): return f"s[{b}:{b+3}]"
s_mt, s_ft, s_fg, s_fl, s_m64, s_nt, s_wm, s_wf = 44, 45, 46, 47, 48, 49, 50, 51
s_c, s_kc, s_xbase, s_wbase, s_soX, s_soW, s_ldX, s_ldW = 52, 53, 54, 55, 56, 57, 58, 59
s_stage, s_delta, s_t0, s_t1, s_w2base, s_P, s_Q = 60, 61, 62, 63, 64, 65, 66
s_actst, s_flagP, s_flagC, s_actld, s_spin, s_outb = 67, 68, 69, 70, 71, 72
s_cl2e = 74
s_half = 76
s_so = 78
s_k32 = 79
s_stamp0 = 80
v_lane = 1
vDX = [2, 3, 4, 5]; vDW = [6, 7, 8, 9]; vD2 = [10, 11, 12, 13]
vRX = [14, 15, 16, 17]; vRW = [18, 19]; vR2P = [20, 21]; vR2Q = [22, 23]
v_l16 = 24; v_flagoff = 25; v_armoff = 26; v_arm = 27; v_poll = 28; v_one = 29; v_two = 30
v_bo = 31; v_redw = 32; v_redr = 33; v_outo = 34
vT = list(range(36, 64))
ACC = 64
def acc(mi, j): return ACC + 32 * mi + 16 * j
BIAS = 128
XF = 160
WF = 176
MT = 192
AF = 128

stamp_names = []
stamp_regs = list(range(80, 102, 2)) + [4, 6, 8]
def stamp(name):
    if args.pad:
        if name == "start": A("s_memrealtime s[80:81]")
        if name == args.pad: A("s_memrealtime s[82:83]")
        return
    if not args.stamps: return
    i = len(stamp_names); stamp_names.append(name)
    r = stamp_regs[i]
    A(f"s_memtime s[{r}:{r+1}]")

vmq = []
def vm(tag): vmq.append(tag)
def wait_vm(tag):
    idx = max(i for i, t in enumerate(vmq) if t == tag)
    n = len(vmq) - 1 - idx
    assert n <= 63, n
    A(f"s_waitcnt vmcnt({n})")

hdr = f"""; fused dense -> mish -> dense, one launch, 256 persistent workgroups
; @launch grid=(256,1,1) block=(256,1,1) lds=163840
.amdgcn_target "amdgcn-amd-amdhsa--gfx950"
.text
.globl {KN}
.p2align 8
.type {KN},@function
{KN}:"""

A("s_cmp_ge_u32 s2, 256")
A("s_cbranch_scc1 L_end")
A("s_load_dwordx8 s[4:11], s[0:1], 0")
A("s_load_dwordx4 s[12:15], s[0:1], 32")
A("s_load_dwordx2 s[16:17], s[0:1], 48")
if args.stamps:
    A("s_memrealtime s[18:19]")
stamp("start")
A(f"v_and_b32 v{v_lane}, 63, v0")
A(f"v_lshrrev_b32 v{vT[0]}, 6, v0")
A(f"s_and_b32 s{s_t0}, s2, 7")
A(f"v_readfirstlane_b32 s{sW}, v{vT[0]}")
A(f"s_lshr_b32 s{s_t1}, s2, 3")
A(f"s_and_b32 s{s_fg}, s{s_t0}, 1")
A(f"s_and_b32 s{s_fl}, s{s_t1}, 7")
A(f"s_mov_b32 s{s_nt}, s{s_fl}")
A(f"s_lshr_b32 s{s_t1}, s{s_t1}, 3")
A(f"s_lshl_b32 s{s_m64}, s{s_t0}, 2")
A(f"s_add_u32 s{s_m64}, s{s_m64}, s{s_t1}")
A(f"s_lshr_b32 s{s_mt}, s{s_t0}, 1")
A(f"s_lshl_b32 s{s_mt}, s{s_mt}, 2")
A(f"s_add_u32 s{s_mt}, s{s_mt}, s{s_t1}")
A(f"s_mul_i32 s{s_ft}, s{s_fg}, 7")
A(f"s_add_u32 s{s_ft}, s{s_ft}, s{s_fl}")
A(f"s_and_b32 s{s_wm}, s{sW}, 1")
A(f"s_lshr_b32 s{s_wf}, s{sW}, 1")
if args.rot == 1:
    A(f"s_lshl_b32 s{s_kc}, s{s_mt}, 1\ns_add_u32 s{s_kc}, s{s_kc}, s{s_fl}\ns_and_b32 s{s_kc}, s{s_kc}, 7")
elif args.rot == 2:
    A(f"s_add_u32 s{s_kc}, s{s_mt}, s{s_fl}\ns_and_b32 s{s_kc}, s{s_kc}, 1\ns_lshl_b32 s{s_kc}, s{s_kc}, 2")
else:
    A(f"s_mov_b32 s{s_kc}, 0")
A(f"s_lshl_b32 s{s_xbase}, s{s_mt}, 17\ns_lshl_b32 s{s_t0}, s{sW}, 15\ns_add_u32 s{s_xbase}, s{s_xbase}, s{s_t0}")
A(f"s_mul_i32 s{s_wbase}, s{sW}, 57344\ns_lshl_b32 s{s_t0}, s{s_ft}, 8\ns_add_u32 s{s_wbase}, s{s_wbase}, s{s_t0}")
a, b, c, d = vT[0], vT[1], vT[2], vT[3]
A(f"v_lshrrev_b32 v{a}, 3, v{v_lane}")
A(f"v_lshrrev_b32 v{b}, 4, v{v_lane}")
A(f"v_and_b32 v{c}, 7, v{v_lane}")
A(f"v_xor_b32 v{d}, v{c}, v{b}")
A(f"v_lshlrev_b32 v{d}, 4, v{d}")
A(f"v_lshl_add_u32 v{vDX[0]}, v{a}, 10, v{d}")
A(f"v_xor_b32 v{d}, 64, v{vDX[0]}")
A(f"v_add_u32 v{vDX[1]}, 7168, v{d}")
A(f"v_add_u32 v{vDX[2]}, {2*7168}, v{vDX[0]}")
A(f"v_add_u32 v{vDX[3]}, {3*7168}, v{d}")
A(f"v_and_b32 v{d}, 15, v{v_lane}")
A(f"v_lshlrev_b32 v{vT[4]}, 2, v{b}")
A(f"v_xor_b32 v{d}, v{d}, v{vT[4]}")
A(f"v_lshlrev_b32 v{d}, 4, v{d}")
A(f"v_mul_u32_u24 v{vT[4]}, 3584, v{b}")
A(f"v_add_u32 v{vDW[0]}, v{vT[4]}, v{d}")
for i in range(1, 4):
    A(f"v_add_u32 v{vDW[i]}, {i*(4*3584-1024)}, v{vDW[0]}")
A(f"v_lshrrev_b32 v{vT[5]}, 5, v{v_lane}")
A(f"v_lshlrev_b32 v{v_bo}, 3, v{vT[5]}")
A("s_waitcnt lgkmcnt(0)")
stamp("karg")
A(f"s_mov_b32 s{sX_}, s4\ns_mov_b32 s{sX_+1}, s5\ns_mov_b32 s{sX_+2}, 2097152\ns_mov_b32 s{sX_+3}, 0x20000")
A(f"s_mov_b32 s{sWW}, s6\ns_mov_b32 s{sWW+1}, s7\ns_mov_b32 s{sWW+2}, 1835008\ns_mov_b32 s{sWW+3}, 0x20000")
A(f"s_mov_b32 s{sB}, s8\ns_mov_b32 s{sB+1}, s9\ns_mov_b32 s{sB+2}, 3584\ns_mov_b32 s{sB+3}, 0x20000")
A(f"s_mov_b32 s{sA}, s16\ns_mov_b32 s{sA+1}, s17\ns_mov_b32 s{sA+2}, {WS_SIZE}\ns_mov_b32 s{sA+3}, 0x20000")
A(f"s_mov_b32 s{sL}, s16\ns_mov_b32 s{sL+1}, s17\ns_mov_b32 s{sL+2}, {WS_SIZE}\ns_mov_b32 s{sL+3}, 0x20000")
A(f"s_mov_b32 s{sD}, s14\ns_mov_b32 s{sD+1}, s15\ns_mov_b32 s{sD+2}, 256\ns_mov_b32 s{sD+3}, 0x20000")
A(f"s_lshl_b32 s{s_ldX}, s{sW}, 12")
A(f"s_cmp_eq_u32 s{s_fl}, 7")
A("s_cbranch_scc1 L_pro_skip")

def set_soffs():
    A(f"s_lshl_b32 s{s_t0}, s{s_kc}, 7\ns_add_u32 s{s_soX}, s{s_xbase}, s{s_t0}")
    A(f"s_mul_i32 s{s_t0}, s{s_kc}, 229376\ns_add_u32 s{s_soW}, s{s_wbase}, s{s_t0}")
    A(f"s_add_u32 s{s_kc}, s{s_kc}, 1\ns_and_b32 s{s_kc}, s{s_kc}, 7")
def dma(vo, srdb, so, i):
    return f"buffer_load_dwordx4 v{vo}, {srd(srdb)}, s{so} offen offset:{1024*i} lds"

for ch in range(2):
    set_soffs()
    A(f"s_add_u32 m0, s{s_ldX}, {ch*32768}")
    A("s_nop 0")
    for i in range(4): A(dma(vDX[i], sX_, s_soX, i))
    A(f"s_add_u32 m0, s{s_ldX}, {ch*32768+16384}")
    A("s_nop 0")
    for i in range(4): A(dma(vDW[i], sWW, s_soW, i))
    if ch == 0:
        A(f"s_lshl_b32 s{s_t0}, s{s_ft}, 8\ns_lshl_b32 s{s_t1}, s{s_wf}, 7\ns_add_u32 s{s_t0}, s{s_t0}, s{s_t1}")
        for fi in range(2):
            for g in range(4):
                r = BIAS + 8 * fi + 2 * g
                A(f"buffer_load_dwordx2 v[{r}:{r+1}], v{v_bo}, {srd(sB)}, s{s_t0} offen offset:{64*fi+16*g}")
A("L_pro_skip:")
stamp("pro_issued")
h = vT[5]; t = vT[6]; tq = vT[7]; e = vT[8]; f = vT[9]
A(f"v_and_b32 v{d}, 1, v{b}")
A(f"v_lshlrev_b32 v{e}, 2, v{d}")
A(f"v_xor_b32 v{e}, v{c}, v{e}")
A(f"v_lshlrev_b32 v{e}, 4, v{e}")
A(f"v_lshl_add_u32 v{vD2[0]}, v{a}, 10, v{e}")
for i in range(1, 4):
    A(f"v_add_u32 v{vD2[i]}, {i*7168}, v{vD2[0]}")
A(f"v_and_b32 v{e}, 31, v{v_lane}")
A(f"s_lshl_b32 s{s_t0}, s{s_wm}, 13")
A(f"v_lshl_add_u32 v{e}, v{e}, 7, s{s_t0}")
A(f"v_bfe_u32 v{f}, v{v_lane}, 1, 3")
A(f"v_xor_b32 v{f}, v{f}, v{h}")
A(f"v_lshl_add_u32 v{vRX[0]}, v{f}, 4, v{e}")
for s in range(1, 4):
    A(f"v_xor_b32 v{vRX[s]}, {32*s}, v{vRX[0]}")
A(f"v_and_b32 v{e}, 3, v{v_lane}")
A(f"v_lshlrev_b32 v{e}, 3, v{e}")
A(f"v_lshl_add_u32 v{e}, v{d}, 5, v{e}")
A(f"v_bfe_u32 v{tq}, v{v_lane}, 2, 2")
A(f"v_lshl_add_u32 v{f}, v{h}, 3, v{tq}")
A(f"v_lshl_add_u32 v{f}, v{f}, 8, v{e}")
A(f"s_lshl_b32 s{s_t0}, s{s_wf}, 1")
A(f"v_xor_b32 v{t}, s{s_t0}, v{tq}")
A(f"v_lshl_add_u32 v{f}, v{t}, 6, v{f}")
A(f"v_add_u32 v{vRW[0]}, 16384, v{f}")
A(f"v_xor_b32 v{vRW[1]}, 64, v{vRW[0]}")
A(f"v_lshl_add_u32 v{f}, v{h}, 2, v{tq}")
A(f"v_lshl_add_u32 v{f}, v{f}, 7, v{e}")
A(f"v_bfe_u32 v{t}, v{v_lane}, 3, 1")
A(f"v_lshl_add_u32 v{f}, v{t}, 6, v{f}")
A(f"s_lshl_b32 s{s_P}, s{sW}, 14\ns_add_u32 s{s_P}, s{s_P}, 98304")
A(f"s_mul_i32 s{s_Q}, s{sW}, 24576")
A(f"v_add_u32 v{vR2P[0]}, s{s_P}, v{f}")
A(f"v_xor_b32 v{vR2P[1]}, 64, v{vR2P[0]}")
A(f"v_add_u32 v{vR2Q[0]}, s{s_Q}, v{f}")
A(f"v_xor_b32 v{vR2Q[1]}, 64, v{vR2Q[0]}")
A(f"v_lshlrev_b32 v{v_l16}, 4, v{v_lane}")
A(f"v_min_u32 v{v_flagoff}, 6, v{v_lane}")
A(f"v_lshlrev_b32 v{v_flagoff}, 2, v{v_flagoff}")
A(f"v_mov_b32 v{v_one}, 1\nv_mov_b32 v{v_two}, 2")
A(f"s_lshl_b32 s{s_t0}, s{s_mt}, 1\ns_add_u32 s{s_t0}, s{s_t0}, s{s_fg}\ns_lshl_b32 s{s_t0}, s{s_t0}, 2")
A(f"s_and_b32 s{s_t1}, s{s_m64}, 30\ns_add_u32 s{s_t1}, s{s_t1}, s{s_wf}\ns_lshl_b32 s{s_t1}, s{s_t1}, 2")
A(f"s_sub_u32 s{s_t1}, s{s_t1}, s{s_t0}")
A(f"v_mul_lo_u32 v{v_armoff}, v{h}, s{s_t1}")
A(f"v_add_u32 v{v_armoff}, s{s_t0}, v{v_armoff}")
A(f"v_and_b32 v{e}, 31, v{v_lane}")
A(f"v_lshl_add_u32 v{e}, v{e}, 8, s{s_Q}")
A(f"v_xor_b32 v{f}, v{c}, v{h}")
A(f"v_lshl_add_u32 v{v_redw}, v{f}, 4, v{e}")
A(f"s_lshl_b32 s{s_t0}, s{sW}, 11")
A(f"v_lshl_add_u32 v{e}, v{a}, 8, s{s_t0}")
A(f"v_lshlrev_b32 v{f}, 1, v{c}")
A(f"v_xor_b32 v{f}, v{f}, v{a}")
A(f"v_lshl_add_u32 v{v_redr}, v{f}, 4, v{e}")
A(f"v_lshlrev_b32 v{e}, 4, v{c}")
A(f"v_lshl_add_u32 v{v_outo}, v{a}, 10, v{e}")
A(f"s_mul_i32 s{s_w2base}, s{sW}, 458752\ns_lshl_b32 s{s_t0}, s{s_nt}, 7\ns_add_u32 s{s_w2base}, s{s_w2base}, s{s_t0}")
A(f"s_lshl_b32 s{s_t0}, s{s_mt}, 1\ns_add_u32 s{s_t0}, s{s_t0}, s{s_wm}")
A(f"s_mul_i32 s{s_t0}, s{s_t0}, {2*M32S}")
A(f"s_lshl_b32 s{s_t1}, s{s_ft}, 1\ns_add_u32 s{s_t1}, s{s_t1}, s{s_wf}")
A(f"s_lshl_b32 s{s_actst}, s{s_t1}, 12\ns_add_u32 s{s_actst}, s{s_actst}, s{s_t0}")
A(f"s_mul_i32 s{s_flagP}, s{s_t1}, 37\ns_lshr_b32 s{s_flagP}, s{s_flagP}, 8")
A(f"s_mul_i32 s{s_flagP}, s{s_flagP}, 100\ns_lshl_b32 s{s_t1}, s{s_t1}, 2\ns_add_u32 s{s_flagP}, s{s_flagP}, s{s_t1}")
A(f"s_add_u32 s{s_flagP}, s{s_flagP}, s{s_t0}\ns_add_u32 s{s_flagP}, s{s_flagP}, {FLAGOFF}")
A(f"s_mul_i32 s{s_t0}, s{s_m64}, {2*M32S}")
A(f"s_lshl_b32 s{s_flagC}, s{sW}, 7\ns_add_u32 s{s_flagC}, s{s_flagC}, s{s_t0}\ns_add_u32 s{s_flagC}, s{s_flagC}, {FLAGOFF}")
A(f"s_mul_i32 s{s_actld}, s{sW}, 28672\ns_add_u32 s{s_actld}, s{s_actld}, s{s_t0}")
A(f"s_lshl_b32 s{s_outb}, s{s_m64}, 16\ns_lshl_b32 s{s_t0}, s{sW}, 13\ns_add_u32 s{s_outb}, s{s_outb}, s{s_t0}\ns_lshl_b32 s{s_t0}, s{s_nt}, 7\ns_add_u32 s{s_outb}, s{s_outb}, s{s_t0}")
A(f"s_mov_b32 s{s_cl2e}, 0xbfb8aa3b\ns_mov_b32 s{s_cl2e+1}, 0xbfb8aa3b")
A(f"s_mov_b32 s{s_half}, 0.5\ns_mov_b32 s{s_half+1}, 0.5")
A(f"s_mov_b32 s{s_spin}, 0")
A(f"s_mov_b32 s{s_stage}, 0")
A(f"s_mov_b32 s{s_k32}, 32768")
A(f"s_cmp_eq_u32 s{s_fl}, 7")
A("s_cbranch_scc1 L_spare")
set_soffs()
A(f"s_add_u32 s{s_ldX}, s{s_ldX}, 65536\ns_add_u32 s{s_ldW}, s{s_ldX}, 16384")
A(f"s_mov_b32 s{s_c}, 0")
A("s_waitcnt vmcnt(8)")
stamp("c0_landed")
A("s_barrier")
def rd_x(buf, mi, s): return f"ds_read_b128 v[{XF+8*buf+4*mi}:{XF+8*buf+4*mi+3}], v{vRX[s]} offset:{4096*mi}"
def rd_w(buf, fi, s, a_):
    r = WF + 8 * buf + 4 * fi + 2 * a_
    return f"ds_read_b64_tr_b16 v[{r}:{r+1}], v{vRW[fi]} offset:{4096*s+1024*a_}"
def reads(buf, s): return [rd_x(buf, 0, s), rd_w(buf, 0, s, 0), rd_w(buf, 0, s, 1), rd_w(buf, 1, s, 0), rd_w(buf, 1, s, 1), rd_x(buf, 1, s)]
for r in reads(0, 0): A(r)
for fi in range(2):
    for g in range(4):
        for p in range(2):
            src = BIAS + 8 * fi + 2 * g + p
            for mi in range(2):
                A(f"v_lshlrev_b32 v{acc(mi,fi)+4*g+2*p}, 16, v{src}")
                A(f"v_and_b32 v{acc(mi,fi)+4*g+2*p+1}, 0xffff0000, v{src}")
A("s_nop 1")
def mfma1(buf, mi, fi):
    D = acc(mi, fi)
    return f"v_mfma_f32_32x32x16_bf16 v[{D}:{D+15}], v[{WF+8*buf+4*fi}:{WF+8*buf+4*fi+3}], v[{XF+8*buf+4*mi}:{XF+8*buf+4*mi+3}], v[{D}:{D+15}]"
A(".p2align 3")
A("L_loop:")
dm = [(s_ldX, vDX, sX_, s_soX), (s_ldW, vDW, sWW, s_soW)]
for s in range(4):
    buf = s & 1
    nxt = reads(buf ^ 1, (s + 1) & 3)
    ld, vo, sr, so = dm[s >> 1]
    i0 = 2 * (s & 1)
    A("s_waitcnt lgkmcnt(3)")
    A(mfma1(buf, 0, 0))
    if s == 3:
        A("s_waitcnt lgkmcnt(0)")
        A(f"s_add_u32 s{s_stage}, s{s_stage}, 1")
        A(f"s_cmp_eq_u32 s{s_stage}, 3")
        A(f"s_cselect_b32 s{s_delta}, {-65536 & 0xffffffff:#x}, s{s_k32}")
        A(f"s_cselect_b32 s{s_stage}, 0, s{s_stage}")
        for r in vRX + vRW: A(f"v_add_u32 v{r}, s{s_delta}, v{r}")
        A(f"s_cmp_eq_u32 s{s_c}, 7")
        A("s_cbranch_scc1 L_nowait")
        A("s_waitcnt vmcnt(6)")
        A("L_nowait:")
        A("s_barrier")
        for r in nxt[:3]: A(r)
        A(mfma1(buf, 0, 1))
        for r in nxt[3:]: A(r)
    else:
        for r in nxt[:3]: A(r)
        A("s_waitcnt lgkmcnt(4)")
        A(mfma1(buf, 0, 1))
        for r in nxt[3:]: A(r)
        A("s_waitcnt lgkmcnt(6)")
    if i0 == 0: A(f"s_mov_b32 m0, s{ld}")
    A(mfma1(buf, 1, 1))
    A(dma(vo[i0], sr, so, i0))
    A(mfma1(buf, 1, 0))
    A(dma(vo[i0+1], sr, so, i0 + 1))
A(f"s_add_u32 s{s_c}, s{s_c}, 1")
A(f"s_cmp_ge_u32 s{s_c}, 6")
A("s_cbranch_scc1 L_w2mode")
set_soffs()
A(f"s_add_u32 s{s_ldX}, s{s_ldX}, 32768")
A(f"s_cmp_ge_u32 s{s_ldX}, 98304")
A(f"s_cselect_b32 s{s_t0}, 98304, 0")
A(f"s_sub_u32 s{s_ldX}, s{s_ldX}, s{s_t0}")
A(f"s_add_u32 s{s_ldW}, s{s_ldX}, 16384")
A("s_branch L_loop")
A("L_spare:")
A(f"s_mov_b32 s{s_c}, 6")
A(f"s_cmp_lg_u32 s{sW}, 0")
A("s_cbranch_scc1 L_spare2")
A(f"v_and_b32 v{vT[10]}, 15, v{v_lane}")
A(f"v_lshlrev_b32 v{vT[10]}, 4, v{vT[10]}")
A(f"v_bfe_u32 v{vT[11]}, v{v_lane}, 4, 1")
A(f"s_mov_b32 s{s_t0}, {2*M32S}")
A(f"v_mul_lo_u32 v{vT[11]}, v{vT[11]}, s{s_t0}")
A(f"v_add_u32 v{vT[10]}, v{vT[10]}, v{vT[11]}")
A(f"s_mul_i32 s{s_t0}, s{s_mt}, {4*M32S}\ns_lshl_b32 s{s_t1}, s{s_fg}, 8\ns_add_u32 s{s_t0}, s{s_t0}, s{s_t1}\ns_add_u32 s{s_t0}, s{s_t0}, {FLAGOFF}")
for i in range(4): A(f"v_mov_b32 v{vT[12+i]}, 0")
assert vT[12] % 2 == 0
A(f"buffer_store_dwordx4 v[{vT[12]}:{vT[15]}], v{vT[10]}, {srd(sA)}, s{s_t0} offen sc1")
A("s_waitcnt vmcnt(0)")
A("s_mov_b64 exec, 1")
A(f"buffer_store_dword v{v_one}, v{v_armoff}, {srd(sD)}, 0 offen sc1")
A("s_mov_b64 exec, -1")
A("L_spare2:")
A(f"s_mov_b32 s{sA+2}, 0")
A("L_w2mode:")
A(f"s_cmp_eq_u32 s{s_c}, 8")
A("s_cbranch_scc1 L_p1done")
A(f"s_cmp_eq_u32 s{s_c}, 7")
A("s_cbranch_scc1 L_w2next")
A(f"s_mov_b32 s{sX_}, s10\ns_mov_b32 s{sX_+1}, s11\ns_mov_b32 s{sX_+2}, 1835008")
A(f"s_mov_b32 s{sWW}, s10\ns_mov_b32 s{sWW+1}, s11")
for i in range(4):
    A(f"v_mov_b32 v{vDX[i]}, v{vD2[i]}\nv_mov_b32 v{vDW[i]}, v{vD2[i]}")
A(f"s_sub_u32 s{s_soX}, s{s_w2base}, 65536")
A(f"s_sub_u32 s{s_ldX}, s{s_P}, 8192")
A("L_w2next:")
A(f"s_add_u32 s{s_soX}, s{s_soX}, 65536\ns_add_u32 s{s_soW}, s{s_soX}, 32768")
A(f"s_add_u32 s{s_ldX}, s{s_ldX}, 8192\ns_add_u32 s{s_ldW}, s{s_ldX}, 4096")
A("s_branch L_loop")
A("L_p1done:")
stamp("p1done")
for g in range(4):
    for i in range(4): vm(f"g{g}")

def w2_dma_group(g):
    base, off = (s_Q, 4096 * (g - 4)) if g < 10 else (s_P, 4096 * (g - 10))
    out = [(f"s_add_u32 m0, s{base}, {off}\ns_add_u32 s{s_soX}, s{s_w2base}, {32768*g}\n" + dma(vD2[0], sX_, s_soX, 0), f"g{g}")]
    for i in range(1, 4): out.append((dma(vD2[i], sX_, s_soX, i), f"g{g}"))
    return out
def w2_reads(g):
    out = []
    vb, off = (vR2P, 4096 * g) if g < 4 else ((vR2Q, 4096 * (g - 4)) if g < 10 else (vR2P, 4096 * (g - 10)))
    for i in range(4):
        j = 4 * g + i; ks, a_ = j >> 1, j & 1
        for ni in range(2):
            r = (ks * 2 + ni) * 4 + 2 * a_
            out.append(f"ds_read_b64_tr_b16 a[{r}:{r+1}], v{vb[ni]} offset:{off+1024*i}")
    return out

def mish_frag(mi, fi, s, tb, ob):
    hb = acc(mi, fi) + 8 * s
    U, N, D = tb, tb + 8, tb + 16
    P = lambda r: f"v[{r}:{r+1}]"
    o = []
    for p in range(4): o.append(f"v_pk_mul_f32 {P(U+2*p)}, {P(hb+2*p)}, s[{s_cl2e}:{s_cl2e+1}]")
    for i in range(8): o.append(f"v_exp_f32 v{U+i}, v{U+i}")
    for p in range(4): o.append(f"v_pk_add_f32 {P(N+2*p)}, {P(U+2*p)}, s[{s_half}:{s_half+1}]")
    for p in range(4): o.append(f"v_pk_fma_f32 {P(D+2*p)}, {P(U+2*p)}, {P(U+2*p)}, {P(N+2*p)}")
    for i in range(8): o.append(f"v_rcp_f32 v{D+i}, v{D+i}")
    for p in range(4): o.append(f"v_pk_mul_f32 {P(N+2*p)}, {P(N+2*p)}, {P(D+2*p)} clamp")
    for p in range(4): o.append(f"v_pk_mul_f32 {P(N+2*p)}, {P(N+2*p)}, {P(hb+2*p)}")
    for p in range(4): o.append(f"v_cvt_pk_bf16_f32 v{ob+p}, v{N+2*p}, v{N+2*p+1}")
    return o

A("s_nop 7")
A(f"s_add_u32 s{s_so}, s{s_actst}, {M32S}")
OUTB = MT + 24
for mi in range(2):
    side = []
    for g in (4, 5, 6) if mi == 0 else (7, 8, 9): side += w2_dma_group(g)
    rds = [] if mi == 0 else (w2_reads(0) + w2_reads(1) + w2_reads(2) + w2_reads(3))
    if mi == 1: wait_vm("g3")
    k = 0
    for fr in range(4):
        fi, s = fr >> 1, fr & 1
        ob = OUTB + 16 * mi + 4 * fr
        body = mish_frag(mi, fi, s, MT, ob)
        for n, ins in enumerate(body):
            A(ins)
            if n in (6, 18, 30):
                i_, tg = side.pop(0); A(i_); vm(tg)
            if rds and n % 5 == 2: A(rds.pop(0))
        A(f"buffer_store_dwordx4 v[{ob}:{ob+3}], v{v_l16}, {srd(sA)}, s{s_actst if mi == 0 else s_so} offen offset:{1024*fr} sc1")
        vm(f"st{mi}")
    assert not side and not rds
    if mi == 0:
        A(f"buffer_load_dword v{v_arm}, v{v_armoff}, {srd(sD)}, 0 offen sc1"); vm("arm")
    stamp(f"mish{mi}")
wait_vm("arm")
A("L_armchk:")
A(f"v_cmp_eq_u32 vcc, 1, v{v_arm}")
A(f"s_add_u32 s{s_spin}, s{s_spin}, 1")
A("s_cmp_eq_u64 vcc, -1")
A("s_cbranch_scc1 L_armok")
A(f"s_cmp_ge_u32 s{s_spin}, 200000")
A("s_cbranch_scc1 L_armok")
A(f"buffer_load_dword v{v_arm}, v{v_armoff}, {srd(sD)}, 0 offen sc1")
A("s_waitcnt vmcnt(0)")
A("s_branch L_armchk")
A("L_armok:")
def flag(v):
    A("s_mov_b64 exec, 1")
    A(f"buffer_store_dword v{v}, off, {srd(sA)}, s{s_flagP} sc1"); vm("flag")
    A("s_mov_b64 exec, -1")
flag(v_one)
stamp("flagA")
A("s_waitcnt lgkmcnt(0)")
for g in (10, 11):
    for i_, tg in w2_dma_group(g): A(i_); vm(tg)
wait_vm("st1")
flag(v_two)
stamp("flagB")
for g in (12, 13):
    for i_, tg in w2_dma_group(g): A(i_); vm(tg)
def poll_issue():
    A(f"buffer_load_dword v{v_poll}, v{v_flagoff}, {srd(sL)}, s{s_flagC} offen sc1")
poll_issue(); vm("poll")
for g in range(4, 10):
    for r in w2_reads(g): A(r)
wait_vm("g11")
for g in (10, 11):
    for r in w2_reads(g): A(r)
wait_vm("poll")
for g in (12, 13):
    for r in w2_reads(g): A(r)
def poll_loop(lbl, val):
    A(f"{lbl}:")
    A(f"v_cmp_le_u32 vcc, {val}, v{v_poll}")
    A(f"s_add_u32 s{s_spin}, s{s_spin}, 1")
    A("s_cmp_eq_u64 vcc, -1")
    A(f"s_cbranch_scc1 {lbl}_ok")
    A(f"s_cmp_ge_u32 s{s_spin}, 200000")
    A(f"s_cbranch_scc1 {lbl}_ok")
    poll_issue()
    A("s_waitcnt vmcnt(0)")
    A(f"s_branch {lbl}")
    A(f"{lbl}_ok:")
stamp("w2done")
poll_loop("L_pollA", 1)
stamp("pollA")
DEP = args.depth
NF = 56
def af(i): return AF + 4 * (i % 32)
def act_load(i):
    mi, ks = divmod(i, 28)
    if ks % 4 == 0: A(f"s_add_u32 s{s_so}, s{s_actld}, {mi*M32S + ks*1024}")
    A(f"buffer_load_dwordx4 v[{af(i)}:{af(i)+3}], v{v_l16}, {srd(sL)}, s{s_so} offen offset:{(ks%4)*1024} sc1"); vm(f"a{i}")
vmq.clear()
PB = 28 - DEP - 6
issued = 0
for i in range(DEP): act_load(i); issued += 1
A("s_waitcnt lgkmcnt(0)")
redw = []
for ni in range(2):
    for g in range(4):
        redw.append((ni, g))
for i in range(NF):
    mi, ks = divmod(i, 28)
    wait_vm(f"a{i}")
    for ni in range(2):
        D = acc(mi, ni); wr = (ks * 2 + ni) * 4
        C = "0" if ks == 0 else f"v[{D}:{D+15}]"
        A(f"v_mfma_f32_32x32x16_bf16 v[{D}:{D+15}], a[{wr}:{wr+3}], v[{af(i)}:{af(i)+3}], {C}")
    if i == PB:
        poll_issue(); vm("pollB")
    if issued < NF:
        if issued == 28:
            wait_vm("pollB")
            poll_loop("L_pollB", 2)
            stamp("pollB")
        act_load(issued); issued += 1
    if mi == 1 and 8 <= ks < 16:
        ni, g = redw[ks - 8]
        if ks == 8:
            for gg in range(1, 4): A(f"v_xor_b32 v{vT[gg]}, {32*gg}, v{v_redw}")
        va = v_redw if g == 0 else vT[g]
        r = acc(0, ni) + 4 * g
        A(f"ds_write_b128 v{va}, v[{r}:{r+3}] offset:{128*ni}")
stamp("p2done")
A(f"s_mov_b32 s{sB}, s12\ns_mov_b32 s{sB+1}, s13\ns_mov_b32 s{sB+2}, 2097152")
A(f"v_xor_b32 v{vT[4]}, 16, v{v_redr}")
A(f"v_add_u32 v{vT[5]}, 49152, v{v_redr}")
A(f"v_add_u32 v{vT[6]}, 49152, v{vT[4]}")
A("s_nop 7")
for ni, g in redw:
    va = v_redw if g == 0 else vT[g]
    r = acc(1, ni) + 4 * g
    if (ni, g) == (1, 0): A("s_nop 0")
    A(f"ds_write_b128 v{va}, v[{r}:{r+3}] offset:{8192+128*ni}")
A("s_waitcnt lgkmcnt(0)")
A("s_barrier")
R = 128
for mi in range(2):
    for src in range(4):
        for e_ in range(2):
            va = [[v_redr, vT[4]], [vT[5], vT[6]]][src >> 1][e_]
            r = R + 32 * mi + 8 * src + 4 * e_
            A(f"ds_read_b128 v[{r}:{r+3}], v{va} offset:{(src & 1)*24576 + 8192*mi}")
P = lambda r: f"v[{r}:{r+1}]"
for mi in range(2):
    b_ = R + 32 * mi
    A(f"s_waitcnt lgkmcnt({12 - 8*mi})")
    for p in range(4): A(f"v_pk_add_f32 {P(b_+2*p)}, {P(b_+2*p)}, {P(b_+8+2*p)}")
    A(f"s_waitcnt lgkmcnt({8 - 8*mi})")
    for p in range(4): A(f"v_pk_add_f32 {P(b_+16+2*p)}, {P(b_+16+2*p)}, {P(b_+24+2*p)}")
    for p in range(4): A(f"v_pk_add_f32 {P(b_+2*p)}, {P(b_+2*p)}, {P(b_+16+2*p)}")
    for p in range(4): A(f"v_cvt_pk_bf16_f32 v{b_+8+p}, v{b_+2*p}, v{b_+2*p+1}")
    if mi == 1: A(f"s_add_u32 s{s_outb}, s{s_outb}, 32768")
    A(f"buffer_store_dwordx4 v[{b_+8}:{b_+11}], v{v_outo}, {srd(sB)}, s{s_outb} offen")
if args.stamps:
    A("s_waitcnt vmcnt(0)")
    stamp("end")
    A("s_memrealtime s[14:15]")
    A("s_waitcnt lgkmcnt(0)")
    n = len(stamp_names)
    A("v_mov_b32 v64, s18\nv_mov_b32 v65, s14")
    for i in range(n): A(f"v_mov_b32 v{66+i}, s{stamp_regs[i]}")
    A(f"v_mov_b32 v{66+n}, s{s_spin}")
    A(f"s_mov_b32 s{sL+2}, 0x10000000")
    A(f"s_lshl_b32 s{s_t0}, s2, 2\ns_add_u32 s{s_t0}, s{s_t0}, s{sW}\ns_lshl_b32 s{s_t0}, s{s_t0}, 7\ns_add_u32 s{s_t0}, s{s_t0}, {STAMP_OFF}")
    A("s_mov_b64 exec, 1")
    for q in range(5):
        A(f"buffer_store_dwordx4 v[{64+4*q}:{67+4*q}], off, {srd(sL)}, s{s_t0} offset:{16*q}")
if args.pad:
    A("s_waitcnt vmcnt(0)")
    stamp("end")
    A("s_waitcnt lgkmcnt(0)")
    A("s_sub_u32 s84, s82, s80")
    A(f"s_cmp_eq_u32 s{s_fl}, 7")
    A("s_cselect_b32 s84, 0, s84")
    if args.padwg >= 0:
        A(f"s_cmp_eq_u32 s2, {args.padwg}")
        A("s_cselect_b32 s84, s84, 0")
    A("s_min_u32 s84, s84, 10000")
    A("s_add_u32 s84, s84, 4000")
    A("L_pad:")
    A("s_memrealtime s[86:87]")
    A("s_waitcnt lgkmcnt(0)")
    A("s_sub_u32 s85, s86, s80")
    A("s_cmp_lt_u32 s85, s84")
    A("s_cbranch_scc1 L_pad")
A("L_end:")
A("s_endpgm")
tail = f""".section .rodata,"a"
.p2align 6
.amdhsa_kernel {KN}
  .amdhsa_next_free_vgpr 512
  .amdhsa_next_free_sgpr 102
  .amdhsa_accum_offset 256
  .amdhsa_group_segment_fixed_size 0
  .amdhsa_kernarg_size 56
  .amdhsa_user_sgpr_count 2
  .amdhsa_user_sgpr_kernarg_segment_ptr 1
  .amdhsa_system_sgpr_workgroup_id_x 1
.end_amdhsa_kernel"""
print(hdr)
print("\n".join(L))
print(tail)
if args.stamps:
    print("; STAMPS: " + " ".join(stamp_names))
```

```python
import sys, argparse
ap = argparse.ArgumentParser()
ap.add_argument("--stamps", type=int, default=0)
ap.add_argument("--rot", type=int, default=5)
ap.add_argument("--depth", type=int, default=10)
ap.add_argument("--pf0", type=int, default=2)
ap.add_argument("--pfs", type=int, default=1)
ap.add_argument("--codepf", type=int, default=1)
ap.add_argument("--outsc", default="")
ap.add_argument("--flagApos", type=int, default=3)
ap.add_argument("--wsoff", type=int, default=0)
ap.add_argument("--ne", type=int, default=2)
ap.add_argument("--e0", type=int, default=8)
ap.add_argument("--e1", type=int, default=22)
ap.add_argument("--order", default="a0 b0 a1 a2 a3 S0 c0 b1 b2 b3 S1 c1 c2 c3")
ap.add_argument("--tierrot", type=int, default=0)
ap.add_argument("--nmish", type=int, default=8)
ap.add_argument("--nb", type=int, default=8)
ap.add_argument("--npoll", type=int, default=8)
ap.add_argument("--biasch", type=int, default=1)
ap.add_argument("--itst", type=int, default=0)
ap.add_argument("--pad", default="")
ap.add_argument("--padwg", type=int, default=-1)
ap.add_argument("--name", default="standalone__dense_activation_mish__prompt")
args = ap.parse_args()
KN = args.name + "_kernel"

M32S = 115712
FLAGOFF = 114688
WS_SIZE = 64 * M32S
STAMP_OFF = 16 << 20

L = []
def A(s):
    for ln in s.split("\n"):
        L.append("    " + ln if not ln.endswith(":") else ln)

sW = 3
sX_, sWW, sB, sA, sL, sD, sW2 = 20, 24, 28, 32, 36, 40, 8
def srd(b): return f"s[{b}:{b+3}]"
s_mt, s_ft, s_fg, s_fl, s_m64, s_ml, s_wm, s_wf = 44, 45, 46, 47, 48, 49, 50, 51
s_nt = s_fl
s_ord, s_xbase, s_wbase, s_soX, s_soW, s_ld, s_so2, s_m0s = 53, 54, 55, 56, 57, 58, 59, 60
s_t2, s_t0, s_t1 = 61, 62, 63
s_wb = [64, 65, 66, 52]
s_actst, s_flagP, s_flagC, s_actld, s_spin, s_outb, s_xcd = 67, 68, 69, 70, 71, 72, 73
s_cl2e = 74; s_half = 76; s_so = 78; s_w2base = 79
s_tier = [18, 19, 15]
v_lane = 1
vDX = [2, 3, 4, 5]; vDW = [6, 7, 8, 9]; vD2 = [10, 11, 12, 13]
vRX = [14, 15, 16, 17]; vRW = [18, 19]; vR2 = [[20, 21], [22, 23], [35, 36]]
v_l16 = 24; v_flagoff = 25; v_armoff = 26; v_arm = 27; v_poll = 28; v_one = 29; v_two = 30
v_bo = 31; v_redw = 32; v_redr = 33; v_outo = 34
vT = list(range(38, 64))
ACC = 64
def acc(mi, j): return ACC + 32 * mi + 16 * j
BIAS = 128; XF = 160; WF = 176; MT = 192
AF = 128; NRING = 16
WOFF = 49152

stamp_names = []
stamp_regs = list(range(80, 100, 2)) + [4, 6, 16, 54, 56]
def stamp(name):
    if args.pad:
        if name == "start": A("s_memrealtime s[80:81]")
        if name == args.pad: A("s_memrealtime s[82:83]")
        return
    if not args.stamps: return
    i = len(stamp_names); stamp_names.append(name)
    r = stamp_regs[i]
    A(f"s_memtime s[{r}:{r+1}]")

vmq = []
def vm(tag): vmq.append(tag)
def wait_vm(tag):
    idx = max(i for i, t in enumerate(vmq) if t == tag)
    n = len(vmq) - 1 - idx
    assert n <= 63, n
    A(f"s_waitcnt vmcnt({n})")

hdr = f"""; fused dense -> mish -> dense, one launch, 256 persistent workgroups
; @launch grid=(256,1,1) block=(256,1,1) lds=163840
.amdgcn_target "amdgcn-amd-amdhsa--gfx950"
.text
.globl {KN}
.p2align 8
.type {KN},@function
{KN}:"""

A(f"s_load_dwordx2 s[{sX_}:{sX_+1}], s[0:1], 0")
A(f"s_load_dwordx2 s[{sWW}:{sWW+1}], s[0:1], 8")
A(f"s_load_dwordx2 s[{sB}:{sB+1}], s[0:1], 16")
A(f"s_load_dwordx2 s[{sW2}:{sW2+1}], s[0:1], 24")
A("s_load_dwordx2 s[12:13], s[0:1], 32")
A(f"s_load_dwordx2 s[{sD}:{sD+1}], s[0:1], 40")
A(f"s_load_dwordx2 s[{sA}:{sA+1}], s[0:1], 48")
A(f"s_load_dwordx2 s[{sL}:{sL+1}], s[0:1], 48")
A("s_cmp_ge_u32 s2, 256")
A("s_cbranch_scc1 L_end")
if args.stamps: A("s_memrealtime s[100:101]")
stamp("start")
A(f"v_lshrrev_b32 v{vT[0]}, 6, v0")
A(f"v_and_b32 v{v_lane}, 63, v0")
A(f"v_readfirstlane_b32 s{sW}, v{vT[0]}")
A(f"s_and_b32 s{s_fg}, s2, 1")
A(f"s_bfe_u32 s{s_fl}, s2, 0x30003")
A(f"s_lshr_b32 s{s_ml}, s2, 6")
A(f"s_and_b32 s{s_mt}, s2, 6")
A(f"s_lshl1_add_u32 s{s_mt}, s{s_mt}, s{s_ml}")
A(f"s_mul_i32 s{s_ft}, s{s_fg}, 7")
A(f"s_add_u32 s{s_ft}, s{s_ft}, s{s_fl}")
def rotw(): A(f"s_mov_b32 s4, 0x76543210\ns_mov_b32 s5, s4\ns_lshr_b64 s[4:5], s[4:5], s{s_t0}\ns_mov_b32 s{s_ord}, s4")
if args.rot == 1:
    A(f"s_lshl1_add_u32 s{s_t0}, s{s_ml}, s{s_fl}\ns_and_b32 s{s_t0}, s{s_t0}, 7\ns_lshl_b32 s{s_t0}, s{s_t0}, 2"); rotw()
elif args.rot == 4:
    A(f"s_lshl1_add_u32 s{s_t0}, s{s_ml}, s{s_fl}\ns_bfe_u32 s{s_t1}, s2, 0x10002\ns_add_u32 s{s_t0}, s{s_t0}, s{s_t1}")
    A(f"s_and_b32 s{s_t0}, s{s_t0}, 3\ns_lshl_b32 s{s_t0}, s{s_t0}, 2")
    A(f"s_lshr_b32 s{s_t0}, 0x32103210, s{s_t0}\ns_pack_ll_b32_b16 s{s_ord}, s{s_t0}, 0x3210")
    A(f"s_lshr_b32 s{s_t1}, s2, 1\ns_xor_b32 s{s_t1}, s{s_t1}, s2\ns_and_b32 s{s_t1}, s{s_t1}, 1\ns_lshl_b32 s{s_t1}, s{s_t1}, 4")
    A(f"s_lshr_b32 s{s_t1}, 0x44440000, s{s_t1}\ns_xor_b32 s{s_ord}, s{s_ord}, s{s_t1}")
elif args.rot == 5:
    A(f"s_add_u32 s{s_t0}, s{s_ml}, s{s_fl}\ns_and_b32 s{s_t0}, s{s_t0}, 1")
    A(f"s_lshr_b32 s{s_t1}, s2, 1\ns_xor_b32 s{s_t1}, s{s_t1}, s2\ns_and_b32 s{s_t1}, s{s_t1}, 1")
    A(f"s_lshl1_add_u32 s{s_t0}, s{s_t0}, s{s_t1}\ns_lshl_b32 s{s_t0}, s{s_t0}, 3"); rotw()
elif args.rot == 6:
    A(f"s_add_u32 s{s_t0}, s{s_ml}, s{s_fl}\ns_and_b32 s{s_t0}, s{s_t0}, 3\ns_lshl_b32 s{s_t0}, s{s_t0}, 3"); rotw()
else:
    A(f"s_mov_b32 s{s_ord}, 0x76543210")
A(f"s_lshl2_add_u32 s{s_xbase}, s{s_mt}, s{sW}\ns_lshl_b32 s{s_xbase}, s{s_xbase}, 15")
A(f"s_mul_i32 s{s_wbase}, s{sW}, 224\ns_add_u32 s{s_wbase}, s{s_wbase}, s{s_ft}\ns_lshl_b32 s{s_wbase}, s{s_wbase}, 8")
a, b, c, d = vT[0], vT[1], vT[2], vT[3]
A(f"v_lshrrev_b32 v{a}, 3, v{v_lane}")
A(f"v_lshrrev_b32 v{b}, 4, v{v_lane}")
A(f"v_and_b32 v{c}, 7, v{v_lane}")
A(f"v_xor_b32 v{d}, v{c}, v{b}")
A(f"v_lshlrev_b32 v{d}, 4, v{d}")
A(f"v_lshl_add_u32 v{vDX[0]}, v{a}, 10, v{d}")
A(f"v_xor_b32 v{d}, 64, v{vDX[0]}")
A(f"v_add_u32 v{vDX[1]}, 7168, v{d}")
A(f"v_add_u32 v{vDX[2]}, {2*7168}, v{vDX[0]}")
A(f"v_add_u32 v{vDX[3]}, {3*7168}, v{d}")
A(f"v_and_b32 v{d}, 15, v{v_lane}")
A(f"v_lshlrev_b32 v{vT[4]}, 2, v{b}")
A(f"v_xor_b32 v{d}, v{d}, v{vT[4]}")
A(f"v_mul_u32_u24 v{vT[4]}, 224, v{b}")
A(f"v_add_lshl_u32 v{vDW[0]}, v{vT[4]}, v{d}, 4")
for i in range(1, 4):
    A(f"v_add_u32 v{vDW[i]}, {i*(4*3584-1024)}, v{vDW[0]}")
A(f"s_mov_b32 s{sX_+2}, 2097152\ns_mov_b32 s{sX_+3}, 0x20000")
A(f"s_mov_b32 s{sWW+2}, 1835008\ns_mov_b32 s{sWW+3}, s{sX_+3}")
A(f"s_lshl_b32 s{s_ld}, s{sW}, 12")
def soffX(j): return f"s_bfe_u32 s{s_t2}, s{s_ord}, {(3 << 16) | (4*j):#x}\ns_lshl_b32 s{s_soX}, s{s_t2}, 7\ns_add_u32 s{s_soX}, s{s_soX}, s{s_xbase}"
def soffW(): return f"s_mul_i32 s{s_soW}, s{s_t2}, 229376\ns_add_u32 s{s_soW}, s{s_soW}, s{s_wbase}"
def dma(vo, srdb, so, i):
    return f"buffer_load_dwordx4 v{vo}, {srd(srdb)}, s{so} offen offset:{1024*i} lds"
def m0row(r): return f"s_add_u32 m0, s{s_ld}, {r * 16384}"
A(soffX(0)); A(soffW())
A(f"s_mov_b32 m0, s{s_ld}")
A(f"s_cmp_eq_u32 s{s_fl}, 7")
A("s_cbranch_scc1 L_sp0")
A("s_waitcnt lgkmcnt(0)")
stamp("karg")
for i in range(4): A(dma(vDX[i], sX_, s_soX, i)); vm("c0")
A(m0row(3))
A("s_nop 0")
for i in range(4): A(dma(vDW[i], sWW, s_soW, i)); vm("c0")
if args.codepf:
    A("s_branch L_setup")
    A("L_sp0:")
    A("s_getpc_b64 s[4:5]")
    A("L_pcref:")
    A(f"v_lshlrev_b32 v{vT[10]}, 6, v0")
    A(f"v_min_u32 v{vT[10]}, L_codeend-L_pcref-4, v{vT[10]}")
    A(f"v_mov_b32 v{vT[11]}, s5")
    A(f"v_add_co_u32 v{vT[10]}, vcc, s4, v{vT[10]}")
    A("s_nop 1")
    A(f"v_addc_co_u32 v{vT[11]}, vcc, 0, v{vT[11]}, vcc")
    assert vT[10] % 2 == 0
    A(f"global_load_dword v{vT[24]}, v[{vT[10]}:{vT[11]}], off")
    A("s_waitcnt lgkmcnt(0)")
    A("L_setup:")
else:
    A("L_sp0:")
    A("s_waitcnt lgkmcnt(0)")
stamp("c0iss")
A(f"s_mov_b32 s{sB+2}, 3584\ns_mov_b32 s{sB+3}, s{sX_+3}")
A(f"s_mov_b32 s{sW2+2}, 1835008\ns_mov_b32 s{sW2+3}, s{sX_+3}")
A(f"s_mov_b32 s{sA+2}, {WS_SIZE}\ns_mov_b32 s{sA+3}, s{sX_+3}")
A(f"s_mov_b32 s{sL+2}, s{sA+2}\ns_mov_b32 s{sL+3}, s{sX_+3}")
A(f"s_movk_i32 s{sD+2}, 256\ns_mov_b32 s{sD+3}, s{sX_+3}")
if args.wsoff:
    for r in (sA, sL): A(f"s_add_u32 s{r}, s{r}, {args.wsoff << 20}\ns_addc_u32 s{r+1}, s{r+1}, 0")
A(f"s_and_b32 s{s_xcd}, s2, 7")
A(f"s_lshl2_add_u32 s{s_m64}, s{s_xcd}, s{s_ml}")
A(f"s_and_b32 s{s_wm}, s{sW}, 1")
A(f"s_lshr_b32 s{s_wf}, s{sW}, 1")
h = vT[5]; t = vT[6]; tq = vT[7]; e = vT[8]; f = vT[9]
A(f"v_lshrrev_b32 v{h}, 5, v{v_lane}")
A(f"v_and_b32 v{d}, 1, v{b}")
A(f"v_lshlrev_b32 v{e}, 2, v{d}")
A(f"v_xor_b32 v{e}, v{c}, v{e}")
A(f"v_lshlrev_b32 v{e}, 4, v{e}")
A(f"v_lshl_add_u32 v{vD2[0]}, v{a}, 10, v{e}")
for i in range(1, 4):
    A(f"v_add_u32 v{vD2[i]}, {i*7168}, v{vD2[0]}")
A(f"v_and_b32 v{e}, 31, v{v_lane}")
A(f"s_lshl_b32 s{s_t0}, s{s_wm}, 13")
A(f"v_lshl_add_u32 v{e}, v{e}, 7, s{s_t0}")
A(f"v_bfe_u32 v{f}, v{v_lane}, 1, 3")
A(f"v_xor_b32 v{f}, v{f}, v{h}")
A(f"v_lshl_add_u32 v{vRX[0]}, v{f}, 4, v{e}")
for s in range(1, 4):
    A(f"v_xor_b32 v{vRX[s]}, {32*s}, v{vRX[0]}")
A(f"v_and_b32 v{e}, 3, v{v_lane}")
A(f"v_lshlrev_b32 v{e}, 3, v{e}")
A(f"v_lshl_add_u32 v{e}, v{d}, 5, v{e}")
A(f"v_bfe_u32 v{tq}, v{v_lane}, 2, 2")
A(f"v_lshl_add_u32 v{f}, v{h}, 3, v{tq}")
A(f"v_lshl_add_u32 v{f}, v{f}, 8, v{e}")
A(f"s_and_b32 s{s_t0}, s{sW}, 2")
A(f"v_xor_b32 v{t}, s{s_t0}, v{tq}")
A(f"v_lshl_add_u32 v{f}, v{t}, 6, v{f}")
A(f"v_add_u32 v{vRW[0]}, {WOFF}, v{f}")
A(f"v_xor_b32 v{vRW[1]}, 64, v{vRW[0]}")
A(f"v_lshl_add_u32 v{f}, v{h}, 2, v{tq}")
A(f"v_lshl_add_u32 v{f}, v{f}, 7, v{e}")
A(f"v_bfe_u32 v{t}, v{v_lane}, 3, 1")
A(f"v_lshl_add_u32 v{f}, v{t}, 6, v{f}")
A(f"v_add_u32 v{vR2[0][0]}, s{s_ld}, v{f}")
A(f"v_xor_b32 v{vR2[0][1]}, 64, v{vR2[0][0]}")
for q in (1, 2):
    for ni in range(2): A(f"v_add_u32 v{vR2[q][ni]}, {65536*q}, v{vR2[0][ni]}")
A(f"v_lshlrev_b32 v{v_l16}, 4, v{v_lane}")
A(f"v_lshlrev_b32 v{v_bo}, 1, v{v_lane}")
A(f"v_lshl_add_u32 v{v_bo}, v{h}, 16, v{v_bo}")
for i in (1, 2, 3, 5, 6, 7, 9, 10, 11): A(f"v_mov_b32 v{BIAS+i}, 0")
A(f"v_xor_b32 v{BIAS+8}, 1, v{h}")
A(f"v_mul_u32_u24 v{BIAS+8}, 0x3f80, v{BIAS+8}")
A(f"v_min_u32 v{v_flagoff}, 6, v{v_lane}")
A(f"v_lshlrev_b32 v{v_flagoff}, 2, v{v_flagoff}")
A(f"v_mov_b32 v{v_one}, 1\nv_mov_b32 v{v_two}, 2")
A(f"s_lshl1_add_u32 s{s_t0}, s{s_mt}, s{s_fg}\ns_lshl_b32 s{s_t0}, s{s_t0}, 2")
A(f"s_and_b32 s{s_t1}, s{s_m64}, 30\ns_add_u32 s{s_t1}, s{s_t1}, s{s_wf}\ns_lshl_b32 s{s_t1}, s{s_t1}, 2")
A(f"s_sub_u32 s{s_t1}, s{s_t1}, s{s_t0}")
A(f"v_mul_lo_u32 v{v_armoff}, v{h}, s{s_t1}")
A(f"v_add_u32 v{v_armoff}, s{s_t0}, v{v_armoff}")
A(f"v_and_b32 v{e}, 15, v{v_lane}")
A(f"v_lshl_add_u32 v{e}, v{e}, 8, s{s_ld}")
A(f"v_lshl_add_u32 v{e}, v{d}, 14, v{e}")
A(f"v_xor_b32 v{f}, v{c}, v{h}")
A(f"v_lshl_add_u32 v{v_redw}, v{f}, 4, v{e}")
A(f"s_lshl_b32 s{s_t0}, s{s_wf}, 14\ns_lshl_b32 s{s_t1}, s{s_wm}, 11\ns_add_u32 s{s_t0}, s{s_t0}, s{s_t1}")
A(f"v_lshl_add_u32 v{e}, v{a}, 8, s{s_t0}")
A(f"v_lshlrev_b32 v{f}, 1, v{c}")
A(f"v_xor_b32 v{f}, v{f}, v{a}")
A(f"v_lshl_add_u32 v{v_redr}, v{f}, 4, v{e}")
A(f"v_lshlrev_b32 v{e}, 4, v{c}")
A(f"v_lshl_add_u32 v{v_outo}, v{a}, 10, v{e}")
A(f"s_mul_i32 s{s_w2base}, s{sW}, 3584\ns_add_u32 s{s_w2base}, s{s_w2base}, s{s_nt}\ns_lshl_b32 s{s_w2base}, s{s_w2base}, 7")
for j in range(4):
    A(f"s_add_u32 s{s_t0}, s{s_ml}, {j}\ns_and_b32 s{s_t0}, s{s_t0}, 3\ns_lshl_b32 s{s_t0}, s{s_t0}, 15\ns_add_u32 s{s_wb[j]}, s{s_w2base}, s{s_t0}")
if args.tierrot:
    A(f"s_mul_i32 s{s_t0}, s{s_xcd}, 11\ns_lshr_b32 s{s_t0}, s{s_t0}, 5\ns_mul_i32 s{s_t0}, s{s_t0}, 3\ns_sub_u32 s{s_t0}, s{s_xcd}, s{s_t0}")
    A(f"s_lshl_b32 s{s_t0}, s{s_t0}, 1\ns_lshr_b32 s{s_t0}, 0x124, s{s_t0}")
    for t_ in range(3):
        A(f"s_bfe_u32 s{s_tier[t_]}, s{s_t0}, {(2 << 16) | (2*t_):#x}\ns_lshl_b32 s{s_tier[t_]}, s{s_tier[t_]}, 17")
A(f"s_lshl1_add_u32 s{s_t0}, s{s_mt}, s{s_wm}")
A(f"s_mul_i32 s{s_t0}, s{s_t0}, {2*M32S}")
A(f"s_lshl1_add_u32 s{s_t1}, s{s_ft}, s{s_wf}")
A(f"s_lshl_b32 s{s_actst}, s{s_t1}, 12\ns_add_u32 s{s_actst}, s{s_actst}, s{s_t0}")
A(f"s_mul_i32 s{s_flagP}, s{s_t1}, 37\ns_lshr_b32 s{s_flagP}, s{s_flagP}, 8")
A(f"s_mul_i32 s{s_flagP}, s{s_flagP}, 100\ns_lshl2_add_u32 s{s_flagP}, s{s_t1}, s{s_flagP}")
A(f"s_add_u32 s{s_flagP}, s{s_flagP}, s{s_t0}\ns_add_u32 s{s_flagP}, s{s_flagP}, {FLAGOFF}")
A(f"s_mul_i32 s{s_t0}, s{s_m64}, {2*M32S}")
A(f"s_lshl_b32 s{s_flagC}, s{sW}, 7\ns_add_u32 s{s_flagC}, s{s_flagC}, s{s_t0}\ns_add_u32 s{s_flagC}, s{s_flagC}, {FLAGOFF}")
A(f"s_mul_i32 s{s_actld}, s{sW}, 28672\ns_add_u32 s{s_actld}, s{s_actld}, s{s_t0}")
A(f"s_lshl3_add_u32 s{s_outb}, s{s_m64}, s{sW}\ns_lshl_b32 s{s_outb}, s{s_outb}, 6\ns_add_u32 s{s_outb}, s{s_outb}, s{s_nt}\ns_lshl_b32 s{s_outb}, s{s_outb}, 7")
A(f"s_mov_b32 s{s_cl2e}, 0xbfb8aa3b\ns_mov_b32 s{s_cl2e+1}, s{s_cl2e}")
A(f"s_mov_b32 s{s_half}, 0.5\ns_mov_b32 s{s_half+1}, 0.5")
A(f"s_mov_b32 s{s_spin}, 0")
A(f"s_cmp_eq_u32 s{s_fl}, 7")
A("s_cbranch_scc1 L_spare")
stamp("setup")
A(m0row(1)); A(soffX(1))
for i in range(4): A(dma(vDX[i], sX_, s_soX, i)); vm("c1")
A(m0row(4)); A(soffW())
for i in range(4): A(dma(vDW[i], sWW, s_soW, i)); vm("c1")
A(f"s_lshl_b32 s{s_t1}, s{s_t1}, 7")
for fi in range(2):
    A(f"buffer_load_ushort v{BIAS+4*fi}, v{v_bo}, {srd(sB)}, s{s_t1} offen offset:{64*fi}"); vm("c1")
A(m0row(2)); A(soffX(2))
wait_vm("c0")
stamp("c0_land")
A("s_barrier")
def rd_x(buf, mi, s, st): return f"ds_read_b128 v[{XF+8*buf+4*mi}:{XF+8*buf+4*mi+3}], v{vRX[s]} offset:{16384*st+4096*mi}"
def rd_w(buf, fi, s, a_, st):
    r = WF + 8 * buf + 4 * fi + 2 * a_
    return f"ds_read_b64_tr_b16 v[{r}:{r+1}], v{vRW[fi]} offset:{16384*st+4096*s+1024*a_}"
def reads(buf, s, st): return [rd_x(buf, 0, s, st), rd_w(buf, 0, s, 0, st), rd_w(buf, 0, s, 1, st), rd_w(buf, 1, s, 0, st), rd_w(buf, 1, s, 1, st), rd_x(buf, 1, s, st)]
for r in reads(0, 0, 0): A(r)
A(dma(vDX[0], sX_, s_soX, 0)); vm("c2")
A(dma(vDX[1], sX_, s_soX, 1)); vm("c2")
def mfma1(buf, mi, fi, first=False):
    D = acc(mi, fi); C = "0" if first else f"v[{D}:{D+15}]"
    return f"v_mfma_f32_32x32x16_bf16 v[{D}:{D+15}], v[{WF+8*buf+4*fi}:{WF+8*buf+4*fi+3}], v[{XF+8*buf+4*mi}:{XF+8*buf+4*mi+3}], {C}"
def mfma_bias(mi, fi):
    D = acc(mi, fi)
    return f"v_mfma_f32_32x32x16_bf16 v[{D}:{D+15}], v[{BIAS+4*fi}:{BIAS+4*fi+3}], v[{BIAS+8}:{BIAS+11}], v[{D}:{D+15}]"

order = args.order.split()
assert len(order) == 14 and len(set(order)) == 14
NE = args.ne
rows = [6 + i for i in range(NE)] + [2, 5, 0, 3, 1, 4] + [6 + i for i in range(NE, 4)]
rows += rows[:4]
def gaddr(dst, p, bases, base0, shift):
    nm = order[p]
    if nm[0] == "S": return f"s_add_u32 s{dst}, s{base0}, {((12 + int(nm[1])) * 32768) >> shift}"
    t_, j = "abc".index(nm[0]), int(nm[1])
    if args.tierrot: return f"s_add_u32 s{dst}, s{bases[j]}, s{s_tier[t_]}"
    return f"s_add_u32 s{dst}, s{bases[j]}, {(t_ * 131072) >> shift}"
stream = []
for j in range(2, 8):
    for i in range(4):
        if j == 2 and i < 2: continue
        stream.append(((m0row(j % 3) + "\n" + soffX(j)) if i == 0 else None, dma(vDX[i], sX_, s_soX, i), f"c{j}"))
    for i in range(4):
        stream.append(((m0row(3 + j % 3) + "\n" + soffW()) if i == 0 else None, dma(vDW[i], sWW, s_soW, i), f"c{j}"))
for p in range(NE, 14):
    for i in range(4):
        stream.append(((m0row(rows[p]) + "\n" + gaddr(s_soX, p, s_wb, s_w2base, 0)) if i == 0 else None, dma(vD2[i], sW2, s_soX, i), f"g{p}"))
early = [(p, i) for p in range(NE) for i in range(4)]
esteps = [args.e0 + (k * (args.e1 - args.e0)) // max(1, len(early) - 1) for k in range(len(early))]
assert len(set(esteps)) == len(esteps) and (not esteps or esteps[-1] <= 22)
def pre_next():
    p, i_, tg = stream[0]
    if p: A(p); stream[0] = (None, i_, tg)
def dma_next():
    p, i_, tg = stream.pop(0)
    if p: A(p)
    A(i_); vm(tg)
for ch in range(8):
    st = ch % 3
    for s in range(4):
        buf = s & 1
        first = ch == 0 and s == 0
        last = ch == 7 and s == 3
        nxt = reads(buf ^ 1, (s + 1) & 3, st if s < 3 else (st + 1) % 3)
        A("s_waitcnt lgkmcnt(3)")
        A(mfma1(buf, 0, 0, first))
        if s == 3:
            if ch == 5: A("L_enter:")
            pre_next()
            if ch == args.biasch:
                for mi_, fi_ in ((0, 1), (1, 1), (1, 0), (0, 0)): A(mfma_bias(mi_, fi_))
            if args.itst: A("s_memtime s[4:5]")
            if ch < 7: wait_vm(f"c{ch+1}")
            if args.itst: A("s_memtime s[6:7]")
            A("s_waitcnt lgkmcnt(0)")
            if args.itst: A(f"v_writelane_b32 v60, s4, {ch}\nv_writelane_b32 v61, s6, {ch}\nv_writelane_b32 v63, s16, {ch}")
            A("s_barrier")
            if args.itst: A("s_memtime s[16:17]")
            if not last:
                for r in nxt[:3]: A(r)
            A(mfma1(buf, 0, 1))
            if not last:
                for r in nxt[3:]: A(r)
            dma_next()
        else:
            for r in nxt[:3]: A(r)
            pre_next()
            A("s_waitcnt lgkmcnt(4)")
            A(mfma1(buf, 0, 1, first))
            for r in nxt[3:]: A(r)
            dma_next()
            A("s_waitcnt lgkmcnt(6)")
        ex = ch * 4 + s in esteps
        if ex:
            p, i = early.pop(0)
            A(f"s_mov_b32 s{s_m0s}, m0")
            A(m0row(rows[p]))
        A(mfma1(buf, 1, 1, first))
        if ex:
            if i == 0: A(gaddr(s_so2, p, s_wb, s_w2base, 0))
            A(dma(vD2[i], sW2, s_so2, i)); vm(f"g{p}")
            A(f"s_mov_b32 m0, s{s_m0s}")
        A(mfma1(buf, 1, 0, first))
        dma_next()
assert not early
stamp("p1done")

def w2_reads(p):
    out = []
    r_ = rows[p]
    for i in range(4):
        j = 4 * p + i; ks, a_ = j >> 1, j & 1
        for ni in range(2):
            r = (ks * 2 + ni) * 4 + 2 * a_
            out.append(f"ds_read_b64_tr_b16 a[{r}:{r+1}], v{vR2[r_ >> 2][ni]} offset:{(r_ & 3)*16384+1024*i}")
    return out
def mish_frag(mi, fi, s, tb, ob):
    hb = acc(mi, fi) + 8 * s
    U, N, D = tb, tb + 8, tb + 16
    P = lambda r: f"v[{r}:{r+1}]"
    o = []
    for p in range(4): o.append(f"v_pk_mul_f32 {P(U+2*p)}, {P(hb+2*p)}, s[{s_cl2e}:{s_cl2e+1}]")
    for i in range(8): o.append(f"v_exp_f32 v{U+i}, v{U+i}")
    for p in range(4): o.append(f"v_pk_add_f32 {P(N+2*p)}, {P(U+2*p)}, s[{s_half}:{s_half+1}]")
    for p in range(4): o.append(f"v_pk_fma_f32 {P(D+2*p)}, {P(U+2*p)}, {P(U+2*p)}, {P(N+2*p)}")
    for i in range(8): o.append(f"v_rcp_f32 v{D+i}, v{D+i}")
    for p in range(4): o.append(f"v_pk_mul_f32 {P(N+2*p)}, {P(N+2*p)}, {P(D+2*p)} clamp")
    for p in range(4): o.append(f"v_pk_mul_f32 {P(N+2*p)}, {P(N+2*p)}, {P(hb+2*p)}")
    for p in range(4): o.append(f"v_cvt_pk_bf16_f32 v{ob+p}, v{N+2*p}, v{N+2*p+1}")
    return o
def flag(v):
    A("s_mov_b64 exec, 1")
    A(f"buffer_store_dword v{v}, off, {srd(sA)}, s{s_flagP} sc1")
    A("s_mov_b64 exec, -1")
def arm_load(): A(f"buffer_load_dword v{v_arm}, v{v_armoff}, {srd(sD)}, 0 offen sc1")
def poll_issue(): A(f"buffer_load_dword v{v_poll}, v{v_flagoff}, {srd(sL)}, s{s_flagC} offen sc1")
cold = []
def spin_check(lbl, cmp_ins, reissue):
    A(f"{lbl}:")
    A(cmp_ins)
    A("s_nop 0")
    A("s_cmp_eq_u64 vcc, -1")
    A(f"s_cbranch_scc0 {lbl}_slow")
    A(f"{lbl}_ok:")
    cold.append((lbl, reissue))

A(f"s_add_u32 s{s_so}, s{s_actst}, {M32S}")
arm_load(); vm("arm")
A("s_nop 6")
OUTB = MT + 24
avail = len(stream) - 16
nm = min(args.nmish, avail)
slotset = set(int((k + 0.5) * 320 / nm) for k in range(nm)) if nm else set()
def st_act(mi, fr):
    ob = OUTB + 16 * mi + 4 * fr
    A(f"buffer_store_dwordx4 v[{ob}:{ob+3}], v{v_l16}, {srd(sA)}, s{s_actst if mi == 0 else s_so} offen offset:{1024*fr} sc1"); vm(f"st{mi}")
armed = [False]
def chk_arm():
    if not armed[0]:
        spin_check("L_arm", f"v_cmp_eq_u32 vcc, 1, v{v_arm}", arm_load); armed[0] = True
def pubA():
    wait_vm("st0")
    chk_arm()
    flag(v_one); vm("flagA")
    stamp("flagA")
for mi in range(2):
    for fr in range(4):
        fi, s = fr >> 1, fr & 1
        ob = OUTB + 16 * mi + 4 * fr
        if mi == 1 and fr == args.flagApos: pubA()
        body = mish_frag(mi, fi, s, MT, ob)
        for n, ins in enumerate(body):
            A(ins)
            if (mi * 4 + fr) * 40 + n in slotset: dma_next()
        st_act(mi, fr)
    stamp(f"mish{mi}")
if args.flagApos == 4: pubA()
wait_vm(f"g{max(3, NE)}")
rds = w2_reads(0) + w2_reads(1) + w2_reads(2) + w2_reads(3)
recycled = [False]
def dma_next2():
    if len(stream) == 16 and not recycled[0]:
        while rds: A(rds.pop(0))
        A("s_waitcnt lgkmcnt(0)"); recycled[0] = True
    dma_next()
    for _ in range(4):
        if rds: A(rds.pop(0))
for k in range(args.nb):
    if len(stream) > args.npoll: dma_next2()
wait_vm("st1")
chk_arm()
flag(v_two); vm("flagB")
stamp("flagB")
landed = [p for p in range(4, 14) if max(i for i, t in enumerate(vmq) if t == "st1") > max([i for i, t in enumerate(vmq) if t == f"g{p}"] + [10**9 if vmq.count(f"g{p}") < 4 else -1])]
more = []
for p in landed: more += w2_reads(p)
while len(stream) > args.npoll:
    dma_next2()
    for _ in range(4):
        if more and not rds: A(more.pop(0))
poll_issue(); vm("pollA")
polled = [p for p in range(4, 14) if vmq.count(f"g{p}") == 4 and p not in landed]
while stream:
    dma_next2()
    for _ in range(4):
        if more and not rds: A(more.pop(0))
for j in range(4):
    A(f"s_sub_u32 s{s_wb[j]}, s{s_wb[j]}, s{s_w2base}\ns_lshr_b32 s{s_wb[j]}, s{s_wb[j]}, 4\ns_add_u32 s{s_wb[j]}, s{s_wb[j]}, s{s_actld}")
if args.tierrot:
    for t_ in range(3): A(f"s_lshr_b32 s{s_tier[t_]}, s{s_tier[t_]}, 4")
while more: A(more.pop(0))
stamp("w2iss")
wait_vm("pollA")
spin_check("L_pollA", f"v_cmp_le_u32 vcc, {1 if args.flagApos <= 4 else 2}, v{v_poll}", poll_issue)
stamp("pollA")
DEP = args.depth
NF = 56
def af(i): return AF + 4 * (i % NRING)
def act_load(i):
    mi, ks = divmod(i, 28)
    if i == 28:
        for r in s_wb + [s_actld]: A(f"s_add_u32 s{r}, s{r}, {M32S}")
    if ks % 2 == 0: A(gaddr(s_so, ks >> 1, s_wb, s_actld, 4))
    A(f"buffer_load_dwordx4 v[{af(i)}:{af(i)+3}], v{v_l16}, {srd(sL)}, s{s_so} offen offset:{(ks%2)*1024} sc1"); vm(f"a{i}")
assert DEP < NRING
late = []
for p in polled: late += w2_reads(p)
issued = 0
for i in range(DEP):
    act_load(i); issued += 1
    for _ in range(6):
        if late: A(late.pop(0))
while late: A(late.pop(0))
late = []
for p in range(4, 14):
    if p not in landed and p not in polled: late += w2_reads(p)
assert len(late) <= 28
PB = 28 - DEP - 6
redw = [(ni, g) for ni in range(2) for g in range(4)]
for i in range(NF):
    mi, ks = divmod(i, 28)
    wait_vm(f"a{i}")
    if i == 0: stamp("a0")
    if i == 8: A("s_waitcnt lgkmcnt(0)")
    for ni in range(2):
        D = acc(mi, ni); wr = (ks * 2 + ni) * 4
        C = "0" if ks == 0 else f"v[{D}:{D+15}]"
        A(f"v_mfma_f32_32x32x16_bf16 v[{D}:{D+15}], a[{wr}:{wr+3}], v[{af(i)}:{af(i)+3}], {C}")
        for _ in range(2):
            if late: A(late.pop(0))
    if i == PB and args.flagApos <= 4:
        poll_issue(); vm("pollB")
    if issued < NF:
        if issued == 28 and args.flagApos <= 4:
            wait_vm("pollB")
            spin_check("L_pollB", f"v_cmp_le_u32 vcc, 2, v{v_poll}", poll_issue)
        act_load(issued); issued += 1
    if mi == 1 and 8 <= ks < 16:
        ni, g = redw[ks - 8]
        if ks == 8:
            for gg in range(1, 4): A(f"v_xor_b32 v{vT[gg]}, {32*gg}, v{v_redw}")
        va = v_redw if g == 0 else vT[g]
        r = acc(0, ni) + 4 * g
        A(f"ds_write_b128 v{va}, v[{r}:{r+3}] offset:{128*ni}")
    if i == 50:
        A(f"s_mov_b32 s{sB}, s12\ns_mov_b32 s{sB+1}, s13\ns_mov_b32 s{sB+2}, 2097152")
        A(f"v_xor_b32 v{vT[4]}, 16, v{v_redr}")
stamp("p2done")
A("s_nop 10")
for ni, g in redw:
    va = v_redw if g == 0 else vT[g]
    r = acc(1, ni) + 4 * g
    A(f"ds_write_b128 v{va}, v[{r}:{r+3}] offset:{32768+128*ni}")
A("s_waitcnt lgkmcnt(0)")
A("s_barrier")
R = 128
for mi in range(2):
    for src in range(4):
        for e_ in range(2):
            va = [v_redr, vT[4]][e_]
            r = R + 32 * mi + 8 * src + 4 * e_
            A(f"ds_read_b128 v[{r}:{r+3}], v{va} offset:{src*4096 + 32768*mi}")
P = lambda r: f"v[{r}:{r+1}]"
for mi in range(2):
    b_ = R + 32 * mi
    A(f"s_waitcnt lgkmcnt({12 - 8*mi})")
    for p in range(4): A(f"v_pk_add_f32 {P(b_+2*p)}, {P(b_+2*p)}, {P(b_+8+2*p)}")
    A(f"s_waitcnt lgkmcnt({8 - 8*mi})")
    for p in range(4): A(f"v_pk_add_f32 {P(b_+16+2*p)}, {P(b_+16+2*p)}, {P(b_+24+2*p)}")
    for p in range(4): A(f"v_pk_add_f32 {P(b_+2*p)}, {P(b_+2*p)}, {P(b_+16+2*p)}")
    for p in range(4): A(f"v_cvt_pk_bf16_f32 v{b_+8+p}, v{b_+2*p}, v{b_+2*p+1}")
    if mi == 1: A(f"s_add_u32 s{s_outb}, s{s_outb}, 32768")
    A(f"buffer_store_dwordx4 v[{b_+8}:{b_+11}], v{v_outo}, {srd(sB)}, s{s_outb} offen {args.outsc}")
if args.stamps:
    A("s_waitcnt vmcnt(0)")
    stamp("end")
    A("s_memrealtime s[12:13]")
    A("s_waitcnt lgkmcnt(0)")
    n = len(stamp_names)
    A("v_mov_b32 v64, s100\nv_mov_b32 v65, s12")
    for i in range(n): A(f"v_mov_b32 v{66+i}, s{stamp_regs[i]}")
    A(f"v_mov_b32 v{66+n}, s{s_spin}")
    A(f"s_mov_b32 s{sL+2}, 0x10000000")
    A(f"s_lshl_b32 s{s_t0}, s2, 2\ns_add_u32 s{s_t0}, s{s_t0}, s{sW}\ns_lshl_b32 s{s_t0}, s{s_t0}, 7\ns_add_u32 s{s_t0}, s{s_t0}, {STAMP_OFF}")
    if args.wsoff: A(f"s_sub_u32 s{sL}, s{sL}, {args.wsoff << 20}\ns_subb_u32 s{sL+1}, s{sL+1}, 0")
    if args.itst:
        A(f"v_lshlrev_b32 v59, 2, v{v_lane}")
        A("s_mov_b64 exec, 255")
        A(f"s_add_u32 s{s_t1}, s{s_t0}, {1<<20}")
        for q, r in enumerate((60, 61, 63)): A(f"buffer_store_dword v{r}, v59, {srd(sL)}, s{s_t1} offen offset:{32*q}")
    A("s_mov_b64 exec, 1")
    for q in range(5):
        A(f"buffer_store_dwordx4 v[{64+4*q}:{67+4*q}], off, {srd(sL)}, s{s_t0} offset:{16*q}")
if args.pad:
    A("s_waitcnt vmcnt(0)")
    stamp("end")
    A("s_waitcnt lgkmcnt(0)")
    A("s_sub_u32 s84, s82, s80")
    A(f"s_cmp_eq_u32 s{s_fl}, 7")
    A("s_cselect_b32 s84, 0, s84")
    if args.padwg >= 0:
        A(f"s_cmp_eq_u32 s2, {args.padwg}")
        A("s_cselect_b32 s84, s84, 0")
    A("s_min_u32 s84, s84, 10000")
    A("s_add_u32 s84, s84, 4000")
    A("L_pad:")
    A("s_memrealtime s[86:87]")
    A("s_waitcnt lgkmcnt(0)")
    A("s_sub_u32 s85, s86, s80")
    A("s_cmp_lt_u32 s85, s84")
    A("s_cbranch_scc1 L_pad")
A("L_end:")
A("s_endpgm")
for lbl, reissue in cold:
    A(f"{lbl}_slow:")
    A(f"s_add_u32 s{s_spin}, s{s_spin}, 1")
    A(f"s_cmp_ge_u32 s{s_spin}, 200000")
    A(f"s_cbranch_scc1 {lbl}_ok")
    reissue()
    A("s_waitcnt vmcnt(0)")
    A(f"s_branch {lbl}")
A("L_spare:")
A(f"s_cmp_lg_u32 s{sW}, 0")
A("s_cbranch_scc1 L_spare2")
A(f"v_and_b32 v{vT[12]}, 15, v{v_lane}")
A(f"v_lshlrev_b32 v{vT[12]}, 4, v{vT[12]}")
A(f"s_mov_b32 s{s_t0}, {2*M32S}")
A(f"v_mul_lo_u32 v{vT[13]}, v{d}, s{s_t0}")
A(f"v_add_u32 v{vT[12]}, v{vT[12]}, v{vT[13]}")
A(f"s_mul_i32 s{s_t0}, s{s_mt}, {4*M32S}\ns_lshl_b32 s{s_t1}, s{s_fg}, 8\ns_add_u32 s{s_t0}, s{s_t0}, s{s_t1}\ns_add_u32 s{s_t0}, s{s_t0}, {FLAGOFF}")
for i in range(4): A(f"v_mov_b32 v{vT[14+i]}, 0")
A(f"buffer_store_dwordx4 v[{vT[14]}:{vT[17]}], v{vT[12]}, {srd(sA)}, s{s_t0} offen sc1")
A("L_spare2:")
A(f"v_lshlrev_b32 v{vT[18]}, 7, v{v_lane}")
A(f"s_mul_i32 s{s_t1}, s{s_ml}, 56\ns_add_u32 s{s_t1}, s{s_t1}, s{sW}\ns_lshl_b32 s{s_t1}, s{s_t1}, 13")
A(f"s_mul_i32 s{s_t0}, s{s_xcd}, 7\ns_lshr_b32 s{s_t0}, s{s_t0}, 2\ns_lshl_b32 s{s_t0}, s{s_t0}, 15\ns_add_u32 s{s_t0}, s{s_t0}, s{s_t1}")
for j in range(args.pf0):
    A(f"buffer_load_dword v{vT[24]}, v{vT[18]}, {srd(sW2)}, s{s_t0} offen")
    A(f"s_add_u32 s{s_t0}, s{s_t0}, 32768")
A(f"s_cmp_lg_u32 s{sW}, 0")
A("s_cbranch_scc1 L_spare3")
A(f"s_waitcnt vmcnt({args.pf0})")
A("s_mov_b64 exec, 1")
A(f"buffer_store_dword v{v_one}, v{v_armoff}, {srd(sD)}, 0 offen sc1")
A("s_mov_b64 exec, -1")
A("L_spare3:")
A(f"s_mov_b32 s{sA+2}, 0")
if args.pfs:
    for j in (12, 13):
        A(f"s_add_u32 s{s_t0}, s{s_t1}, {32768*j}")
        A(f"buffer_load_dword v{vT[24]}, v{vT[18]}, {srd(sW2)}, s{s_t0} offen")
for p in range(NE):
    A(m0row(rows[p])); A(gaddr(s_so2, p, s_wb, s_w2base, 0))
    for i in range(4): A(dma(vD2[i], sW2, s_so2, i))
A("s_branch L_enter")
A("L_codeend:")
tail = f""".section .rodata,"a"
.p2align 6
.amdhsa_kernel {KN}
  .amdhsa_next_free_vgpr 512
  .amdhsa_next_free_sgpr 102
  .amdhsa_accum_offset 256
  .amdhsa_group_segment_fixed_size 0
  .amdhsa_kernarg_size 56
  .amdhsa_user_sgpr_count 2
  .amdhsa_user_sgpr_kernarg_segment_ptr 1
  .amdhsa_system_sgpr_workgroup_id_x 1
.end_amdhsa_kernel"""
print(hdr)
print("\n".join(L))
print(tail)
if args.stamps:
    print("; STAMPS: " + " ".join(stamp_names))
```

```python
import sys, argparse
ap = argparse.ArgumentParser()
ap.add_argument("--stamps", type=int, default=0)
ap.add_argument("--rot", type=int, default=5)
ap.add_argument("--depth", type=int, default=10)
ap.add_argument("--pf0", type=int, default=2)
ap.add_argument("--pfs", type=int, default=1)
ap.add_argument("--codepf", type=int, default=1)
ap.add_argument("--outsc", default="")
ap.add_argument("--flagApos", type=int, default=3)
ap.add_argument("--wsoff", type=int, default=0)
ap.add_argument("--ne", type=int, default=2)
ap.add_argument("--e0", type=int, default=8)
ap.add_argument("--e1", type=int, default=22)
ap.add_argument("--order", default="a0 b0 c0 a1 a2 a3 S0 b1 b2 b3 S1 c1 c2 c3")
ap.add_argument("--tierrot", type=int, default=0)
ap.add_argument("--nmish", type=int, default=0)
ap.add_argument("--nb", type=int, default=8)
ap.add_argument("--npoll", type=int, default=8)
ap.add_argument("--norot2", type=int, default=0)
ap.add_argument("--spoll", type=int, default=1)
ap.add_argument("--fullflag", type=int, default=1)
ap.add_argument("--sleep", type=int, default=0)
ap.add_argument("--biasch", type=int, default=1)
ap.add_argument("--itst", type=int, default=0)
ap.add_argument("--pad", default="")
ap.add_argument("--padwg", type=int, default=-1)
ap.add_argument("--name", default="standalone__dense_activation_mish__prompt")
args = ap.parse_args()
KN = args.name + "_kernel"

M32S = 118784
FLAGOFF = 114688
WS_SIZE = 64 * M32S
STAMP_OFF = 16 << 20

L = []
def A(s):
    for ln in s.split("\n"):
        L.append("    " + ln if not ln.endswith(":") else ln)

sW = 3
sX_, sWW, sB, sA, sL, sD, sW2 = 20, 24, 28, 32, 36, 40, 8
def srd(b): return f"s[{b}:{b+3}]"
s_mt, s_ft, s_fg, s_fl, s_m64, s_ml, s_wm, s_wf = 44, 45, 46, 47, 48, 49, 50, 51
s_nt = s_fl
s_ord, s_xbase, s_wbase, s_soX, s_soW, s_ld, s_so2, s_m0s = 53, 54, 55, 56, 57, 58, 59, 60
s_t2, s_t0, s_t1 = 61, 62, 63
s_wb = [64, 65, 66, 52]
s_actst, s_flagP, s_flagC, s_actld, s_spin, s_outb, s_xcd = 67, 68, 69, 70, 71, 72, 73
s_cl2e = 74; s_half = 76; s_so = 78; s_w2base = 79
s_tier = [18, 19, 15]
s_armP, s_armC = 0, 1
s_pl = [53, 59, 60, 61, 44, 45, 46]
v_lane = 1
vDX = [2, 3, 4, 5]; vDW = [6, 7, 8, 9]; vD2 = [10, 11, 12, 13]
vRX = [14, 15, 16, 17]; vRW = [18, 19]; vR2 = [[20, 21], [22, 23], [35, 36]]
v_l16 = 24; v_flagoff = 25; v_armoff = 26; v_arm = 27; v_poll = 28; v_one = 29; v_two = 30
v_bo = 31; v_redw = 32; v_redr = 33; v_outo = 34
vT = list(range(38, 64))
ACC = 64
def acc(mi, j): return ACC + 32 * mi + 16 * j
BIAS = 128; XF = 160; WF = 176; MT = 192
AF = 128; NRING = 16
WOFF = 49152

stamp_names = []
stamp_regs = list(range(80, 100, 2)) + [4, 6, 16, 54, 56]
def stamp(name):
    if args.pad:
        if name == "start": A("s_memrealtime s[80:81]")
        if name == args.pad: A("s_memrealtime s[82:83]")
        return
    if not args.stamps: return
    i = len(stamp_names); stamp_names.append(name)
    r = stamp_regs[i]
    A(f"s_memtime s[{r}:{r+1}]")

vmq = []
def vm(tag): vmq.append(tag)
def wait_vm(tag):
    idx = max(i for i, t in enumerate(vmq) if t == tag)
    n = len(vmq) - 1 - idx
    assert n <= 63, n
    A(f"s_waitcnt vmcnt({n})")

hdr = f"""; fused dense -> mish -> dense, one launch, 256 persistent workgroups
; @launch grid=(256,1,1) block=(256,1,1) lds=163840
.amdgcn_target "amdgcn-amd-amdhsa--gfx950"
.text
.globl {KN}
.p2align 8
.type {KN},@function
{KN}:"""

A(f"s_load_dwordx2 s[{sX_}:{sX_+1}], s[0:1], 0")
A(f"s_load_dwordx2 s[{sWW}:{sWW+1}], s[0:1], 8")
A(f"s_load_dwordx2 s[{sB}:{sB+1}], s[0:1], 16")
A(f"s_load_dwordx2 s[{sW2}:{sW2+1}], s[0:1], 24")
A("s_load_dwordx2 s[12:13], s[0:1], 32")
A(f"s_load_dwordx2 s[{sD}:{sD+1}], s[0:1], 40")
A(f"s_load_dwordx2 s[{sA}:{sA+1}], s[0:1], 48")
A(f"s_load_dwordx2 s[{sL}:{sL+1}], s[0:1], 48")
A("s_cmp_ge_u32 s2, 256")
A("s_cbranch_scc1 L_end")
if args.stamps: A("s_memrealtime s[100:101]")
stamp("start")
A(f"v_lshrrev_b32 v{vT[0]}, 6, v0")
A(f"v_and_b32 v{v_lane}, 63, v0")
A(f"v_readfirstlane_b32 s{sW}, v{vT[0]}")
A(f"s_and_b32 s{s_fg}, s2, 1")
A(f"s_bfe_u32 s{s_fl}, s2, 0x30003")
A(f"s_lshr_b32 s{s_ml}, s2, 6")
A(f"s_and_b32 s{s_mt}, s2, 6")
A(f"s_lshl1_add_u32 s{s_mt}, s{s_mt}, s{s_ml}")
A(f"s_mul_i32 s{s_ft}, s{s_fg}, 7")
A(f"s_add_u32 s{s_ft}, s{s_ft}, s{s_fl}")
def rotw(): A(f"s_mov_b32 s4, 0x76543210\ns_mov_b32 s5, s4\ns_lshr_b64 s[4:5], s[4:5], s{s_t0}\ns_mov_b32 s{s_ord}, s4")
if args.rot == 1:
    A(f"s_lshl1_add_u32 s{s_t0}, s{s_ml}, s{s_fl}\ns_and_b32 s{s_t0}, s{s_t0}, 7\ns_lshl_b32 s{s_t0}, s{s_t0}, 2"); rotw()
elif args.rot == 4:
    A(f"s_lshl1_add_u32 s{s_t0}, s{s_ml}, s{s_fl}\ns_bfe_u32 s{s_t1}, s2, 0x10002\ns_add_u32 s{s_t0}, s{s_t0}, s{s_t1}")
    A(f"s_and_b32 s{s_t0}, s{s_t0}, 3\ns_lshl_b32 s{s_t0}, s{s_t0}, 2")
    A(f"s_lshr_b32 s{s_t0}, 0x32103210, s{s_t0}\ns_pack_ll_b32_b16 s{s_ord}, s{s_t0}, 0x3210")
    A(f"s_lshr_b32 s{s_t1}, s2, 1\ns_xor_b32 s{s_t1}, s{s_t1}, s2\ns_and_b32 s{s_t1}, s{s_t1}, 1\ns_lshl_b32 s{s_t1}, s{s_t1}, 4")
    A(f"s_lshr_b32 s{s_t1}, 0x44440000, s{s_t1}\ns_xor_b32 s{s_ord}, s{s_ord}, s{s_t1}")
elif args.rot == 5:
    A(f"s_add_u32 s{s_t0}, s{s_ml}, s{s_fl}\ns_and_b32 s{s_t0}, s{s_t0}, 1")
    A(f"s_lshr_b32 s{s_t1}, s2, 1\ns_xor_b32 s{s_t1}, s{s_t1}, s2\ns_and_b32 s{s_t1}, s{s_t1}, 1")
    A(f"s_lshl1_add_u32 s{s_t0}, s{s_t0}, s{s_t1}\ns_lshl_b32 s{s_t0}, s{s_t0}, 3"); rotw()
elif args.rot == 6:
    A(f"s_add_u32 s{s_t0}, s{s_ml}, s{s_fl}\ns_and_b32 s{s_t0}, s{s_t0}, 3\ns_lshl_b32 s{s_t0}, s{s_t0}, 3"); rotw()
else:
    A(f"s_mov_b32 s{s_ord}, 0x76543210")
A(f"s_lshl2_add_u32 s{s_xbase}, s{s_mt}, s{sW}\ns_lshl_b32 s{s_xbase}, s{s_xbase}, 15")
A(f"s_mul_i32 s{s_wbase}, s{sW}, 224\ns_add_u32 s{s_wbase}, s{s_wbase}, s{s_ft}\ns_lshl_b32 s{s_wbase}, s{s_wbase}, 8")
a, b, c, d = vT[0], vT[1], vT[2], vT[3]
A(f"v_lshrrev_b32 v{a}, 3, v{v_lane}")
A(f"v_lshrrev_b32 v{b}, 4, v{v_lane}")
A(f"v_and_b32 v{c}, 7, v{v_lane}")
A(f"v_xor_b32 v{d}, v{c}, v{b}")
A(f"v_lshlrev_b32 v{d}, 4, v{d}")
A(f"v_lshl_add_u32 v{vDX[0]}, v{a}, 10, v{d}")
A(f"v_xor_b32 v{d}, 64, v{vDX[0]}")
A(f"v_add_u32 v{vDX[1]}, 7168, v{d}")
A(f"v_add_u32 v{vDX[2]}, {2*7168}, v{vDX[0]}")
A(f"v_add_u32 v{vDX[3]}, {3*7168}, v{d}")
A(f"v_and_b32 v{d}, 15, v{v_lane}")
A(f"v_lshlrev_b32 v{vT[4]}, 2, v{b}")
A(f"v_xor_b32 v{d}, v{d}, v{vT[4]}")
A(f"v_mul_u32_u24 v{vT[4]}, 224, v{b}")
A(f"v_add_lshl_u32 v{vDW[0]}, v{vT[4]}, v{d}, 4")
for i in range(1, 4):
    A(f"v_add_u32 v{vDW[i]}, {i*(4*3584-1024)}, v{vDW[0]}")
A(f"s_mov_b32 s{sX_+2}, 2097152\ns_mov_b32 s{sX_+3}, 0x20000")
A(f"s_mov_b32 s{sWW+2}, 1835008\ns_mov_b32 s{sWW+3}, s{sX_+3}")
A(f"s_lshl_b32 s{s_ld}, s{sW}, 12")
def soffX(j): return f"s_bfe_u32 s{s_t2}, s{s_ord}, {(3 << 16) | (4*j):#x}\ns_lshl_b32 s{s_soX}, s{s_t2}, 7\ns_add_u32 s{s_soX}, s{s_soX}, s{s_xbase}"
def soffW(): return f"s_mul_i32 s{s_soW}, s{s_t2}, 229376\ns_add_u32 s{s_soW}, s{s_soW}, s{s_wbase}"
def dma(vo, srdb, so, i):
    return f"buffer_load_dwordx4 v{vo}, {srd(srdb)}, s{so} offen offset:{1024*i} lds"
def m0row(r): return f"s_add_u32 m0, s{s_ld}, {r * 16384}"
A(soffX(0)); A(soffW())
A(f"s_mov_b32 m0, s{s_ld}")
A(f"s_cmp_eq_u32 s{s_fl}, 7")
A("s_cbranch_scc1 L_sp0")
A("s_waitcnt lgkmcnt(0)")
stamp("karg")
for i in range(4): A(dma(vDX[i], sX_, s_soX, i)); vm("c0")
A(m0row(3))
A("s_nop 0")
for i in range(4): A(dma(vDW[i], sWW, s_soW, i)); vm("c0")
if args.codepf:
    A("s_branch L_setup")
    A("L_sp0:")
    A("s_getpc_b64 s[4:5]")
    A("L_pcref:")
    A(f"v_lshlrev_b32 v{vT[10]}, 6, v0")
    A(f"v_min_u32 v{vT[10]}, L_codeend-L_pcref-4, v{vT[10]}")
    A(f"v_mov_b32 v{vT[11]}, s5")
    A(f"v_add_co_u32 v{vT[10]}, vcc, s4, v{vT[10]}")
    A("s_nop 1")
    A(f"v_addc_co_u32 v{vT[11]}, vcc, 0, v{vT[11]}, vcc")
    assert vT[10] % 2 == 0
    A(f"global_load_dword v{vT[24]}, v[{vT[10]}:{vT[11]}], off")
    A("s_waitcnt lgkmcnt(0)")
    A("L_setup:")
else:
    A("L_sp0:")
    A("s_waitcnt lgkmcnt(0)")
stamp("c0iss")
A(f"s_mov_b32 s{sB+2}, 3584\ns_mov_b32 s{sB+3}, s{sX_+3}")
A(f"s_mov_b32 s{sW2+2}, 1835008\ns_mov_b32 s{sW2+3}, s{sX_+3}")
A(f"s_mov_b32 s{sA+2}, {WS_SIZE}\ns_mov_b32 s{sA+3}, s{sX_+3}")
A(f"s_mov_b32 s{sL+2}, s{sA+2}\ns_mov_b32 s{sL+3}, s{sX_+3}")
A(f"s_movk_i32 s{sD+2}, 256\ns_mov_b32 s{sD+3}, s{sX_+3}")
if args.wsoff:
    for r in (sA, sL): A(f"s_add_u32 s{r}, s{r}, {args.wsoff << 20}\ns_addc_u32 s{r+1}, s{r+1}, 0")
A(f"s_and_b32 s{s_xcd}, s2, 7")
A(f"s_lshl2_add_u32 s{s_m64}, s{s_xcd}, s{s_ml}")
A(f"s_and_b32 s{s_wm}, s{sW}, 1")
A(f"s_lshr_b32 s{s_wf}, s{sW}, 1")
h = vT[5]; t = vT[6]; tq = vT[7]; e = vT[8]; f = vT[9]
A(f"v_lshrrev_b32 v{h}, 5, v{v_lane}")
A(f"v_and_b32 v{d}, 1, v{b}")
A(f"v_lshlrev_b32 v{e}, 2, v{d}")
A(f"v_xor_b32 v{e}, v{c}, v{e}")
A(f"v_lshlrev_b32 v{e}, 4, v{e}")
A(f"v_lshl_add_u32 v{vD2[0]}, v{a}, 10, v{e}")
for i in range(1, 4):
    A(f"v_add_u32 v{vD2[i]}, {i*7168}, v{vD2[0]}")
A(f"v_and_b32 v{e}, 31, v{v_lane}")
A(f"s_lshl_b32 s{s_t0}, s{s_wm}, 13")
A(f"v_lshl_add_u32 v{e}, v{e}, 7, s{s_t0}")
A(f"v_bfe_u32 v{f}, v{v_lane}, 1, 3")
A(f"v_xor_b32 v{f}, v{f}, v{h}")
A(f"v_lshl_add_u32 v{vRX[0]}, v{f}, 4, v{e}")
for s in range(1, 4):
    A(f"v_xor_b32 v{vRX[s]}, {32*s}, v{vRX[0]}")
A(f"v_and_b32 v{e}, 3, v{v_lane}")
A(f"v_lshlrev_b32 v{e}, 3, v{e}")
A(f"v_lshl_add_u32 v{e}, v{d}, 5, v{e}")
A(f"v_bfe_u32 v{tq}, v{v_lane}, 2, 2")
A(f"v_lshl_add_u32 v{f}, v{h}, 3, v{tq}")
A(f"v_lshl_add_u32 v{f}, v{f}, 8, v{e}")
A(f"s_and_b32 s{s_t0}, s{sW}, 2")
A(f"v_xor_b32 v{t}, s{s_t0}, v{tq}")
A(f"v_lshl_add_u32 v{f}, v{t}, 6, v{f}")
A(f"v_add_u32 v{vRW[0]}, {WOFF}, v{f}")
A(f"v_xor_b32 v{vRW[1]}, 64, v{vRW[0]}")
A(f"v_lshl_add_u32 v{f}, v{h}, 2, v{tq}")
A(f"v_lshl_add_u32 v{f}, v{f}, 7, v{e}")
A(f"v_bfe_u32 v{t}, v{v_lane}, 3, 1")
A(f"v_lshl_add_u32 v{f}, v{t}, 6, v{f}")
A(f"v_add_u32 v{vR2[0][0]}, s{s_ld}, v{f}")
A(f"v_xor_b32 v{vR2[0][1]}, 64, v{vR2[0][0]}")
for q in (1, 2):
    for ni in range(2): A(f"v_add_u32 v{vR2[q][ni]}, {65536*q}, v{vR2[0][ni]}")
A(f"v_lshlrev_b32 v{v_l16}, 4, v{v_lane}")
A(f"v_lshlrev_b32 v{v_bo}, 1, v{v_lane}")
A(f"v_lshl_add_u32 v{v_bo}, v{h}, 16, v{v_bo}")
for i in (1, 2, 3, 5, 6, 7, 9, 10, 11): A(f"v_mov_b32 v{BIAS+i}, 0")
A(f"v_xor_b32 v{BIAS+8}, 1, v{h}")
A(f"v_mul_u32_u24 v{BIAS+8}, 0x3f80, v{BIAS+8}")
A(f"v_min_u32 v{v_flagoff}, 6, v{v_lane}")
A(f"v_lshlrev_b32 v{v_flagoff}, 7, v{v_flagoff}")
A(f"v_mov_b32 v{v_one}, 1")
A(f"v_lshlrev_b32 v{v_two}, 2, v{v_lane}")
A(f"s_lshl1_add_u32 s{s_t0}, s{s_mt}, s{s_fg}\ns_lshl_b32 s{s_t0}, s{s_t0}, 2")
A(f"s_and_b32 s{s_t1}, s{s_m64}, 30\ns_add_u32 s{s_t1}, s{s_t1}, s{s_wf}\ns_lshl_b32 s{s_t1}, s{s_t1}, 2")
A(f"s_sub_u32 s{s_t1}, s{s_t1}, s{s_t0}")
A(f"v_mul_lo_u32 v{v_armoff}, v{h}, s{s_t1}")
A(f"v_add_u32 v{v_armoff}, s{s_t0}, v{v_armoff}")
A(f"v_and_b32 v{e}, 15, v{v_lane}")
A(f"v_lshl_add_u32 v{e}, v{e}, 8, s{s_ld}")
A(f"v_lshl_add_u32 v{e}, v{d}, 14, v{e}")
A(f"v_xor_b32 v{f}, v{c}, v{h}")
A(f"v_lshl_add_u32 v{v_redw}, v{f}, 4, v{e}")
A(f"s_lshl_b32 s{s_t0}, s{s_wf}, 14\ns_lshl_b32 s{s_t1}, s{s_wm}, 11\ns_add_u32 s{s_t0}, s{s_t0}, s{s_t1}")
A(f"v_lshl_add_u32 v{e}, v{a}, 8, s{s_t0}")
A(f"v_lshlrev_b32 v{f}, 1, v{c}")
A(f"v_xor_b32 v{f}, v{f}, v{a}")
A(f"v_lshl_add_u32 v{v_redr}, v{f}, 4, v{e}")
A(f"v_lshlrev_b32 v{e}, 4, v{c}")
A(f"v_lshl_add_u32 v{v_outo}, v{a}, 10, v{e}")
A(f"s_mul_i32 s{s_w2base}, s{sW}, 3584\ns_add_u32 s{s_w2base}, s{s_w2base}, s{s_nt}\ns_lshl_b32 s{s_w2base}, s{s_w2base}, 7")
for j in range(4):
    if args.norot2:
        A(f"s_add_u32 s{s_wb[j]}, s{s_w2base}, {j*32768}"); continue
    A(f"s_add_u32 s{s_t0}, s{s_ml}, {j}\ns_and_b32 s{s_t0}, s{s_t0}, 3\ns_lshl_b32 s{s_t0}, s{s_t0}, 15\ns_add_u32 s{s_wb[j]}, s{s_w2base}, s{s_t0}")
if args.tierrot:
    A(f"s_mul_i32 s{s_t0}, s{s_xcd}, 11\ns_lshr_b32 s{s_t0}, s{s_t0}, 5\ns_mul_i32 s{s_t0}, s{s_t0}, 3\ns_sub_u32 s{s_t0}, s{s_xcd}, s{s_t0}")
    A(f"s_lshl_b32 s{s_t0}, s{s_t0}, 1\ns_lshr_b32 s{s_t0}, 0x124, s{s_t0}")
    for t_ in range(3):
        A(f"s_bfe_u32 s{s_tier[t_]}, s{s_t0}, {(2 << 16) | (2*t_):#x}\ns_lshl_b32 s{s_tier[t_]}, s{s_tier[t_]}, 17")
A(f"s_lshl1_add_u32 s{s_t0}, s{s_mt}, s{s_wm}")
A(f"s_mul_i32 s{s_t0}, s{s_t0}, {2*M32S}")
A(f"s_lshl1_add_u32 s{s_t1}, s{s_ft}, s{s_wf}")
A(f"s_lshl_b32 s{s_actst}, s{s_t1}, 12\ns_add_u32 s{s_actst}, s{s_actst}, s{s_t0}")
A(f"s_lshl_b32 s{s_flagP}, s{s_t1}, 7\ns_add_u32 s{s_flagP}, s{s_flagP}, s{s_t0}\ns_add_u32 s{s_flagP}, s{s_flagP}, {FLAGOFF}")
A(f"s_mul_i32 s{s_t0}, s{s_m64}, {2*M32S}")
A(f"s_mul_i32 s{s_flagC}, s{sW}, 896\ns_add_u32 s{s_flagC}, s{s_flagC}, s{s_t0}\ns_add_u32 s{s_flagC}, s{s_flagC}, {FLAGOFF}")
A(f"s_mul_i32 s{s_actld}, s{sW}, 28672\ns_add_u32 s{s_actld}, s{s_actld}, s{s_t0}")
A(f"s_lshl3_add_u32 s{s_outb}, s{s_m64}, s{sW}\ns_lshl_b32 s{s_outb}, s{s_outb}, 6\ns_add_u32 s{s_outb}, s{s_outb}, s{s_nt}\ns_lshl_b32 s{s_outb}, s{s_outb}, 7")
A(f"s_mov_b32 s{s_cl2e}, 0xbfb8aa3b\ns_mov_b32 s{s_cl2e+1}, s{s_cl2e}")
A(f"s_mov_b32 s{s_half}, 0.5\ns_mov_b32 s{s_half+1}, 0.5")
A(f"s_mov_b32 s{s_spin}, 0")
A(f"s_cmp_eq_u32 s{s_fl}, 7")
A("s_cbranch_scc1 L_spare")
stamp("setup")
A(m0row(1)); A(soffX(1))
for i in range(4): A(dma(vDX[i], sX_, s_soX, i)); vm("c1")
A(m0row(4)); A(soffW())
for i in range(4): A(dma(vDW[i], sWW, s_soW, i)); vm("c1")
A(f"s_lshl_b32 s{s_t1}, s{s_t1}, 7")
for fi in range(2):
    A(f"buffer_load_ushort v{BIAS+4*fi}, v{v_bo}, {srd(sB)}, s{s_t1} offen offset:{64*fi}"); vm("c1")
A(m0row(2)); A(soffX(2))
wait_vm("c0")
stamp("c0_land")
A("s_barrier")
def rd_x(buf, mi, s, st): return f"ds_read_b128 v[{XF+8*buf+4*mi}:{XF+8*buf+4*mi+3}], v{vRX[s]} offset:{16384*st+4096*mi}"
def rd_w(buf, fi, s, a_, st):
    r = WF + 8 * buf + 4 * fi + 2 * a_
    return f"ds_read_b64_tr_b16 v[{r}:{r+1}], v{vRW[fi]} offset:{16384*st+4096*s+1024*a_}"
def reads(buf, s, st): return [rd_x(buf, 0, s, st), rd_w(buf, 0, s, 0, st), rd_w(buf, 0, s, 1, st), rd_w(buf, 1, s, 0, st), rd_w(buf, 1, s, 1, st), rd_x(buf, 1, s, st)]
for r in reads(0, 0, 0): A(r)
A(dma(vDX[0], sX_, s_soX, 0)); vm("c2")
A(dma(vDX[1], sX_, s_soX, 1)); vm("c2")
def mfma1(buf, mi, fi, first=False):
    D = acc(mi, fi); C = "0" if first else f"v[{D}:{D+15}]"
    return f"v_mfma_f32_32x32x16_bf16 v[{D}:{D+15}], v[{WF+8*buf+4*fi}:{WF+8*buf+4*fi+3}], v[{XF+8*buf+4*mi}:{XF+8*buf+4*mi+3}], {C}"
def mfma_bias(mi, fi):
    D = acc(mi, fi)
    return f"v_mfma_f32_32x32x16_bf16 v[{D}:{D+15}], v[{BIAS+4*fi}:{BIAS+4*fi+3}], v[{BIAS+8}:{BIAS+11}], v[{D}:{D+15}]"

order = args.order.split()
assert len(order) == 14 and len(set(order)) == 14
NE = args.ne
rows = [6 + i for i in range(NE)] + [2, 5, 0, 3, 1, 4] + [6 + i for i in range(NE, 4)]
rows += rows[:4]
def gaddr(dst, p, bases, base0, shift):
    nm = order[p]
    if nm[0] == "S": return f"s_add_u32 s{dst}, s{base0}, {((12 + int(nm[1])) * 32768) >> shift}"
    t_, j = "abc".index(nm[0]), int(nm[1])
    if args.tierrot: return f"s_add_u32 s{dst}, s{bases[j]}, s{s_tier[t_]}"
    return f"s_add_u32 s{dst}, s{bases[j]}, {(t_ * 131072) >> shift}"
stream = []
for j in range(2, 8):
    for i in range(4):
        if j == 2 and i < 2: continue
        stream.append(((m0row(j % 3) + "\n" + soffX(j)) if i == 0 else None, dma(vDX[i], sX_, s_soX, i), f"c{j}"))
    for i in range(4):
        stream.append(((m0row(3 + j % 3) + "\n" + soffW()) if i == 0 else None, dma(vDW[i], sWW, s_soW, i), f"c{j}"))
for p in range(NE, 14):
    for i in range(4):
        stream.append(((m0row(rows[p]) + "\n" + gaddr(s_soX, p, s_wb, s_w2base, 0)) if i == 0 else None, dma(vD2[i], sW2, s_soX, i), f"g{p}"))
early = [(p, i) for p in range(NE) for i in range(4)]
esteps = [args.e0 + (k * (args.e1 - args.e0)) // max(1, len(early) - 1) for k in range(len(early))]
assert len(set(esteps)) == len(esteps) and (not esteps or esteps[-1] <= 22)
def pre_next():
    p, i_, tg = stream[0]
    if p: A(p); stream[0] = (None, i_, tg)
def dma_next():
    p, i_, tg = stream.pop(0)
    if p: A(p)
    A(i_); vm(tg)
for ch in range(8):
    st = ch % 3
    for s in range(4):
        buf = s & 1
        first = ch == 0 and s == 0
        last = ch == 7 and s == 3
        nxt = reads(buf ^ 1, (s + 1) & 3, st if s < 3 else (st + 1) % 3)
        A("s_waitcnt lgkmcnt(3)")
        A(mfma1(buf, 0, 0, first))
        if s == 3:
            if ch == 5: A("L_enter:")
            pre_next()
            if ch == args.biasch:
                for mi_, fi_ in ((0, 1), (1, 1), (1, 0), (0, 0)): A(mfma_bias(mi_, fi_))
            if args.itst: A("s_memtime s[4:5]")
            if ch < 7: wait_vm(f"c{ch+1}")
            if args.itst: A("s_memtime s[6:7]")
            A("s_waitcnt lgkmcnt(0)")
            if args.itst: A(f"v_writelane_b32 v60, s4, {ch}\nv_writelane_b32 v61, s6, {ch}\nv_writelane_b32 v63, s16, {ch}")
            A("s_barrier")
            if args.itst: A("s_memtime s[16:17]")
            if not last:
                for r in nxt[:3]: A(r)
            A(mfma1(buf, 0, 1))
            if not last:
                for r in nxt[3:]: A(r)
            dma_next()
        else:
            for r in nxt[:3]: A(r)
            pre_next()
            A("s_waitcnt lgkmcnt(4)")
            A(mfma1(buf, 0, 1, first))
            for r in nxt[3:]: A(r)
            dma_next()
            A("s_waitcnt lgkmcnt(6)")
        ex = ch * 4 + s in esteps
        if ex:
            p, i = early.pop(0)
            A(f"s_mov_b32 s{s_m0s}, m0")
            A(m0row(rows[p]))
        A(mfma1(buf, 1, 1, first))
        if ex:
            if i == 0: A(gaddr(s_so2, p, s_wb, s_w2base, 0))
            A(dma(vD2[i], sW2, s_so2, i)); vm(f"g{p}")
            A(f"s_mov_b32 m0, s{s_m0s}")
        A(mfma1(buf, 1, 0, first))
        dma_next()
assert not early
stamp("p1done")

def w2_reads(p):
    out = []
    r_ = rows[p]
    for i in range(4):
        j = 4 * p + i; ks, a_ = j >> 1, j & 1
        for ni in range(2):
            r = (ks * 2 + ni) * 4 + 2 * a_
            out.append(f"ds_read_b64_tr_b16 a[{r}:{r+1}], v{vR2[r_ >> 2][ni]} offset:{(r_ & 3)*16384+1024*i}")
    return out
def mish_frag(mi, fi, s, tb, ob):
    hb = acc(mi, fi) + 8 * s
    U, N, D = tb, tb + 8, tb + 16
    P = lambda r: f"v[{r}:{r+1}]"
    o = []
    for p in range(4): o.append(f"v_pk_mul_f32 {P(U+2*p)}, {P(hb+2*p)}, s[{s_cl2e}:{s_cl2e+1}]")
    for i in range(8): o.append(f"v_exp_f32 v{U+i}, v{U+i}")
    for p in range(4): o.append(f"v_pk_add_f32 {P(N+2*p)}, {P(U+2*p)}, s[{s_half}:{s_half+1}]")
    for p in range(4): o.append(f"v_pk_fma_f32 {P(D+2*p)}, {P(U+2*p)}, {P(U+2*p)}, {P(N+2*p)}")
    for i in range(8): o.append(f"v_rcp_f32 v{D+i}, v{D+i}")
    for p in range(4): o.append(f"v_pk_mul_f32 {P(N+2*p)}, {P(N+2*p)}, {P(D+2*p)} clamp")
    for p in range(4): o.append(f"v_pk_mul_f32 {P(N+2*p)}, {P(N+2*p)}, {P(hb+2*p)}")
    for p in range(4): o.append(f"v_cvt_pk_bf16_f32 v{ob+p}, v{N+2*p}, v{N+2*p+1}")
    return o
def flag(stage):
    if stage == 1: A(f"s_add_u32 s{s_flagP}, s{s_flagP}, {M32S}")
    if args.fullflag:
        A("s_mov_b64 exec, 0xffffffff")
        A(f"buffer_store_dword v{v_one}, v{v_two}, {srd(sA)}, s{s_flagP} offen sc1")
    else:
        A("s_mov_b64 exec, 1")
        A(f"buffer_store_dword v{v_one}, off, {srd(sA)}, s{s_flagP} sc1")
    A("s_mov_b64 exec, -1")
def arm_load():
    A(f"buffer_load_dword v{v_arm}, v{v_armoff}, {srd(sD)}, 0 offen sc1")
def poll_issue():
    if args.spoll:
        for i in range(7): A(f"s_buffer_load_dword s{s_pl[i]}, {srd(sL)}, s{s_flagC} offset:{128*i} glc")
    else: A(f"buffer_load_dword v{v_poll}, v{v_flagoff}, {srd(sL)}, s{s_flagC} offen sc1")
def vmp(tag):
    if not args.spoll: vm(tag)
def wait_p(tag):
    if not args.spoll: wait_vm(tag)
cold = []
def spin_check(lbl, vreg, n, reissue):
    A(f"{lbl}:")
    if args.spoll and n == 7:
        A("s_waitcnt lgkmcnt(0)")
        for i in range(1, n): A(f"s_and_b32 s{s_pl[0]}, s{s_pl[0]}, s{s_pl[i]}")
    else:
        A(f"v_cmp_eq_u32 vcc, 1, v{vreg}")
        A("s_nop 0")
        A("s_cmp_eq_u64 vcc, -1")
    A(f"s_cbranch_scc0 {lbl}_slow")
    A(f"{lbl}_ok:")
    cold.append((lbl, reissue))

A(f"s_add_u32 s{s_so}, s{s_actst}, {M32S}")
arm_load(); vm("arm")
A("s_nop 6")
OUTB = MT + 24
avail = len(stream) - 16
nm = min(args.nmish, avail)
slotset = set(int((k + 0.5) * 320 / nm) for k in range(nm)) if nm else set()
def st_act(mi, fr):
    ob = OUTB + 16 * mi + 4 * fr
    A(f"buffer_store_dwordx4 v[{ob}:{ob+3}], v{v_l16}, {srd(sA)}, s{s_actst if mi == 0 else s_so} offen offset:{1024*fr} sc1"); vm(f"st{mi}")
armed = [False]
def chk_arm():
    if not armed[0]:
        spin_check("L_arm", v_arm, 2, arm_load); armed[0] = True
def pubA():
    wait_vm("st0")
    chk_arm()
    flag(0); vm("flagA")
    stamp("flagA")
for mi in range(2):
    for fr in range(4):
        fi, s = fr >> 1, fr & 1
        ob = OUTB + 16 * mi + 4 * fr
        if mi == 1 and fr == args.flagApos: pubA()
        body = mish_frag(mi, fi, s, MT, ob)
        for n, ins in enumerate(body):
            A(ins)
            if (mi * 4 + fr) * 40 + n in slotset: dma_next()
        st_act(mi, fr)
    stamp(f"mish{mi}")
if args.flagApos == 4: pubA()
wait_vm(f"g{max(3, NE)}")
rds = w2_reads(0) + w2_reads(1) + w2_reads(2) + w2_reads(3)
recycled = [False]
def dma_next2():
    if len(stream) == 16 and not recycled[0]:
        while rds: A(rds.pop(0))
        A("s_waitcnt lgkmcnt(0)"); recycled[0] = True
    dma_next()
    for _ in range(4):
        if rds: A(rds.pop(0))
for k in range(args.nb):
    if len(stream) > args.npoll: dma_next2()
wait_vm("st1")
chk_arm()
flag(1); vm("flagB")
stamp("flagB")
landed = [p for p in range(4, 14) if max(i for i, t in enumerate(vmq) if t == "st1") > max([i for i, t in enumerate(vmq) if t == f"g{p}"] + [10**9 if vmq.count(f"g{p}") < 4 else -1])]
more = []
for p in landed: more += w2_reads(p)
while len(stream) > args.npoll:
    dma_next2()
    for _ in range(4):
        if more and not rds: A(more.pop(0))
if args.flagApos > 4: A(f"s_add_u32 s{s_flagC}, s{s_flagC}, {M32S}")
poll_issue(); vmp("pollA")
polled = [p for p in range(4, 14) if vmq.count(f"g{p}") == 4 and p not in landed]
while stream:
    dma_next2()
    for _ in range(4):
        if more and not rds: A(more.pop(0))
for j in range(4):
    A(f"s_sub_u32 s{s_wb[j]}, s{s_wb[j]}, s{s_w2base}\ns_lshr_b32 s{s_wb[j]}, s{s_wb[j]}, 4\ns_add_u32 s{s_wb[j]}, s{s_wb[j]}, s{s_actld}")
if args.tierrot:
    for t_ in range(3): A(f"s_lshr_b32 s{s_tier[t_]}, s{s_tier[t_]}, 4")
while more: A(more.pop(0))
stamp("w2iss")
wait_p("pollA")
spin_check("L_pollA", v_poll, 7, poll_issue)
stamp("pollA")
DEP = args.depth
NF = 56
def af(i): return AF + 4 * (i % NRING)
def act_load(i):
    mi, ks = divmod(i, 28)
    if i == 28:
        for r in s_wb + [s_actld]: A(f"s_add_u32 s{r}, s{r}, {M32S}")
    if ks % 2 == 0: A(gaddr(s_so, ks >> 1, s_wb, s_actld, 4))
    A(f"buffer_load_dwordx4 v[{af(i)}:{af(i)+3}], v{v_l16}, {srd(sL)}, s{s_so} offen offset:{(ks%2)*1024} sc1"); vm(f"a{i}")
assert DEP < NRING
late = []
for p in polled: late += w2_reads(p)
issued = 0
for i in range(DEP):
    act_load(i); issued += 1
    if i == 0 and args.spoll and polled: wait_vm(f"g{polled[-1]}")
    for _ in range(6):
        if late: A(late.pop(0))
while late: A(late.pop(0))
late = []
for p in range(4, 14):
    if p not in landed and p not in polled: late += w2_reads(p)
assert len(late) <= 48
late2 = len(late) > 32
PB = 28 - DEP - 6
redw = [(ni, g) for ni in range(2) for g in range(4)]
for i in range(NF):
    mi, ks = divmod(i, 28)
    wait_vm(f"a{i}")
    if i == 0: stamp("a0")
    if i == 8 or (i == 14 and late2): A("s_waitcnt lgkmcnt(0)")
    for ni in range(2):
        D = acc(mi, ni); wr = (ks * 2 + ni) * 4
        C = "0" if ks == 0 else f"v[{D}:{D+15}]"
        A(f"v_mfma_f32_32x32x16_bf16 v[{D}:{D+15}], a[{wr}:{wr+3}], v[{af(i)}:{af(i)+3}], {C}")
        for _ in range(2):
            if late: A(late.pop(0))
    if i == PB and args.flagApos <= 4:
        A(f"s_add_u32 s{s_flagC}, s{s_flagC}, {M32S}")
        poll_issue(); vmp("pollB")
    if issued < NF:
        if issued == 28 and args.flagApos <= 4:
            wait_p("pollB")
            spin_check("L_pollB", v_poll, 7, poll_issue)
        act_load(issued); issued += 1
    if mi == 1 and 8 <= ks < 16:
        ni, g = redw[ks - 8]
        if ks == 8:
            for gg in range(1, 4): A(f"v_xor_b32 v{vT[gg]}, {32*gg}, v{v_redw}")
        va = v_redw if g == 0 else vT[g]
        r = acc(0, ni) + 4 * g
        A(f"ds_write_b128 v{va}, v[{r}:{r+3}] offset:{128*ni}")
    if i == 50:
        A(f"s_mov_b32 s{sB}, s12\ns_mov_b32 s{sB+1}, s13\ns_mov_b32 s{sB+2}, 2097152")
        A(f"v_xor_b32 v{vT[4]}, 16, v{v_redr}")
stamp("p2done")
A("s_nop 10")
for ni, g in redw:
    va = v_redw if g == 0 else vT[g]
    r = acc(1, ni) + 4 * g
    A(f"ds_write_b128 v{va}, v[{r}:{r+3}] offset:{32768+128*ni}")
A("s_waitcnt lgkmcnt(0)")
A("s_barrier")
R = 128
for mi in range(2):
    for src in range(4):
        for e_ in range(2):
            va = [v_redr, vT[4]][e_]
            r = R + 32 * mi + 8 * src + 4 * e_
            A(f"ds_read_b128 v[{r}:{r+3}], v{va} offset:{src*4096 + 32768*mi}")
P = lambda r: f"v[{r}:{r+1}]"
for mi in range(2):
    b_ = R + 32 * mi
    A(f"s_waitcnt lgkmcnt({12 - 8*mi})")
    for p in range(4): A(f"v_pk_add_f32 {P(b_+2*p)}, {P(b_+2*p)}, {P(b_+8+2*p)}")
    A(f"s_waitcnt lgkmcnt({8 - 8*mi})")
    for p in range(4): A(f"v_pk_add_f32 {P(b_+16+2*p)}, {P(b_+16+2*p)}, {P(b_+24+2*p)}")
    for p in range(4): A(f"v_pk_add_f32 {P(b_+2*p)}, {P(b_+2*p)}, {P(b_+16+2*p)}")
    for p in range(4): A(f"v_cvt_pk_bf16_f32 v{b_+8+p}, v{b_+2*p}, v{b_+2*p+1}")
    if mi == 1: A(f"s_add_u32 s{s_outb}, s{s_outb}, 32768")
    A(f"buffer_store_dwordx4 v[{b_+8}:{b_+11}], v{v_outo}, {srd(sB)}, s{s_outb} offen {args.outsc}")
if args.stamps:
    A("s_waitcnt vmcnt(0)")
    stamp("end")
    A("s_memrealtime s[12:13]")
    A("s_waitcnt lgkmcnt(0)")
    n = len(stamp_names)
    A("v_mov_b32 v64, s100\nv_mov_b32 v65, s12")
    for i in range(n): A(f"v_mov_b32 v{66+i}, s{stamp_regs[i]}")
    A(f"v_mov_b32 v{66+n}, s{s_spin}")
    A(f"s_mov_b32 s{sL+2}, 0x10000000")
    A(f"s_lshl_b32 s{s_t0}, s2, 2\ns_add_u32 s{s_t0}, s{s_t0}, s{sW}\ns_lshl_b32 s{s_t0}, s{s_t0}, 7\ns_add_u32 s{s_t0}, s{s_t0}, {STAMP_OFF}")
    if args.wsoff: A(f"s_sub_u32 s{sL}, s{sL}, {args.wsoff << 20}\ns_subb_u32 s{sL+1}, s{sL+1}, 0")
    if args.itst:
        A(f"v_lshlrev_b32 v59, 2, v{v_lane}")
        A("s_mov_b64 exec, 255")
        A(f"s_add_u32 s{s_t1}, s{s_t0}, {1<<20}")
        for q, r in enumerate((60, 61, 63)): A(f"buffer_store_dword v{r}, v59, {srd(sL)}, s{s_t1} offen offset:{32*q}")
    A("s_mov_b64 exec, 1")
    for q in range(5):
        A(f"buffer_store_dwordx4 v[{64+4*q}:{67+4*q}], off, {srd(sL)}, s{s_t0} offset:{16*q}")
if args.pad:
    A("s_waitcnt vmcnt(0)")
    stamp("end")
    A("s_waitcnt lgkmcnt(0)")
    A("s_sub_u32 s84, s82, s80")
    A(f"s_cmp_eq_u32 s{s_fl}, 7")
    A("s_cselect_b32 s84, 0, s84")
    if args.padwg >= 0:
        A(f"s_cmp_eq_u32 s2, {args.padwg}")
        A("s_cselect_b32 s84, s84, 0")
    A("s_min_u32 s84, s84, 10000")
    A("s_add_u32 s84, s84, 4000")
    A("L_pad:")
    A("s_memrealtime s[86:87]")
    A("s_waitcnt lgkmcnt(0)")
    A("s_sub_u32 s85, s86, s80")
    A("s_cmp_lt_u32 s85, s84")
    A("s_cbranch_scc1 L_pad")
A("L_end:")
A("s_endpgm")
for lbl, reissue in cold:
    A(f"{lbl}_slow:")
    A(f"s_add_u32 s{s_spin}, s{s_spin}, 1")
    A(f"s_cmp_ge_u32 s{s_spin}, 200000")
    A(f"s_cbranch_scc1 {lbl}_ok")
    if args.sleep: A(f"s_sleep {args.sleep}")
    reissue()
    if not args.spoll or lbl == "L_arm": A("s_waitcnt vmcnt(0)")
    A(f"s_branch {lbl}")
A("L_spare:")
A(f"s_cmp_lg_u32 s{sW}, 0")
A("s_cbranch_scc1 L_spare2")
A(f"v_and_b32 v{vT[12]}, 15, v{v_lane}")
A(f"v_min_u32 v{vT[12]}, 13, v{vT[12]}")
A(f"v_lshlrev_b32 v{vT[12]}, 7, v{vT[12]}")
A(f"s_mov_b32 s{s_t0}, {M32S}")
A(f"v_mul_lo_u32 v{vT[13]}, v{b}, s{s_t0}")
A(f"v_add_u32 v{vT[12]}, v{vT[12]}, v{vT[13]}")
A(f"s_mul_i32 s{s_t0}, s{s_mt}, {4*M32S}\ns_mul_i32 s{s_t1}, s{s_fg}, 1792\ns_add_u32 s{s_t0}, s{s_t0}, s{s_t1}\ns_add_u32 s{s_t0}, s{s_t0}, {FLAGOFF}")
A(f"v_mov_b32 v{vT[14]}, 0")
A(f"buffer_store_dword v{vT[14]}, v{vT[12]}, {srd(sA)}, s{s_t0} offen sc1")
A("L_spare2:")
A(f"v_lshlrev_b32 v{vT[18]}, 7, v{v_lane}")
A(f"s_mul_i32 s{s_t1}, s{s_ml}, 56\ns_add_u32 s{s_t1}, s{s_t1}, s{sW}\ns_lshl_b32 s{s_t1}, s{s_t1}, 13")
A(f"s_mul_i32 s{s_t0}, s{s_xcd}, 7\ns_lshr_b32 s{s_t0}, s{s_t0}, 2\ns_lshl_b32 s{s_t0}, s{s_t0}, 15\ns_add_u32 s{s_t0}, s{s_t0}, s{s_t1}")
for j in range(args.pf0):
    A(f"buffer_load_dword v{vT[24]}, v{vT[18]}, {srd(sW2)}, s{s_t0} offen")
    A(f"s_add_u32 s{s_t0}, s{s_t0}, 32768")
A(f"s_cmp_lg_u32 s{sW}, 0")
A("s_cbranch_scc1 L_spare3")
A(f"s_waitcnt vmcnt({args.pf0})")
A("s_mov_b64 exec, 1")
A(f"buffer_store_dword v{v_one}, v{v_armoff}, {srd(sD)}, 0 offen sc1")
A("s_mov_b64 exec, -1")
A("L_spare3:")
A(f"s_mov_b32 s{sA+2}, 0")
if args.pfs:
    for j in (12, 13):
        A(f"s_add_u32 s{s_t0}, s{s_t1}, {32768*j}")
        A(f"buffer_load_dword v{vT[24]}, v{vT[18]}, {srd(sW2)}, s{s_t0} offen")
for p in range(NE):
    A(m0row(rows[p])); A(gaddr(s_so2, p, s_wb, s_w2base, 0))
    for i in range(4): A(dma(vD2[i], sW2, s_so2, i))
A("s_branch L_enter")
A("L_codeend:")
tail = f""".section .rodata,"a"
.p2align 6
.amdhsa_kernel {KN}
  .amdhsa_next_free_vgpr 512
  .amdhsa_next_free_sgpr 102
  .amdhsa_accum_offset 256
  .amdhsa_group_segment_fixed_size 0
  .amdhsa_kernarg_size 56
  .amdhsa_user_sgpr_count 2
  .amdhsa_user_sgpr_kernarg_segment_ptr 1
  .amdhsa_system_sgpr_workgroup_id_x 1
.end_amdhsa_kernel"""
print(hdr)
print("\n".join(L))
print(tail)
if args.stamps:
    print("; STAMPS: " + " ".join(stamp_names))
```

```python
import sys, argparse
ap = argparse.ArgumentParser()
ap.add_argument("--stamps", type=int, default=0)
ap.add_argument("--rot", type=int, default=5)
ap.add_argument("--depth", type=int, default=10)
ap.add_argument("--spf", default="x1 p0 p1 x2 S0 S1")
ap.add_argument("--outsc", default="nt")
ap.add_argument("--ne", type=int, default=0)
ap.add_argument("--e0", type=int, default=12)
ap.add_argument("--e1", type=int, default=24)
ap.add_argument("--order", default="a0 S0 S1 b0 a1 a2 a3 c0 b1 b2 b3 c1 c2 c3")
ap.add_argument("--xbper", type=int, default=1)
ap.add_argument("--w2gap", type=int, default=3)
ap.add_argument("--m0step", type=int, default=2)
ap.add_argument("--m1step", type=int, default=31)
ap.add_argument("--pkA", type=int, default=0)
ap.add_argument("--nmish", type=int, default=10)
ap.add_argument("--ndefer", type=int, default=16)
ap.add_argument("--dspan", type=int, default=14)
ap.add_argument("--burstA", type=int, default=0)
ap.add_argument("--burstB", type=int, default=0)
ap.add_argument("--ntrot", type=int, default=4)
ap.add_argument("--flrot", type=int, default=0)
ap.add_argument("--armpos", type=int, default=1)
ap.add_argument("--rdmish", type=int, default=4)
ap.add_argument("--flagApos", type=int, default=3)
ap.add_argument("--nb", type=int, default=8)
ap.add_argument("--npoll", type=int, default=8)
ap.add_argument("--redA", type=int, default=1)
ap.add_argument("--sleep", type=int, default=0)
ap.add_argument("--pad", default="")
ap.add_argument("--padwg", type=int, default=-1)
ap.add_argument("--name", default="standalone__dense_activation_mish__prompt")
args = ap.parse_args()
KN = args.name + "_kernel"

M32S = 118784
FLAGOFF = 114688
WS_SIZE = 64 * M32S
STAMP_OFF = 16 << 20

L = []
def A(s):
    for ln in s.split("\n"):
        L.append("    " + ln if not ln.endswith(":") else ln)

sW = 3
sX_, sWW, sB, sA, sL, sD, sW2 = 20, 24, 28, 32, 36, 40, 8
def srd(b): return f"s[{b}:{b+3}]"
s_mt, s_ft, s_fg, s_fl, s_m64, s_ml, s_wm, s_wf = 44, 45, 46, 47, 48, 49, 50, 51
s_nt = 19
s_ord, s_xbase, s_wbase, s_soX, s_soW, s_ld, s_so2, s_m0s = 53, 54, 55, 56, 57, 58, 59, 60
s_t2, s_t0, s_t1 = 61, 62, 63
s_wb = [64, 65, 66, 52]
s_actst, s_flagP, s_flagC, s_actld, s_spin, s_outb, s_xcd = 67, 68, 69, 70, 71, 72, 73
s_cl2e = 74; s_half = 76; s_so = 78; s_w2base = 79
s_ldx = 18
s_ab = [48, 49, 50, 51]
s_pl = [53, 59, 60, 61, 44, 45, 46]
v_lane = 1
vDX = [2, 3]; vDW = [6, 7, 8, 9]; vD2 = [10, 11, 12, 13]
vRX = [14, 15, 16, 17]; vRW = [18, 19]; vR2 = [[20, 21], [22, 23], [35, 36]]
v_l16 = 24; v_armoff = 26; v_arm = 27; v_one = 29; v_l4 = 30
v_bo = 31; v_redw = 32; v_redr = 33; v_outo = 34
vT = list(range(38, 64))
ACC = 64
def acc(mi, j): return ACC + 32 * mi + 16 * j
BIAS = 128; XF = 160; MT = 192
AF = 128; NRING = 16
XA = 49152; XB = 81920

stamp_names = []
stamp_regs = list(range(80, 100, 2)) + [4, 6, 16, 54, 56, 14]
def stamp(name):
    if args.pad:
        if name == "start": A("s_memrealtime s[80:81]")
        if name == args.pad: A("s_memrealtime s[82:83]")
        return
    if not args.stamps: return
    i = len(stamp_names); stamp_names.append(name)
    r = stamp_regs[i]
    A(f"s_memtime s[{r}:{r+1}]")

vmq = []
def vm(tag): vmq.append(tag)
def wait_vm(tag):
    idx = max(i for i, t in enumerate(vmq) if t == tag)
    n = len(vmq) - 1 - idx
    assert n <= 63, n
    A(f"s_waitcnt vmcnt({n})")
lgq = []; lg_done = [0]
def lg(ins, tag=None): A(ins); lgq.append(tag)
def wait_lg(tag):
    idx = max(i for i, t in enumerate(lgq) if t == tag)
    if idx < lg_done[0]: return
    n = len(lgq) - 1 - idx
    A(f"s_waitcnt lgkmcnt({min(n, 12)})"); lg_done[0] = max(lg_done[0], len(lgq) - min(n, 12))
def wait_lg0():
    A("s_waitcnt lgkmcnt(0)"); lg_done[0] = len(lgq)

hdr = f"""; fused dense -> mish -> dense, one launch, 256 persistent workgroups
; @launch grid=(256,1,1) block=(256,1,1) lds=163840
.amdgcn_target "amdgcn-amd-amdhsa--gfx950"
.text
.globl {KN}
.p2align 8
.type {KN},@function
{KN}:"""

A(f"s_load_dwordx2 s[{sX_}:{sX_+1}], s[0:1], 0")
A(f"s_load_dwordx2 s[{sWW}:{sWW+1}], s[0:1], 8")
A(f"s_load_dwordx2 s[{sB}:{sB+1}], s[0:1], 16")
A(f"s_load_dwordx2 s[{sW2}:{sW2+1}], s[0:1], 24")
A("s_load_dwordx2 s[12:13], s[0:1], 32")
A(f"s_load_dwordx2 s[{sD}:{sD+1}], s[0:1], 40")
A(f"s_load_dwordx2 s[{sA}:{sA+1}], s[0:1], 48")
A(f"s_load_dwordx2 s[{sL}:{sL+1}], s[0:1], 48")
A("s_cmp_ge_u32 s2, 256")
A("s_cbranch_scc1 L_end")
if args.stamps: A("s_memrealtime s[100:101]")
stamp("start")
A(f"v_lshrrev_b32 v{vT[0]}, 6, v0")
A(f"v_and_b32 v{v_lane}, 63, v0")
A(f"v_readfirstlane_b32 s{sW}, v{vT[0]}")
A(f"s_and_b32 s{s_fg}, s2, 1")
A(f"s_bfe_u32 s{s_fl}, s2, 0x30003")
A(f"s_lshr_b32 s{s_ml}, s2, 6")
if args.flrot: A(f"s_add_u32 s{s_fl}, s{s_fl}, s{s_ml}\ns_and_b32 s{s_fl}, s{s_fl}, 7")
A(f"s_and_b32 s{s_mt}, s2, 6")
A(f"s_lshl1_add_u32 s{s_mt}, s{s_mt}, s{s_ml}")
A(f"s_mov_b32 s{sX_+2}, 2097152\ns_mov_b32 s{sX_+3}, 0x20000")
A(f"s_and_b32 s{s_t0}, s{sW}, 2\ns_add_u32 s{s_t0}, s{s_t0}, s{sW}\ns_lshl3_add_u32 s{s_xbase}, s{s_mt}, s{s_t0}\ns_lshl_b32 s{s_xbase}, s{s_xbase}, 14")
a, b, c, d = vT[0], vT[1], vT[2], vT[3]
A(f"v_lshrrev_b32 v{a}, 3, v{v_lane}")
A(f"v_lshrrev_b32 v{b}, 4, v{v_lane}")
A(f"v_and_b32 v{c}, 7, v{v_lane}")
A(f"s_lshl_b32 s{s_ld}, s{sW}, 12")
A(f"s_cmp_eq_u32 s{s_fl}, 7")
A("s_cbranch_scc1 L_sp0")
A(f"s_mul_i32 s{s_ft}, s{s_fg}, 7")
A(f"s_add_u32 s{s_ft}, s{s_ft}, s{s_fl}")
def rotw(): A(f"s_mov_b32 s4, 0x76543210\ns_mov_b32 s5, s4\ns_lshr_b64 s[4:5], s[4:5], s{s_t0}\ns_mov_b32 s{s_ord}, s4")
if args.rot == 1:
    A(f"s_lshl1_add_u32 s{s_t0}, s{s_ml}, s{s_fl}\ns_and_b32 s{s_t0}, s{s_t0}, 7\ns_lshl_b32 s{s_t0}, s{s_t0}, 2"); rotw()
elif args.rot == 4:
    A(f"s_lshl1_add_u32 s{s_t0}, s{s_ml}, s{s_fl}\ns_bfe_u32 s{s_t1}, s2, 0x10002\ns_add_u32 s{s_t0}, s{s_t0}, s{s_t1}")
    A(f"s_and_b32 s{s_t0}, s{s_t0}, 3\ns_lshl_b32 s{s_t0}, s{s_t0}, 2")
    A(f"s_lshr_b32 s{s_t0}, 0x32103210, s{s_t0}\ns_pack_ll_b32_b16 s{s_ord}, s{s_t0}, 0x3210")
    A(f"s_lshr_b32 s{s_t1}, s2, 1\ns_xor_b32 s{s_t1}, s{s_t1}, s2\ns_and_b32 s{s_t1}, s{s_t1}, 1\ns_lshl_b32 s{s_t1}, s{s_t1}, 4")
    A(f"s_lshr_b32 s{s_t1}, 0x44440000, s{s_t1}\ns_xor_b32 s{s_ord}, s{s_ord}, s{s_t1}")
elif args.rot == 5:
    A(f"s_add_u32 s{s_t0}, s{s_ml}, s{s_fl}\ns_and_b32 s{s_t0}, s{s_t0}, 1")
    A(f"s_lshr_b32 s{s_t1}, s2, 1\ns_xor_b32 s{s_t1}, s{s_t1}, s2\ns_and_b32 s{s_t1}, s{s_t1}, 1")
    A(f"s_lshl1_add_u32 s{s_t0}, s{s_t0}, s{s_t1}\ns_lshl_b32 s{s_t0}, s{s_t0}, 3"); rotw()
elif args.rot == 6:
    A(f"s_add_u32 s{s_t0}, s{s_ml}, s{s_fl}\ns_and_b32 s{s_t0}, s{s_t0}, 3\ns_lshl_b32 s{s_t0}, s{s_t0}, 3"); rotw()
else:
    A(f"s_mov_b32 s{s_ord}, 0x76543210")
A(f"s_mul_i32 s{s_wbase}, s{sW}, 224\ns_add_u32 s{s_wbase}, s{s_wbase}, s{s_ft}\ns_lshl_b32 s{s_wbase}, s{s_wbase}, 8")
A(f"v_xor_b32 v{d}, v{c}, v{b}")
A(f"v_lshlrev_b32 v{d}, 4, v{d}")
A(f"v_lshl_add_u32 v{vDX[0]}, v{a}, 10, v{d}")
A(f"v_xor_b32 v{d}, 64, v{vDX[0]}")
A(f"v_add_u32 v{vDX[1]}, 7168, v{d}")
A(f"v_and_b32 v{d}, 15, v{v_lane}")
A(f"v_lshlrev_b32 v{vT[4]}, 2, v{b}")
A(f"v_xor_b32 v{d}, v{d}, v{vT[4]}")
A(f"v_mul_u32_u24 v{vT[4]}, 224, v{b}")
A(f"v_add_lshl_u32 v{vDW[0]}, v{vT[4]}, v{d}, 4")
for i in range(1, 4):
    A(f"v_add_u32 v{vDW[i]}, {i*(4*3584-1024)}, v{vDW[0]}")
A(f"s_mov_b32 s{sWW+2}, 1835008\ns_mov_b32 s{sWW+3}, s{sX_+3}")
A(f"s_lshr_b32 s{s_ldx}, s{s_ld}, 1")
def soffX(j): return f"s_bfe_u32 s{s_t2}, s{s_ord}, {(3 << 16) | (4*j):#x}\ns_lshl_b32 s{s_soX}, s{s_t2}, 7\ns_add_u32 s{s_soX}, s{s_soX}, s{s_xbase}"
def soffW(): return f"s_mul_i32 s{s_soW}, s{s_t2}, 229376\ns_add_u32 s{s_soW}, s{s_soW}, s{s_wbase}"
def dma(vo, srdb, so, i):
    return f"buffer_load_dwordx4 v{vo}, {srd(srdb)}, s{so} offen offset:{1024*i} lds"
def m0row(r): return f"s_add_u32 m0, s{s_ld}, {r * 16384}" if r else f"s_mov_b32 m0, s{s_ld}"
def m0x(off): return f"s_add_u32 m0, s{s_ldx}, {off}"
A(soffX(0)); A(soffW())
A(m0x(XA))
A("s_waitcnt lgkmcnt(0)")
stamp("karg")
for i in range(2): A(dma(vDX[i], sX_, s_soX, i)); vm("c0")
A(m0row(0))
A(soffX(1))
for i in range(4): A(dma(vDW[i], sWW, s_soW, i)); vm("c0")
A(m0x(XA + 8192))
A(soffW())
for i in range(2): A(dma(vDX[i], sX_, s_soX, i)); vm("c1")
A("s_branch L_setup")
A("L_sp0:")
A("s_getpc_b64 s[4:5]")
A("L_pcref:")
A(f"v_lshlrev_b32 v{vT[10]}, 6, v0")
A(f"v_min_u32 v{vT[10]}, L_codeend-L_pcref-4, v{vT[10]}")
A(f"v_mov_b32 v{vT[11]}, s5")
A(f"v_add_co_u32 v{vT[10]}, vcc, s4, v{vT[10]}")
A(f"v_lshlrev_b32 v{vT[18]}, 7, v{v_lane}")
A(f"s_lshl_b32 s{s_t0}, s{s_fg}, 13")
A(f"v_addc_co_u32 v{vT[11]}, vcc, 0, v{vT[11]}, vcc")
assert vT[10] % 2 == 0
A(f"global_load_dword v{vT[24]}, v[{vT[10]}:{vT[11]}], off")
A(f"s_add_u32 s{s_xbase}, s{s_xbase}, 32768")
A(f"s_add_u32 s{s_t0}, s{s_t0}, s{s_xbase}")
A(f"s_mov_b32 s{s_ft}, 0\ns_mov_b32 s{s_ord}, 0\ns_mov_b32 s{s_ldx}, 0")
A(f"v_mov_b32 v{vDX[0]}, 0x7fff0000\nv_mov_b32 v{vDX[1]}, v{vDX[0]}")
A("s_waitcnt lgkmcnt(0)")
spf = args.spf.split()
if spf and spf[0] == "x1":
    A(f"buffer_load_dword v{vT[24]}, v{vT[18]}, {srd(sX_)}, s{s_t0} offen"); spf.pop(0)
A("L_setup:")
A(f"s_mov_b32 s{sB+2}, 3584\ns_mov_b32 s{sB+3}, s{sX_+3}")
A(f"s_mov_b32 s{sW2+2}, 1835008\ns_mov_b32 s{sW2+3}, s{sX_+3}")
A(f"s_mov_b32 s{sA+2}, {WS_SIZE}\ns_mov_b32 s{sA+3}, s{sX_+3}")
A(f"s_mov_b32 s{sL+2}, s{sA+2}\ns_mov_b32 s{sL+3}, s{sX_+3}")
A(f"s_movk_i32 s{sD+2}, 256\ns_mov_b32 s{sD+3}, s{sX_+3}")
A(f"s_and_b32 s{s_xcd}, s2, 7")
A(f"s_add_u32 s{s_nt}, s{s_fl}, {args.ntrot}\ns_and_b32 s{s_nt}, s{s_nt}, 7")
A(f"s_lshl2_add_u32 s{s_m64}, s{s_xcd}, s{s_ml}")
A(f"s_and_b32 s{s_wm}, s{sW}, 1")
A(f"s_lshr_b32 s{s_wf}, s{sW}, 1")
h = vT[5]; t = vT[6]; tq = vT[7]; e = vT[8]; f = vT[9]
A(f"v_lshrrev_b32 v{h}, 5, v{v_lane}")
A(f"v_and_b32 v{d}, 1, v{b}")
A(f"v_lshlrev_b32 v{e}, 2, v{d}")
A(f"v_xor_b32 v{e}, v{c}, v{e}")
A(f"v_lshlrev_b32 v{e}, 4, v{e}")
A(f"v_lshl_add_u32 v{vD2[0]}, v{a}, 10, v{e}")
for i in range(1, 4):
    A(f"v_add_u32 v{vD2[i]}, {i*7168}, v{vD2[0]}")
A(f"v_and_b32 v{e}, 31, v{v_lane}")
A(f"s_lshl_b32 s{s_t0}, s{s_wm}, 12\ns_add_u32 s{s_t0}, s{s_t0}, {XA}")
A(f"v_lshl_add_u32 v{e}, v{e}, 7, s{s_t0}")
A(f"v_bfe_u32 v{f}, v{v_lane}, 1, 3")
A(f"v_xor_b32 v{f}, v{f}, v{h}")
A(f"v_lshl_add_u32 v{vRX[0]}, v{f}, 4, v{e}")
for s in range(1, 4):
    A(f"v_xor_b32 v{vRX[s]}, {32*s}, v{vRX[0]}")
A(f"v_and_b32 v{e}, 3, v{v_lane}")
A(f"v_lshlrev_b32 v{e}, 3, v{e}")
A(f"v_lshl_add_u32 v{e}, v{d}, 5, v{e}")
A(f"v_bfe_u32 v{tq}, v{v_lane}, 2, 2")
A(f"v_lshl_add_u32 v{f}, v{h}, 3, v{tq}")
A(f"v_lshl_add_u32 v{f}, v{f}, 8, v{e}")
A(f"s_and_b32 s{s_t0}, s{sW}, 2")
A(f"v_xor_b32 v{t}, s{s_t0}, v{tq}")
A(f"v_lshl_add_u32 v{vRW[0]}, v{t}, 6, v{f}")
A(f"v_xor_b32 v{vRW[1]}, 64, v{vRW[0]}")
A(f"v_lshl_add_u32 v{f}, v{h}, 2, v{tq}")
A(f"v_lshl_add_u32 v{f}, v{f}, 7, v{e}")
A(f"v_bfe_u32 v{t}, v{v_lane}, 3, 1")
A(f"v_lshl_add_u32 v{f}, v{t}, 6, v{f}")
A(f"v_add_u32 v{vR2[0][0]}, s{s_ld}, v{f}")
A(f"v_xor_b32 v{vR2[0][1]}, 64, v{vR2[0][0]}")
for q in (1, 2):
    for ni in range(2): A(f"v_add_u32 v{vR2[q][ni]}, {65536*q}, v{vR2[0][ni]}")
A(f"v_lshlrev_b32 v{v_l16}, 4, v{v_lane}")
A(f"v_lshlrev_b32 v{v_bo}, 1, v{v_lane}")
A(f"v_lshl_add_u32 v{v_bo}, v{h}, 16, v{v_bo}")
for i in (1, 2, 3, 5, 6, 7, 9, 10, 11): A(f"v_mov_b32 v{BIAS+i}, 0")
A(f"v_xor_b32 v{BIAS+8}, 1, v{h}")
A(f"v_mul_u32_u24 v{BIAS+8}, 0x3f80, v{BIAS+8}")
A(f"v_mov_b32 v{v_one}, 1")
A(f"v_lshlrev_b32 v{v_l4}, 2, v{v_lane}")
A(f"s_lshl1_add_u32 s{s_t0}, s{s_mt}, s{s_fg}\ns_lshl_b32 s{s_t0}, s{s_t0}, 2")
A(f"s_and_b32 s{s_t1}, s{s_m64}, 30\ns_add_u32 s{s_t1}, s{s_t1}, s{s_wf}\ns_lshl_b32 s{s_t1}, s{s_t1}, 2")
A(f"s_sub_u32 s{s_t1}, s{s_t1}, s{s_t0}")
A(f"v_mul_lo_u32 v{v_armoff}, v{h}, s{s_t1}")
A(f"v_add_u32 v{v_armoff}, s{s_t0}, v{v_armoff}")
A(f"v_and_b32 v{e}, 15, v{v_lane}")
A(f"v_lshl_add_u32 v{e}, v{e}, 8, s{s_ld}")
A(f"v_lshl_add_u32 v{e}, v{d}, 14, v{e}")
A(f"v_xor_b32 v{f}, v{c}, v{h}")
A(f"v_lshl_add_u32 v{v_redw}, v{f}, 4, v{e}")
A(f"s_lshl_b32 s{s_t0}, s{s_wf}, 14\ns_lshl_b32 s{s_t1}, s{s_wm}, 11\ns_add_u32 s{s_t0}, s{s_t0}, s{s_t1}")
A(f"v_lshl_add_u32 v{e}, v{a}, 8, s{s_t0}")
A(f"v_lshlrev_b32 v{f}, 1, v{c}")
A(f"v_xor_b32 v{f}, v{f}, v{a}")
A(f"v_lshl_add_u32 v{v_redr}, v{f}, 4, v{e}")
A(f"v_lshlrev_b32 v{e}, 4, v{c}")
A(f"v_lshl_add_u32 v{v_outo}, v{a}, 10, v{e}")
A(f"s_mul_i32 s{s_w2base}, s{sW}, 3584\ns_add_u32 s{s_w2base}, s{s_w2base}, s{s_nt}\ns_lshl_b32 s{s_w2base}, s{s_w2base}, 7")
for j in range(4):
    A(f"s_add_u32 s{s_t0}, s{s_ml}, {j}\ns_and_b32 s{s_t0}, s{s_t0}, 3\ns_lshl_b32 s{s_t0}, s{s_t0}, 15\ns_add_u32 s{s_wb[j]}, s{s_w2base}, s{s_t0}")
A(f"s_lshl1_add_u32 s{s_t0}, s{s_mt}, s{s_wm}")
A(f"s_mul_i32 s{s_t0}, s{s_t0}, {2*M32S}")
A(f"s_lshl1_add_u32 s{s_t1}, s{s_ft}, s{s_wf}")
A(f"s_lshl_b32 s{s_actst}, s{s_t1}, 12\ns_add_u32 s{s_actst}, s{s_actst}, s{s_t0}")
A(f"s_lshl_b32 s{s_t1}, s{s_t1}, 7")
A(f"s_add_u32 s{s_flagP}, s{s_t1}, s{s_t0}\ns_add_u32 s{s_flagP}, s{s_flagP}, {FLAGOFF}")
A(f"s_mul_i32 s{s_t0}, s{s_m64}, {2*M32S}")
A(f"s_mul_i32 s{s_flagC}, s{sW}, 896\ns_add_u32 s{s_flagC}, s{s_flagC}, s{s_t0}\ns_add_u32 s{s_flagC}, s{s_flagC}, {FLAGOFF}")
A(f"s_mul_i32 s{s_actld}, s{sW}, 28672\ns_add_u32 s{s_actld}, s{s_actld}, s{s_t0}")
A(f"s_lshl3_add_u32 s{s_outb}, s{s_m64}, s{sW}\ns_lshl_b32 s{s_outb}, s{s_outb}, 6\ns_add_u32 s{s_outb}, s{s_outb}, s{s_nt}\ns_lshl_b32 s{s_outb}, s{s_outb}, 7")
A(f"s_mov_b32 s{s_cl2e}, 0xbfb8aa3b\ns_mov_b32 s{s_cl2e+1}, s{s_cl2e}")
A(f"s_mov_b32 s{s_half}, 0.5\ns_mov_b32 s{s_half+1}, 0.5")
A(f"s_mov_b32 s{s_spin}, 0")
A(f"s_cmp_eq_u32 s{s_fl}, 7")
A("s_cbranch_scc1 L_spare")
stamp("setup")
A(m0row(1))
A("s_nop 0")
for i in range(4): A(dma(vDW[i], sWW, s_soW, i)); vm("c1")
for fi in range(2):
    A(f"buffer_load_ushort v{BIAS+4*fi}, v{v_bo}, {srd(sB)}, s{s_t1} offen offset:{64*fi}"); vm("c1")

order = args.order.split()
assert len(order) == 14 and len(set(order)) == 14
NE = args.ne
assert NE <= 1
free_rows = [(2, "B6"), (4, "B6"), (0, "B7"), (1, "P0"), (3, "P0"), (5, "P1"), (6, "P2"), (7, "P3"), (8, "F")]
rowinfo = [(9, "")] + free_rows
rows = [r for r, _ in rowinfo] + [r for r, _ in rowinfo[:4]]
rowreq = [q for _, q in rowinfo] + ["R"] * 4
passed = set([""])
def gaddr(dst, p, bases, base0, shift):
    nm = order[p]
    if nm[0] == "S": return f"s_add_u32 s{dst}, s{base0}, {((12 + int(nm[1])) * 32768) >> shift}"
    t_, j = "abc".index(nm[0]), int(nm[1])
    return f"s_add_u32 s{dst}, s{bases[j]}, {(t_ * 131072) >> shift}"
stream = []
for j in range(2, 8):
    rq = f"B{j-2}" if j > 2 else ""
    for i in range(2):
        stream.append(((m0x(XA + (j % 3) * 8192) + "\n" + soffX(j)) if i == 0 else None, dma(vDX[i], sX_, s_soX, i), f"c{j}", rq))
    for i in range(4):
        stream.append(((m0row(j % 3) + "\n" + soffW()) if i == 0 else None, dma(vDW[i], sWW, s_soW, i), f"c{j}", rq))
for j in range(8):
    for i in range(2):
        pre = None
        if i == 0:
            pre = m0x(XB + j * 8192) + "\n" + (f"s_add_u32 s{s_xbase}, s{s_xbase}, 32768\n" if j == 0 else "") + soffX(j)
        stream.append((pre, dma(vDX[i], sX_, s_soX, i), f"x{j >> 1}", ""))
for p in range(NE, 14):
    for i in range(4):
        stream.append(((m0row(rows[p]) + "\n" + gaddr(s_soX, p, s_wb, s_w2base, 0)) if i == 0 else None, dma(vD2[i], sW2, s_soX, i), f"g{p}", rowreq[p]))
early = [(p, i) for p in range(NE) for i in range(4)]
esteps = [args.e0 + (k * (args.e1 - args.e0)) // max(1, len(early) - 1) for k in range(len(early))]
def can_issue(): return bool(stream) and stream[0][3] in passed
def pre_next():
    if not stream: return
    p, i_, tg, rq = stream[0]
    if p: A(p); stream[0] = (None, i_, tg, rq)
def dma_next():
    p, i_, tg, rq = stream.pop(0)
    assert rq in passed, (tg, rq)
    if p: A(p)
    A(i_); vm(tg)

def xf(n): return XF + 4 * (n % 4)
def rd_x(n):
    ch, s = divmod(n % 32, 4)
    off = (ch % 3) * 8192 if n < 32 else ch * 8192
    lg(f"ds_read_b128 v[{xf(n)}:{xf(n)+3}], v{vRX[s]} offset:{off}", f"x{n}")
def rd_w(n, fi):
    ch, s = divmod(n, 4)
    for a_ in range(2):
        r = n * 8 + 4 * fi + 2 * a_
        lg(f"ds_read_b64_tr_b16 a[{r}:{r+1}], v{vRW[fi]} offset:{(ch % 3)*16384+4096*s+1024*a_}", f"w{n}_{fi}")
def mfma1(n, fi):
    mi = n // 32; D = acc(mi, fi); wr = (n % 32) * 8 + 4 * fi
    C = "0" if n == 0 else f"v[{D}:{D+15}]"
    A(f"v_mfma_f32_32x32x16_bf16 v[{D}:{D+15}], a[{wr}:{wr+3}], v[{xf(n)}:{xf(n)+3}], {C}")
def mfma_bias(mi, fi):
    D = acc(mi, fi); C = f"v[{D}:{D+15}]" if mi == 0 else "0"
    A(f"v_mfma_f32_32x32x16_bf16 v[{D}:{D+15}], v[{BIAS+4*fi}:{BIAS+4*fi+3}], v[{BIAS+8}:{BIAS+11}], {C}")
P = lambda r: f"v[{r}:{r+1}]"
def mish_frag(mi, fi, s, tb, ob, pk):
    hb = acc(mi, fi) + 8 * s
    U, N, D = tb, tb + 8, tb + 16
    o = []
    if pk:
        for p in range(4): o.append((f"v_pk_mul_f32 {P(U+2*p)}, {P(hb+2*p)}, s[{s_cl2e}:{s_cl2e+1}]", 5))
        for i in range(8): o.append((f"v_exp_f32 v{U+i}, v{U+i}", 8))
        for p in range(4): o.append((f"v_pk_add_f32 {P(N+2*p)}, {P(U+2*p)}, s[{s_half}:{s_half+1}]", 5))
        for p in range(4): o.append((f"v_pk_fma_f32 {P(D+2*p)}, {P(U+2*p)}, {P(U+2*p)}, {P(N+2*p)}", 5))
        for i in range(8): o.append((f"v_rcp_f32 v{D+i}, v{D+i}", 8))
        for p in range(4): o.append((f"v_pk_mul_f32 {P(N+2*p)}, {P(N+2*p)}, {P(D+2*p)} clamp", 5))
        for p in range(4): o.append((f"v_pk_mul_f32 {P(N+2*p)}, {P(N+2*p)}, {P(hb+2*p)}", 5))
        for p in range(4): o.append((f"v_cvt_pk_bf16_f32 v{ob+p}, v{N+2*p}, v{N+2*p+1}", 5))
    else:
        st = [lambda i: (f"v_mul_f32 v{U+i}, s{s_cl2e}, v{hb+i}", 4),
              lambda i: (f"v_exp_f32 v{U+i}, v{U+i}", 8),
              lambda i: (f"v_add_f32 v{N+i}, 0.5, v{U+i}", 4),
              lambda i: (f"v_fma_f32 v{D+i}, v{U+i}, v{U+i}, v{N+i}", 5),
              lambda i: (f"v_rcp_f32 v{D+i}, v{D+i}", 8),
              lambda i: (f"v_mul_f32 v{N+i}, v{N+i}, v{D+i} clamp", 5),
              lambda i: (f"v_mul_f32 v{N+i}, v{N+i}, v{hb+i}", 4),
              lambda i: (f"v_cvt_pk_bf16_f32 v{ob+i//2}, v{N+i-1}, v{N+i}", 5) if i & 1 else None]
        for tt in range(8 + 7):
            for k in range(7, -1, -1):
                i = tt - k
                if 0 <= i < 8 and st[k](i): o.append(st[k](i))
        for x, y in zip(o, o[1:]):
            if x[0].startswith(("v_exp", "v_rcp")):
                dst = x[0].split()[1].rstrip(",")
                assert dst not in [z.strip(",") for z in y[0].split()[2:]], (x, y)
    return o
OUTB = MT + 24
def st_act(mi, fr):
    ob = OUTB + 16 * mi + 4 * fr
    A(f"buffer_store_dwordx4 v[{ob}:{ob+3}], v{v_l16}, {srd(sA)}, s{s_actst} offen offset:{1024*fr} sc1"); vm(f"st{mi}")
def arm_load(): A(f"buffer_load_dword v{v_arm}, v{v_armoff}, {srd(sD)}, 0 offen sc1")

mA = []
for fr in range(4):
    mA += mish_frag(0, fr >> 1, fr & 1, MT, OUTB + 4 * fr, args.pkA)
    if args.burstA == 0: mA += [("ST", fr)]
    elif args.burstA == 1 and fr == 3: mA += [("ST", q) for q in range(4)]
    elif args.burstA == 2 and fr & 1: mA += [("ST", fr - 1), ("ST", fr)]
totA = sum(c_ for i_, c_ in mA if i_ != "ST")
ngaps = 2 * (args.m1step - args.m0step + 1)
doneA = [0]
def mishA_gap(g):
    target = totA * (g + 1) / ngaps
    while mA and (doneA[0] < target - 2 or mA[0][0] == "ST"):
        i_, c_ = mA.pop(0)
        if i_ == "ST": st_act(0, c_)
        else: A(i_); doneA[0] += c_

dma_next(); dma_next()
wait_vm("c0")
stamp("c0_land")
A("s_barrier"); passed.add("B0")
for n in range(2):
    rd_x(n); rd_w(n, 0); rd_w(n, 1)
entered = False
for n in range(64):
    nx = n + 2
    bar = None
    if nx < 32 and nx % 4 == 0: bar = (f"B{nx//4}", f"c{nx//4}")
    if 32 <= nx < 64 and (nx - 32) % 8 == 0: bar = (f"P{(nx-32)//8}", f"x{(nx-32)//8}")
    if nx == 64: bar = ("F", None)
    wait_lg(f"w{n}_0" if n < 32 else f"x{n}")
    mfma1(n, 0)
    if n == 6:
        for mi_, fi_ in ((1, 0), (1, 1), (0, 1), (0, 0)): mfma_bias(mi_, fi_)
    if nx == 32:
        for r in vRX: A(f"v_add_u32 v{r}, {XB - XA}, v{r}")
    if bar:
        if not entered and bar[0] == "P0":
            assert not any(t_.startswith("g") and int(t_[1:]) >= NE for t_ in vmq)
            A("L_enter:"); entered = True
        if bar[1]:
            while any(e_[2] == bar[1] for e_ in stream): dma_next()
            wait_vm(bar[1])
        wait_lg0()
        A("s_barrier"); passed.add(bar[0])
        if bar[0] == "P0": stamp("P0")
    if nx < 64: rd_x(nx)
    if nx < 32: rd_w(nx, 0)
    def loads(g):
        kind = stream[0][2][0] if stream else ""
        if kind == "c":
            if can_issue(): dma_next()
        elif kind == "x":
            for _ in range((args.xbper + 1 - (g & 1)) // 2):
                if stream[0][2][0] == "x": dma_next()
        elif kind == "g" and entered:
            if g % args.w2gap == 0 and can_issue(): dma_next()
    if n >= 32 and args.m0step <= n - 32 <= args.m1step: mishA_gap(2 * (n - 32 - args.m0step))
    loads(2 * n)
    if n < 32: wait_lg(f"w{n}_1")
    ex = n in esteps
    if ex:
        p, i = early.pop(0)
        A(f"s_mov_b32 s{s_m0s}, m0")
        A(m0row(rows[p]))
    mfma1(n, 1)
    if ex:
        if i == 0: A(gaddr(s_so2, p, s_wb, s_w2base, 0))
        A(dma(vD2[i], sW2, s_so2, i)); vm(f"g{p}")
        A(f"s_mov_b32 m0, s{s_m0s}")
    if nx < 32: rd_w(nx, 1)
    if n == 31: stamp("pAdone")
    if n >= 32 and args.m0step <= n - 32 <= args.m1step: mishA_gap(2 * (n - 32 - args.m0step) + 1)
    if not ex: loads(2 * n + 1)
    elif nx >= 32: A("s_nop 0")
    if can_issue() and (entered or stream[0][2][0] != "g"): pre_next()
assert not early and not mA
stamp("p1done")

def w2_reads(p):
    out = []
    r_ = rows[p]
    for i in range(4):
        j = 4 * p + i; ks, a_ = j >> 1, j & 1
        for ni in range(2):
            r = (ks * 2 + ni) * 4 + 2 * a_
            out.append(f"ds_read_b64_tr_b16 a[{r}:{r+1}], v{vR2[r_ >> 2][ni]} offset:{(r_ & 3)*16384+1024*i}")
    return out
def flag(stage):
    if stage == 1: A(f"s_add_u32 s{s_flagP}, s{s_flagP}, {M32S}")
    A("s_mov_b32 exec_hi, 0")
    A(f"buffer_store_dword v{v_one}, v{v_l4}, {srd(sA)}, s{s_flagP} offen sc1")
    A("s_mov_b32 exec_hi, -1")
def poll_issue():
    for i in range(7): A(f"s_buffer_load_dword s{s_pl[i]}, {srd(sL)}, s{s_flagC} offset:{128*i} glc")
cold = []
def spin_check(lbl, reissue, pre=None):
    A(f"{lbl}:")
    if lbl != "L_arm":
        A("s_waitcnt lgkmcnt(0)")
        for i in range(1, 7): A(f"s_and_b32 s{s_pl[0]}, s{s_pl[0]}, s{s_pl[i]}")
    else:
        A(f"v_cmp_eq_u32 vcc, 1, v{v_arm}")
        A("s_nop 0")
        A("s_cmp_eq_u64 vcc, -1")
    A(f"s_cbranch_scc0 {lbl}_slow")
    A(f"{lbl}_ok:")
    cold.append((lbl, reissue, pre))
A(f"s_add_u32 s{s_actst}, s{s_actst}, {M32S}")
arm_load(); vm("arm")
A("s_nop 8")
nextp = [0]; rq = []; vm_known = [0]
def note_wait(tag):
    wait_vm(tag); vm_known[0] = max(vm_known[0], max(i for i, t in enumerate(vmq) if t == tag) + 1)
def queue_pos(force=False, age=12):
    p = nextp[0]
    if p >= 14 or vmq.count(f"g{p}") < 4: return False
    last = max(i for i, t in enumerate(vmq) if t == f"g{p}")
    if last >= vm_known[0]:
        if not force and len(vmq) - 1 - last < age: return False
        note_wait(f"g{max(p, NE)}")
    rq.extend((r, f"q{p}") for r in w2_reads(p)); nextp[0] += 1
    return True
def fill(k, age=12):
    for _ in range(k):
        if not rq and not queue_pos(age=age): return
        r, tg = rq.pop(0); lg(r, tg)
def need_pos(p):
    while nextp[0] <= p: assert queue_pos(force=True)
    while any(tg == f"q{p}" for _, tg in rq):
        r, tg = rq.pop(0); lg(r, tg)
    wait_lg(f"q{p}")
passed.add("R")
def dma_next2():
    tg = stream[0][2]
    if stream[0][3] == "R": need_pos(int(tg[1:]) - 10)
    dma_next()
nm = args.nmish
slotset = set(int((k + 0.5) * 160 / nm) for k in range(nm)) if nm else set()
def pubA():
    note_wait("arm")
    spin_check("L_arm", arm_load)
    flag(0); vm("flagA")
    stamp("flagA")
ND = args.ndefer
absc = []
for j in range(4):
    absc += [f"s_sub_u32 s{s_ab[j]}, s{s_wb[j]}, s{s_w2base}", f"s_lshr_b32 s{s_ab[j]}, s{s_ab[j]}, 4", f"s_add_u32 s{s_ab[j]}, s{s_ab[j]}, s{s_actld}"]
for fr in range(4):
    if fr == args.flagApos: pubA()
    body = mish_frag(1, fr >> 1, fr & 1, MT, OUTB + 16 + 4 * fr, 1)
    for n, (ins, _) in enumerate(body):
        A(ins)
        if fr * 40 + n in slotset and len(stream) > ND: dma_next2()
        if n % 4 == 1 and (rq or nextp[0] < args.rdmish): fill(1, 16)
    if not args.burstB: st_act(1, fr)
if args.burstB:
    for fr in range(4): st_act(1, fr)
stamp("mish1")
if args.flagApos >= 4: pubA()
polled = len(stream) <= ND + args.npoll
if polled: poll_issue()
k = 0
flagB_done = False
def maybe_flagB():
    global flagB_done
    if not flagB_done and k >= args.nb:
        note_wait("st1"); flag(1); vm("flagB"); flagB_done = True
        stamp("flagB")
while len(stream) > ND:
    dma_next2(); k += 1; maybe_flagB(); fill(4)
    if len(stream) == ND + args.npoll and not polled: poll_issue(); polled = True
for x in absc: A(x)
if not flagB_done: A(f"s_mov_b32 s{s_t1}, 0")
fill(16)
stamp("w2iss")
spin_check("L_pollA", poll_issue, pre=None if flagB_done else "B"); lg_done[0] = len(lgq)
stamp("pollA")
DEP = args.depth
NF = 56
def af(i): return AF + 4 * (i % NRING)
def act_load(i):
    mi, ks = divmod(i, 28)
    if i == 28:
        spin_check("L_pollB", poll_issue); lg_done[0] = len(lgq)
        for r in s_ab + [s_actld]: A(f"s_add_u32 s{r}, s{r}, {M32S}")
    if ks % 2 == 0: A(gaddr(s_so, ks >> 1, s_ab, s_actld, 4))
    A(f"buffer_load_dwordx4 v[{af(i)}:{af(i)+3}], v{v_l16}, {srd(sL)}, s{s_so} offen offset:{(ks%2)*1024} sc1"); vm(f"a{i}")
nd = len(stream)
ops = []
for i in range(NF):
    ops.append(("a", i))
    while nd and sum(1 for o in ops if o[0] == "d") < min(nd, -(-nd * (i + 1) // args.dspan)): ops.append(("d", 0))
opi = [0]
def issue_upto(j):
    global k
    while opi[0] <= min(j, len(ops) - 1):
        o = ops[opi[0]]; opi[0] += 1
        if o[0] == "a": act_load(o[1])
        else: dma_next2()
        k += 1; maybe_flagB()
        if opi[0] <= DEP: fill(6)
issue_upto(DEP - 1)
PB = 28 - DEP - 8
redw = [(ni, g) for ni in range(2) for g in range(4)]
R = 192
def red_reads(mi, base):
    o = []
    for src in range(4):
        for e_ in range(2):
            r = base + 8 * src + 4 * e_
            o.append(f"ds_read_b128 v[{r}:{r+3}], v{[v_redr, vT[4]][e_]} offset:{src*4096 + 32768*mi}")
    return o
def red_math(b_):
    o1 = [f"v_pk_add_f32 {P(b_+2*p)}, {P(b_+2*p)}, {P(b_+8+2*p)}" for p in range(4)]
    o2 = [f"v_pk_add_f32 {P(b_+16+2*p)}, {P(b_+16+2*p)}, {P(b_+24+2*p)}" for p in range(4)]
    o2 += [f"v_pk_add_f32 {P(b_+2*p)}, {P(b_+2*p)}, {P(b_+16+2*p)}" for p in range(4)]
    o2 += [f"v_cvt_pk_bf16_f32 v{b_+8+p}, v{b_+2*p}, v{b_+2*p+1}" for p in range(4)]
    return o1, o2
def red_math_np(b_):
    o = [f"v_add_f32 v{b_+i}, v{b_+i}, v{b_+8+i}" for i in range(8)]
    o += [f"v_add_f32 v{b_+16+i}, v{b_+16+i}, v{b_+24+i}" for i in range(8)]
    o += [f"v_add_f32 v{b_+i}, v{b_+i}, v{b_+16+i}" for i in range(8)]
    o += [f"v_cvt_pk_bf16_f32 v{b_+8+p}, v{b_+2*p}, v{b_+2*p+1}" for p in range(4)]
    return o
def out_store(b_):
    A(f"buffer_store_dwordx4 v[{b_+8}:{b_+11}], v{v_outo}, {srd(sB)}, s{s_outb} offen {args.outsc}")
side = []
for i in range(NF):
    mi, ks = divmod(i, 28)
    note_wait(f"a{i}")
    if i == 0: stamp("a0")
    if mi == 0 and ks % 2 == 0: need_pos(ks >> 1)
    for ni in range(2):
        D = acc(mi, ni); wr = (ks * 2 + ni) * 4
        C = "0" if ks == 0 else f"v[{D}:{D+15}]"
        A(f"v_mfma_f32_32x32x16_bf16 v[{D}:{D+15}], a[{wr}:{wr+3}], v[{af(i)}:{af(i)+3}], {C}")
        fill(2)
        for _ in range(3):
            if side: A(side.pop(0))
    if i == PB:
        A(f"s_add_u32 s{s_flagC}, s{s_flagC}, {M32S}")
        poll_issue()
    if i + 1 < NF: issue_upto(ops.index(("a", i + 1)) + DEP - 1)
    if i == 26:
        for gg in range(1, 4): A(f"v_xor_b32 v{vT[gg]}, {32*gg}, v{v_redw}")
        A(f"s_mov_b32 s{sB}, s12\ns_mov_b32 s{sB+1}, s13\ns_mov_b32 s{sB+2}, 2097152")
        A(f"v_xor_b32 v{vT[4]}, 16, v{v_redr}")
    if mi == 1 and 3 <= ks < 11:
        ni, g = redw[ks - 3]
        va = v_redw if g == 0 else vT[g]
        r = acc(0, ni) + 4 * g
        A(f"ds_write_b128 v{va}, v[{r}:{r+3}] offset:{128*ni}")
    if args.redA and mi == 1:
        if ks == 13:
            A("s_waitcnt lgkmcnt(0)")
            A("s_barrier")
            side = red_reads(0, R)
        if ks == 17:
            A("s_waitcnt lgkmcnt(0)")
            side = red_math_np(R)
        if ks == 27:
            assert not side
            out_store(R)
            A(f"s_add_u32 s{s_outb}, s{s_outb}, 32768")
assert flagB_done and not stream
stamp("p2done")
A("s_nop 8" if args.redA else "s_nop 10")
for ni, g in redw:
    va = v_redw if g == 0 else vT[g]
    r = acc(1, ni) + 4 * g
    A(f"ds_write_b128 v{va}, v[{r}:{r+3}] offset:{32768+128*ni}")
A("s_waitcnt lgkmcnt(0)")
A("s_barrier")
mis = [1] if args.redA else [0, 1]
for mi in mis:
    for r in red_reads(mi, 128 + 32 * mi): A(r)
for j, mi in enumerate(mis):
    b_ = 128 + 32 * mi
    rem = 8 * (len(mis) - 1 - j)
    o1, o2 = red_math(b_)
    A(f"s_waitcnt lgkmcnt({rem + 4})")
    for x in o1: A(x)
    A(f"s_waitcnt lgkmcnt({rem})")
    for x in o2: A(x)
    if mi == 1 and not args.redA: A(f"s_add_u32 s{s_outb}, s{s_outb}, 32768")
    out_store(b_)
if args.stamps:
    A("s_waitcnt vmcnt(0)")
    stamp("end")
    A("s_memrealtime s[12:13]")
    A("s_waitcnt lgkmcnt(0)")
    n = len(stamp_names)
    A("v_mov_b32 v64, s100\nv_mov_b32 v65, s12")
    for i in range(n): A(f"v_mov_b32 v{66+i}, s{stamp_regs[i]}")
    A(f"v_mov_b32 v{66+n}, s{s_spin}")
    A(f"s_mov_b32 s{sL+2}, 0x10000000")
    A(f"s_lshl_b32 s{s_t0}, s2, 2\ns_add_u32 s{s_t0}, s{s_t0}, s{sW}\ns_lshl_b32 s{s_t0}, s{s_t0}, 7\ns_add_u32 s{s_t0}, s{s_t0}, {STAMP_OFF}")
    A("s_mov_b64 exec, 1")
    for q in range(5):
        A(f"buffer_store_dwordx4 v[{64+4*q}:{67+4*q}], off, {srd(sL)}, s{s_t0} offset:{16*q}")
if args.pad:
    A("s_waitcnt vmcnt(0)")
    stamp("end")
    A("s_waitcnt lgkmcnt(0)")
    A("s_sub_u32 s84, s82, s80")
    A(f"s_cmp_eq_u32 s{s_fl}, 7")
    A("s_cselect_b32 s84, 0, s84")
    if args.padwg >= 0:
        A(f"s_cmp_eq_u32 s2, {args.padwg}")
        A("s_cselect_b32 s84, s84, 0")
    A("s_min_u32 s84, s84, 10000")
    A("s_add_u32 s84, s84, 4000")
    A("L_pad:")
    A("s_memrealtime s[86:87]")
    A("s_waitcnt lgkmcnt(0)")
    A("s_sub_u32 s85, s86, s80")
    A("s_cmp_lt_u32 s85, s84")
    A("s_cbranch_scc1 L_pad")
A("L_end:")
A("s_endpgm")
for lbl, reissue, pre in cold:
    A(f"{lbl}_slow:")
    if pre:
        A(f"s_cmp_lg_u32 s{s_t1}, 0")
        A(f"s_cbranch_scc1 {lbl}_s2")
        A(f"s_mov_b32 s{s_t1}, 1")
        A("s_waitcnt vmcnt(0)")
        A(f"s_add_u32 s{s_t0}, s{s_flagP}, {M32S}")
        A("s_mov_b32 exec_hi, 0")
        A(f"buffer_store_dword v{v_one}, v{v_l4}, {srd(sA)}, s{s_t0} offen sc1")
        A("s_mov_b32 exec_hi, -1")
        A(f"{lbl}_s2:")
    A(f"s_add_u32 s{s_spin}, s{s_spin}, 1")
    A(f"s_cmp_ge_u32 s{s_spin}, 200000")
    A(f"s_cbranch_scc1 {lbl}_ok")
    if args.sleep: A(f"s_sleep {args.sleep}")
    reissue()
    if lbl == "L_arm": A("s_waitcnt vmcnt(0)")
    A(f"s_branch {lbl}")
A("L_spare:")
A(f"s_cmp_lg_u32 s{sW}, 0")
A("s_cbranch_scc1 L_spare2")
A(f"v_and_b32 v{vT[12]}, 15, v{v_lane}")
A(f"v_min_u32 v{vT[12]}, 13, v{vT[12]}")
A(f"v_lshlrev_b32 v{vT[12]}, 7, v{vT[12]}")
A(f"s_mov_b32 s{s_t0}, {M32S}")
A(f"v_mul_lo_u32 v{vT[13]}, v{b}, s{s_t0}")
A(f"v_add_u32 v{vT[12]}, v{vT[12]}, v{vT[13]}")
A(f"s_mul_i32 s{s_t0}, s{s_mt}, {4*M32S}\ns_mul_i32 s{s_t1}, s{s_fg}, 1792\ns_add_u32 s{s_t0}, s{s_t0}, s{s_t1}\ns_add_u32 s{s_t0}, s{s_t0}, {FLAGOFF}")
A(f"v_mov_b32 v{vT[14]}, 0")
A(f"buffer_store_dword v{vT[14]}, v{vT[12]}, {srd(sA)}, s{s_t0} offen sc1")
A("L_spare2:")
A(f"s_mul_i32 s{s_t1}, s{s_ml}, 56\ns_add_u32 s{s_t1}, s{s_t1}, s{sW}\ns_lshl_b32 s{s_t1}, s{s_t1}, 13")
A(f"s_mul_i32 s{s_t2}, s{s_xcd}, 7\ns_lshr_b32 s{s_t2}, s{s_t2}, 2\ns_lshl_b32 s{s_t2}, s{s_t2}, 15\ns_add_u32 s{s_t2}, s{s_t2}, s{s_t1}")
def arm_now(n):
    A(f"s_cmp_lg_u32 s{sW}, 0")
    A("s_cbranch_scc1 L_spare3")
    A(f"s_waitcnt vmcnt({n})")
    A("s_mov_b64 exec, 1")
    A(f"buffer_store_dword v{v_one}, v{v_armoff}, {srd(sD)}, 0 offen sc1")
    A("s_mov_b64 exec, -1")
    A("L_spare3:")
armpos = min(args.armpos, len(spf))
for k_, op in enumerate(spf + [None]):
    if k_ == armpos: arm_now(armpos)
    if op is None: break
    if op in ("x1", "x2"):
        A(f"s_xor_b32 s{s_t0}, s{s_fg}, {int(op == 'x2')}\ns_lshl_b32 s{s_t0}, s{s_t0}, 13\ns_add_u32 s{s_t0}, s{s_t0}, s{s_xbase}")
        A(f"buffer_load_dword v{vT[24]}, v{vT[18]}, {srd(sX_)}, s{s_t0} offen")
    elif op[0] == "p":
        A(f"s_add_u32 s{s_t0}, s{s_t2}, {32768*int(op[1])}")
        A(f"buffer_load_dword v{vT[24]}, v{vT[18]}, {srd(sW2)}, s{s_t0} offen")
    elif op[0] == "S":
        A(f"s_add_u32 s{s_t0}, s{s_t1}, {32768*(12+int(op[1]))}")
        A(f"buffer_load_dword v{vT[24]}, v{vT[18]}, {srd(sW2)}, s{s_t0} offen")
A(f"s_mov_b32 s{sA+2}, 0")
for p in range(NE):
    A(m0row(rows[p])); A(gaddr(s_so2, p, s_wb, s_w2base, 0))
    for i in range(4): A(dma(vD2[i], sW2, s_so2, i))
A(f"s_mov_b32 s{s_soX}, 0")
A(f"s_mov_b32 m0, {XB}")
A("s_branch L_enter")
A("L_codeend:")
tail = f""".section .rodata,"a"
.p2align 6
.amdhsa_kernel {KN}
  .amdhsa_next_free_vgpr 512
  .amdhsa_next_free_sgpr 102
  .amdhsa_accum_offset 256
  .amdhsa_group_segment_fixed_size 0
  .amdhsa_kernarg_size 56
  .amdhsa_user_sgpr_count 2
  .amdhsa_user_sgpr_kernarg_segment_ptr 1
  .amdhsa_system_sgpr_workgroup_id_x 1
.end_amdhsa_kernel"""
print(hdr)
print("\n".join(L))
print(tail)
if args.stamps:
    print("; STAMPS: " + " ".join(stamp_names))
```

```python
import sys, argparse
ap = argparse.ArgumentParser()
ap.add_argument("--stamps", type=int, default=0)
ap.add_argument("--rot", type=int, default=6)
ap.add_argument("--depth", type=int, default=10)
ap.add_argument("--spf", default="x1 p0 p1 x2")
ap.add_argument("--outsc", default="nt")
ap.add_argument("--ne", type=int, default=0)
ap.add_argument("--e0", type=int, default=12)
ap.add_argument("--e1", type=int, default=24)
ap.add_argument("--order", default="a0 S0 S1 b0 a1 a2 a3 c0 b1 b2 b3 c1 c2 c3")
ap.add_argument("--xbper", type=int, default=1)
ap.add_argument("--w2gap", type=int, default=2)
ap.add_argument("--m0step", type=int, default=2)
ap.add_argument("--m1step", type=int, default=26)
ap.add_argument("--pkA", type=int, default=0)
ap.add_argument("--nmish", type=int, default=14)
ap.add_argument("--ndefer", type=int, default=0)
ap.add_argument("--dspan", type=int, default=14)
ap.add_argument("--armstep", type=int, default=64)
ap.add_argument("--rtst", type=int, default=0)
ap.add_argument("--tailj", type=int, default=6)
ap.add_argument("--redi", type=int, default=41)
ap.add_argument("--lean", type=int, default=1)
ap.add_argument("--pbars", type=int, default=4)
ap.add_argument("--cskew", type=int, default=1)
ap.add_argument("--dbg", default="")
ap.add_argument("--stfl", default="sc1")
ap.add_argument("--itst", type=int, default=0)
ap.add_argument("--burstA", type=int, default=0)
ap.add_argument("--burstB", type=int, default=0)
ap.add_argument("--ntrot", type=int, default=4)
ap.add_argument("--flrot", type=int, default=0)
ap.add_argument("--armpos", type=int, default=1)
ap.add_argument("--rdmish", type=int, default=4)
ap.add_argument("--flagApos", type=int, default=2)
ap.add_argument("--nb", type=int, default=10)
ap.add_argument("--npoll", type=int, default=8)
ap.add_argument("--redA", type=int, default=1)
ap.add_argument("--sleep", type=int, default=0)
ap.add_argument("--pad", default="")
ap.add_argument("--padwg", type=int, default=-1)
ap.add_argument("--name", default="standalone__dense_activation_mish__prompt")
args = ap.parse_args()
KN = args.name + "_kernel"

M32S = 118784
FLAGOFF = 114688
WS_SIZE = 64 * M32S
STAMP_OFF = 16 << 20

L = []
def A(s):
    for ln in s.split("\n"):
        L.append("    " + ln if not ln.endswith(":") else ln)

sW = 3
sX_, sWW, sB, sA, sL, sD, sW2 = 20, 24, 28, 32, 36, 40, 8
def srd(b): return f"s[{b}:{b+3}]"
s_mt, s_ft, s_fg, s_fl, s_m64, s_ml, s_wm, s_wf = 44, 45, 46, 47, 48, 49, 50, 51
s_nt = 19
s_ord, s_xbase, s_wbase, s_soX, s_soW, s_ld, s_so2, s_m0s = 53, 54, 55, 56, 57, 58, 59, 60
s_t2, s_t0, s_t1 = 61, 62, 63
s_wb = [64, 65, 66, 52]
s_actst, s_flagP, s_flagC, s_actld, s_spin, s_outb, s_xcd = 67, 68, 69, 70, 71, 72, 73
s_cl2e = 74; s_half = 76; s_so = 78; s_w2base = 79
s_ldx = 18
s_ab = [48, 49, 50, 51]
s_pl = [53, 59, 60, 61, 44, 45, 46]
v_lane = 1
vDX = [2, 3]; vDW = [6, 7, 8, 9]; vD2 = [10, 11, 12, 13]
vRX = [14, 15, 16, 17]; vRW = [18, 19]; vR2 = [[20, 21], [22, 23], [35, 36]]
v_l16 = 24; v_armoff = 26; v_arm = 27; v_one = 29; v_l4 = 30
v_bo = 31; v_redw = 32; v_redr = 33; v_outo = 34
vT = list(range(38, 64))
ACC = 64
def acc(mi, j): return ACC + 32 * mi + 16 * j
BIAS = 128; XF = 160; MT = 192
AF = 128; NRING = 16
XA = 49152; XB = 65536

stamp_names = []
stamp_regs = list(range(80, 100, 2)) + [4, 6, 16, 54, 56, 14]
def stamp(name):
    if args.pad:
        if name == "start": A("s_memrealtime s[80:81]")
        if name == args.pad: A("s_memrealtime s[82:83]")
        return
    if not args.stamps: return
    i = len(stamp_names); stamp_names.append(name)
    r = stamp_regs[i]
    A(f"s_mem{'real' if args.rtst else ''}time s[{r}:{r+1}]")

vmq = []
def vm(tag): vmq.append(tag)
def wait_vm(tag):
    idx = max(i for i, t in enumerate(vmq) if t == tag)
    n = len(vmq) - 1 - idx
    assert n <= 63, n
    A(f"s_waitcnt vmcnt({n})")
lgq = []; lg_done = [0]
def lg(ins, tag=None): A(ins); lgq.append(tag)
def wait_lg(tag):
    idx = max(i for i, t in enumerate(lgq) if t == tag)
    if idx < lg_done[0]: return
    n = len(lgq) - 1 - idx
    A(f"s_waitcnt lgkmcnt({min(n, 12)})"); lg_done[0] = max(lg_done[0], len(lgq) - min(n, 12))
def wait_lg0():
    A("s_waitcnt lgkmcnt(0)"); lg_done[0] = len(lgq)

hdr = f"""; fused dense -> mish -> dense, one launch, 256 persistent workgroups
; @launch grid=(256,1,1) block=(256,1,1) lds=163840
.amdgcn_target "amdgcn-amd-amdhsa--gfx950"
.text
.globl {KN}
.p2align 8
.type {KN},@function
{KN}:"""

A(f"s_load_dwordx2 s[{sX_}:{sX_+1}], s[0:1], 0")
A(f"s_load_dwordx2 s[{sWW}:{sWW+1}], s[0:1], 8")
A(f"s_load_dwordx2 s[{sB}:{sB+1}], s[0:1], 16")
A(f"s_load_dwordx2 s[{sW2}:{sW2+1}], s[0:1], 24")
A("s_load_dwordx2 s[12:13], s[0:1], 32")
A(f"s_load_dwordx2 s[{sD}:{sD+1}], s[0:1], 40")
A(f"s_load_dwordx2 s[{sA}:{sA+1}], s[0:1], 48")
A(f"s_load_dwordx2 s[{sL}:{sL+1}], s[0:1], 48")
A("s_cmp_ge_u32 s2, 256")
A("s_cbranch_scc1 L_end")
if args.stamps: A("s_memrealtime s[100:101]")
stamp("start")
A(f"v_lshrrev_b32 v{vT[0]}, 6, v0")
A(f"v_and_b32 v{v_lane}, 63, v0")
A(f"v_readfirstlane_b32 s{sW}, v{vT[0]}")
A(f"s_and_b32 s{s_fg}, s2, 1")
A(f"s_bfe_u32 s{s_fl}, s2, 0x30003")
A(f"s_lshr_b32 s{s_ml}, s2, 6")
if args.flrot: A(f"s_add_u32 s{s_fl}, s{s_fl}, s{s_ml}\ns_and_b32 s{s_fl}, s{s_fl}, 7")
A(f"s_and_b32 s{s_mt}, s2, 6")
A(f"s_lshl1_add_u32 s{s_mt}, s{s_mt}, s{s_ml}")
A(f"s_mov_b32 s{sX_+2}, 2097152\ns_mov_b32 s{sX_+3}, 0x20000")
A(f"s_and_b32 s{s_t0}, s{sW}, 2\ns_add_u32 s{s_t0}, s{s_t0}, s{sW}\ns_lshl3_add_u32 s{s_xbase}, s{s_mt}, s{s_t0}\ns_lshl_b32 s{s_xbase}, s{s_xbase}, 14")
a, b, c, d = vT[0], vT[1], vT[2], vT[3]
A(f"v_lshrrev_b32 v{a}, 3, v{v_lane}")
A(f"v_lshrrev_b32 v{b}, 4, v{v_lane}")
A(f"v_and_b32 v{c}, 7, v{v_lane}")
A(f"s_lshl_b32 s{s_ld}, s{sW}, 12")
A(f"s_cmp_eq_u32 s{s_fl}, 7")
A("s_cbranch_scc1 L_sp0")
A(f"s_mul_i32 s{s_ft}, s{s_fg}, 7")
A(f"s_add_u32 s{s_ft}, s{s_ft}, s{s_fl}")
def rotw(): A(f"s_mov_b32 s4, 0x76543210\ns_mov_b32 s5, s4\ns_lshr_b64 s[4:5], s[4:5], s{s_t0}\ns_mov_b32 s{s_ord}, s4")
if args.rot == 1:
    A(f"s_lshl1_add_u32 s{s_t0}, s{s_ml}, s{s_fl}\ns_and_b32 s{s_t0}, s{s_t0}, 7\ns_lshl_b32 s{s_t0}, s{s_t0}, 2"); rotw()
elif args.rot == 4:
    A(f"s_lshl1_add_u32 s{s_t0}, s{s_ml}, s{s_fl}\ns_bfe_u32 s{s_t1}, s2, 0x10002\ns_add_u32 s{s_t0}, s{s_t0}, s{s_t1}")
    A(f"s_and_b32 s{s_t0}, s{s_t0}, 3\ns_lshl_b32 s{s_t0}, s{s_t0}, 2")
    A(f"s_lshr_b32 s{s_t0}, 0x32103210, s{s_t0}\ns_pack_ll_b32_b16 s{s_ord}, s{s_t0}, 0x3210")
    A(f"s_lshr_b32 s{s_t1}, s2, 1\ns_xor_b32 s{s_t1}, s{s_t1}, s2\ns_and_b32 s{s_t1}, s{s_t1}, 1\ns_lshl_b32 s{s_t1}, s{s_t1}, 4")
    A(f"s_lshr_b32 s{s_t1}, 0x44440000, s{s_t1}\ns_xor_b32 s{s_ord}, s{s_ord}, s{s_t1}")
elif args.rot == 5:
    A(f"s_add_u32 s{s_t0}, s{s_ml}, s{s_fl}\ns_and_b32 s{s_t0}, s{s_t0}, 1")
    A(f"s_lshr_b32 s{s_t1}, s2, 1\ns_xor_b32 s{s_t1}, s{s_t1}, s2\ns_and_b32 s{s_t1}, s{s_t1}, 1")
    A(f"s_lshl1_add_u32 s{s_t0}, s{s_t0}, s{s_t1}\ns_lshl_b32 s{s_t0}, s{s_t0}, 3"); rotw()
elif args.rot == 6:
    A(f"s_add_u32 s{s_t0}, s{s_ml}, s{s_fl}\ns_and_b32 s{s_t0}, s{s_t0}, 3\ns_lshl_b32 s{s_t0}, s{s_t0}, 3"); rotw()
else:
    A(f"s_mov_b32 s{s_ord}, 0x76543210")
A(f"s_mul_i32 s{s_wbase}, s{sW}, 224\ns_add_u32 s{s_wbase}, s{s_wbase}, s{s_ft}\ns_lshl_b32 s{s_wbase}, s{s_wbase}, 8")
A(f"v_xor_b32 v{d}, v{c}, v{b}")
A(f"v_lshlrev_b32 v{d}, 4, v{d}")
A(f"v_lshl_add_u32 v{vDX[0]}, v{a}, 10, v{d}")
A(f"v_xor_b32 v{d}, 64, v{vDX[0]}")
A(f"v_add_u32 v{vDX[1]}, 7168, v{d}")
A(f"v_and_b32 v{d}, 15, v{v_lane}")
A(f"v_lshlrev_b32 v{vT[4]}, 2, v{b}")
A(f"v_xor_b32 v{d}, v{d}, v{vT[4]}")
A(f"v_mul_u32_u24 v{vT[4]}, 224, v{b}")
A(f"v_add_lshl_u32 v{vDW[0]}, v{vT[4]}, v{d}, 4")
for i in range(1, 4):
    A(f"v_add_u32 v{vDW[i]}, {i*(4*3584-1024)}, v{vDW[0]}")
A(f"s_mov_b32 s{sWW+2}, 1835008\ns_mov_b32 s{sWW+3}, s{sX_+3}")
A(f"s_lshr_b32 s{s_ldx}, s{s_ld}, 1")
def soffX(j): return f"s_bfe_u32 s{s_t2}, s{s_ord}, {(3 << 16) | (4*j):#x}\ns_lshl_b32 s{s_soX}, s{s_t2}, 7\ns_add_u32 s{s_soX}, s{s_soX}, s{s_xbase}"
def soffW(): return f"s_mul_i32 s{s_soW}, s{s_t2}, 229376\ns_add_u32 s{s_soW}, s{s_soW}, s{s_wbase}"
def dma(vo, srdb, so, i):
    return f"buffer_load_dwordx4 v{vo}, {srd(srdb)}, s{so} offen offset:{1024*i} lds"
def m0row(r): return f"s_add_u32 m0, s{s_ld}, {r * 16384}" if r else f"s_mov_b32 m0, s{s_ld}"
def m0x(off): return f"s_add_u32 m0, s{s_ldx}, {off}"
A(soffX(0)); A(soffW())
A(m0x(XA))
A("s_waitcnt lgkmcnt(0)")
stamp("karg")
for i in range(2): A(dma(vDX[i], sX_, s_soX, i)); vm("c0")
A(m0row(0))
A(soffX(1))
for i in range(4): A(dma(vDW[i], sWW, s_soW, i)); vm("c0")
A(m0x(XA + 8192))
A(soffW())
for i in range(2): A(dma(vDX[i], sX_, s_soX, i)); vm("c1")
A("s_branch L_setup")
A("L_sp0:")
A("s_getpc_b64 s[4:5]")
A("L_pcref:")
A(f"v_lshlrev_b32 v{vT[10]}, 6, v0")
A(f"v_min_u32 v{vT[10]}, L_codeend-L_pcref-4, v{vT[10]}")
A(f"v_mov_b32 v{vT[11]}, s5")
A(f"v_add_co_u32 v{vT[10]}, vcc, s4, v{vT[10]}")
A(f"v_lshlrev_b32 v{vT[18]}, 7, v{v_lane}")
A(f"s_lshl_b32 s{s_t0}, s{s_fg}, 13")
A(f"v_addc_co_u32 v{vT[11]}, vcc, 0, v{vT[11]}, vcc")
assert vT[10] % 2 == 0
A(f"global_load_dword v{vT[24]}, v[{vT[10]}:{vT[11]}], off")
A(f"s_add_u32 s{s_xbase}, s{s_xbase}, 32768")
A(f"s_add_u32 s{s_t0}, s{s_t0}, s{s_xbase}")
A(f"s_mov_b32 s{s_ft}, 0\ns_mov_b32 s{s_ord}, 0\ns_mov_b32 s{s_ldx}, 0")
A(f"v_mov_b32 v{vDX[0]}, 0x7fff0000\nv_mov_b32 v{vDX[1]}, v{vDX[0]}")
A("s_waitcnt lgkmcnt(0)")
spf = args.spf.split()
if spf and spf[0] == "x1":
    A(f"buffer_load_dword v{vT[24]}, v{vT[18]}, {srd(sX_)}, s{s_t0} offen"); spf.pop(0)
A("L_setup:")
A(f"s_mov_b32 s{sB+2}, 3584\ns_mov_b32 s{sB+3}, s{sX_+3}")
A(f"s_mov_b32 s{sW2+2}, 1835008\ns_mov_b32 s{sW2+3}, s{sX_+3}")
A(f"s_mov_b32 s{sA+2}, {WS_SIZE}\ns_mov_b32 s{sA+3}, s{sX_+3}")
A(f"s_mov_b32 s{sL+2}, s{sA+2}\ns_mov_b32 s{sL+3}, s{sX_+3}")
A(f"s_movk_i32 s{sD+2}, 256\ns_mov_b32 s{sD+3}, s{sX_+3}")
A(f"s_and_b32 s{s_xcd}, s2, 7")
A(f"s_add_u32 s{s_nt}, s{s_fl}, {args.ntrot}\ns_and_b32 s{s_nt}, s{s_nt}, 7")
A(f"s_lshl2_add_u32 s{s_m64}, s{s_xcd}, s{s_ml}")
A(f"s_and_b32 s{s_wm}, s{sW}, 1")
A(f"s_lshr_b32 s{s_wf}, s{sW}, 1")
h = vT[5]; t = vT[6]; tq = vT[7]; e = vT[8]; f = vT[9]
A(f"v_lshrrev_b32 v{h}, 5, v{v_lane}")
A(f"v_and_b32 v{d}, 1, v{b}")
A(f"v_lshlrev_b32 v{e}, 2, v{d}")
A(f"v_xor_b32 v{e}, v{c}, v{e}")
A(f"v_lshlrev_b32 v{e}, 4, v{e}")
A(f"v_lshl_add_u32 v{vD2[0]}, v{a}, 10, v{e}")
for i in range(1, 4):
    A(f"v_add_u32 v{vD2[i]}, {i*7168}, v{vD2[0]}")
A(f"v_and_b32 v{e}, 31, v{v_lane}")
A(f"s_lshl_b32 s{s_t0}, s{s_wm}, 12\ns_add_u32 s{s_t0}, s{s_t0}, {XA}")
A(f"v_lshl_add_u32 v{e}, v{e}, 7, s{s_t0}")
A(f"v_bfe_u32 v{f}, v{v_lane}, 1, 3")
A(f"v_xor_b32 v{f}, v{f}, v{h}")
A(f"v_lshl_add_u32 v{vRX[0]}, v{f}, 4, v{e}")
for s in range(1, 4):
    A(f"v_xor_b32 v{vRX[s]}, {32*s}, v{vRX[0]}")
A(f"v_and_b32 v{e}, 3, v{v_lane}")
A(f"v_lshlrev_b32 v{e}, 3, v{e}")
A(f"v_lshl_add_u32 v{e}, v{d}, 5, v{e}")
A(f"v_bfe_u32 v{tq}, v{v_lane}, 2, 2")
A(f"v_lshl_add_u32 v{f}, v{h}, 3, v{tq}")
A(f"v_lshl_add_u32 v{f}, v{f}, 8, v{e}")
A(f"s_and_b32 s{s_t0}, s{sW}, 2")
A(f"v_xor_b32 v{t}, s{s_t0}, v{tq}")
A(f"v_lshl_add_u32 v{vRW[0]}, v{t}, 6, v{f}")
A(f"v_xor_b32 v{vRW[1]}, 64, v{vRW[0]}")
A(f"v_lshl_add_u32 v{f}, v{h}, 2, v{tq}")
A(f"v_lshl_add_u32 v{f}, v{f}, 7, v{e}")
A(f"v_bfe_u32 v{t}, v{v_lane}, 3, 1")
A(f"v_lshl_add_u32 v{f}, v{t}, 6, v{f}")
A(f"v_add_u32 v{vR2[0][0]}, s{s_ld}, v{f}")
A(f"v_xor_b32 v{vR2[0][1]}, 64, v{vR2[0][0]}")
for q in (1, 2):
    for ni in range(2): A(f"v_add_u32 v{vR2[q][ni]}, {65536*q}, v{vR2[0][ni]}")
A(f"v_lshlrev_b32 v{v_l16}, 4, v{v_lane}")
A(f"v_lshlrev_b32 v{v_bo}, 1, v{v_lane}")
A(f"v_lshl_add_u32 v{v_bo}, v{h}, 16, v{v_bo}")
for i in (1, 2, 3, 5, 6, 7, 9, 10, 11): A(f"v_mov_b32 v{BIAS+i}, 0")
A(f"v_xor_b32 v{BIAS+8}, 1, v{h}")
A(f"v_mul_u32_u24 v{BIAS+8}, 0x3f80, v{BIAS+8}")
A(f"v_mov_b32 v{v_one}, 1")
A(f"v_lshlrev_b32 v{v_l4}, 2, v{v_lane}")
A(f"s_lshl1_add_u32 s{s_t0}, s{s_mt}, s{s_fg}\ns_lshl_b32 s{s_t0}, s{s_t0}, 2")
A(f"s_and_b32 s{s_t1}, s{s_m64}, 30\ns_add_u32 s{s_t1}, s{s_t1}, s{s_wf}\ns_lshl_b32 s{s_t1}, s{s_t1}, 2")
A(f"s_sub_u32 s{s_t1}, s{s_t1}, s{s_t0}")
A(f"v_mul_lo_u32 v{v_armoff}, v{h}, s{s_t1}")
A(f"v_add_u32 v{v_armoff}, s{s_t0}, v{v_armoff}")
A(f"v_and_b32 v{e}, 15, v{v_lane}")
A(f"v_lshl_add_u32 v{e}, v{e}, 8, s{s_ld}")
A(f"v_lshl_add_u32 v{e}, v{d}, 14, v{e}")
A(f"v_xor_b32 v{f}, v{c}, v{h}")
A(f"v_lshl_add_u32 v{v_redw}, v{f}, 4, v{e}")
A(f"s_lshl_b32 s{s_t0}, s{s_wf}, 14\ns_lshl_b32 s{s_t1}, s{s_wm}, 11\ns_add_u32 s{s_t0}, s{s_t0}, s{s_t1}")
A(f"v_lshl_add_u32 v{e}, v{a}, 8, s{s_t0}")
A(f"v_lshlrev_b32 v{f}, 1, v{c}")
A(f"v_xor_b32 v{f}, v{f}, v{a}")
A(f"v_lshl_add_u32 v{v_redr}, v{f}, 4, v{e}")
A(f"v_lshlrev_b32 v{e}, 4, v{c}")
A(f"v_lshl_add_u32 v{v_outo}, v{a}, 10, v{e}")
A(f"s_mul_i32 s{s_w2base}, s{sW}, 3584\ns_add_u32 s{s_w2base}, s{s_w2base}, s{s_nt}\ns_lshl_b32 s{s_w2base}, s{s_w2base}, 7")
for j in range(4):
    A(f"s_add_u32 s{s_t0}, s{s_ml}, {j}\ns_and_b32 s{s_t0}, s{s_t0}, 3\ns_lshl_b32 s{s_t0}, s{s_t0}, 15\ns_add_u32 s{s_wb[j]}, s{s_w2base}, s{s_t0}")
A(f"s_lshl1_add_u32 s{s_t0}, s{s_mt}, s{s_wm}")
A(f"s_mul_i32 s{s_t0}, s{s_t0}, {2*M32S}")
A(f"s_lshl1_add_u32 s{s_t1}, s{s_ft}, s{s_wf}")
A(f"s_lshl_b32 s{s_actst}, s{s_t1}, 12\ns_add_u32 s{s_actst}, s{s_actst}, s{s_t0}")
A(f"s_lshl_b32 s{s_t1}, s{s_t1}, 7")
A(f"s_add_u32 s{s_flagP}, s{s_t1}, s{s_t0}\ns_add_u32 s{s_flagP}, s{s_flagP}, {FLAGOFF}")
A(f"s_mul_i32 s{s_t0}, s{s_m64}, {2*M32S}")
A(f"s_mul_i32 s{s_flagC}, s{sW}, 896\ns_add_u32 s{s_flagC}, s{s_flagC}, s{s_t0}\ns_add_u32 s{s_flagC}, s{s_flagC}, {FLAGOFF}")
A(f"s_mul_i32 s{s_actld}, s{sW}, 28672\ns_add_u32 s{s_actld}, s{s_actld}, s{s_t0}")
A(f"s_lshl3_add_u32 s{s_outb}, s{s_m64}, s{sW}\ns_lshl_b32 s{s_outb}, s{s_outb}, 6\ns_add_u32 s{s_outb}, s{s_outb}, s{s_nt}\ns_lshl_b32 s{s_outb}, s{s_outb}, 7")
A(f"s_mov_b32 s{s_cl2e}, 0xbfb8aa3b\ns_mov_b32 s{s_cl2e+1}, s{s_cl2e}")
A(f"s_mov_b32 s{s_half}, 0.5\ns_mov_b32 s{s_half+1}, 0.5")
A(f"s_mov_b32 s{s_spin}, 0")
A(f"s_cmp_eq_u32 s{s_fl}, 7")
A("s_cbranch_scc1 L_spare")
stamp("setup")
if args.dbg == "nostore": A(f"s_mov_b32 s{sA+2}, 0\ns_mov_b32 s{s_spin}, 300000")
A(m0row(1))
A("s_nop 0")
for i in range(4): A(dma(vDW[i], sWW, s_soW, i)); vm("c1")
for fi in range(2):
    A(f"buffer_load_ushort v{BIAS+4*fi}, v{v_bo}, {srd(sB)}, s{s_t1} offen offset:{64*fi}"); vm("c1")

order = args.order.split()
assert len(order) == 14 and len(set(order)) == 14
NE = args.ne
assert NE <= 2
PB2 = args.pbars == 2
free_rows = [(2, "B6"), (0, "B7"), (1, "P0"), (3, "P0"), (5, "P2" if PB2 else "P1"), (6, "P2"), (7, "F" if PB2 else "P3"), (4, "F")]
rowinfo = [(9, ""), (8, "")] + free_rows
rows = [r for r, _ in rowinfo] + [r for r, _ in rowinfo[:4]]
rowreq = [q for _, q in rowinfo] + ["R"] * 4
def xboff(j): return ((j >> 1) + 1) % 4 * 16384 + (j & 1) * 8192
passed = set([""])
def gaddr(dst, p, bases, base0, shift):
    nm = order[p]
    if nm[0] == "S": return f"s_add_u32 s{dst}, s{base0}, {((12 + int(nm[1])) * 32768) >> shift}"
    t_, j = "abc".index(nm[0]), int(nm[1])
    return f"s_add_u32 s{dst}, s{bases[j]}, {(t_ * 131072) >> shift}"
stream = []
for j in range(2, 8):
    rq = f"B{j-2}" if j > 2 else ""
    for i in range(2):
        stream.append(((m0x(XA + (j % 3) * 8192) + "\n" + soffX(j)) if i == 0 else None, dma(vDX[i], sX_, s_soX, i), f"c{j}", rq))
    for i in range(4):
        stream.append(((m0row(j % 3) + "\n" + soffW()) if i == 0 else None, dma(vDW[i], sWW, s_soW, i), f"c{j}", rq))
for j in range(8):
    for i in range(2):
        pre = None
        if i == 0:
            pre = m0x(XB + xboff(j)) + "\n" + (f"s_add_u32 s{s_xbase}, s{s_xbase}, 32768\n" if j == 0 else "") + soffX(j)
        stream.append((pre, dma(vDX[i], sX_, s_soX, i), f"x{(j >> 2) * 2 if PB2 else j >> 1}", "B6" if j >= 6 else ""))
for p in range(NE, 14):
    for i in range(4):
        stream.append(((m0row(rows[p]) + "\n" + gaddr(s_soX, p, s_wb, s_w2base, 0)) if i == 0 else None, dma(vD2[i], sW2, s_soX, i), f"g{p}", rowreq[p]))
early = [(p, i) for p in range(NE) for i in range(4)]
esteps = [args.e0 + (k * (args.e1 - args.e0)) // max(1, len(early) - 1) for k in range(len(early))]
def can_issue(): return bool(stream) and stream[0][3] in passed
def pre_next():
    if not stream: return
    p, i_, tg, rq = stream[0]
    if p: A(p); stream[0] = (None, i_, tg, rq)
def dma_next():
    p, i_, tg, rq = stream.pop(0)
    assert rq in passed, (tg, rq)
    if p: A(p)
    A(i_); vm(tg)
w2full = [e_ for e_ in stream if e_[2][0] == "g"]

def xf(n): return XF + 4 * (n % 4)
def rd_x(n):
    ch, s = divmod(n % 32, 4)
    off = (ch % 3) * 8192 if n < 32 else xboff(ch)
    lg(f"ds_read_b128 v[{xf(n)}:{xf(n)+3}], v{vRX[s]} offset:{off}", f"x{n}")
def rd_w(n, fi):
    ch, s = divmod(n, 4)
    for a_ in range(2):
        r = n * 8 + 4 * fi + 2 * a_
        lg(f"ds_read_b64_tr_b16 a[{r}:{r+1}], v{vRW[fi]} offset:{(ch % 3)*16384+4096*s+1024*a_}", f"w{n}_{fi}")
def mfma1(n, fi):
    mi = n // 32; D = acc(mi, fi); wr = (n % 32) * 8 + 4 * fi
    C = "0" if n == 0 else f"v[{D}:{D+15}]"
    A(f"v_mfma_f32_32x32x16_bf16 v[{D}:{D+15}], a[{wr}:{wr+3}], v[{xf(n)}:{xf(n)+3}], {C}")
def mfma_bias(mi, fi):
    D = acc(mi, fi); C = f"v[{D}:{D+15}]" if mi == 0 else "0"
    A(f"v_mfma_f32_32x32x16_bf16 v[{D}:{D+15}], v[{BIAS+4*fi}:{BIAS+4*fi+3}], v[{BIAS+8}:{BIAS+11}], {C}")
P = lambda r: f"v[{r}:{r+1}]"
def mish_frag(mi, fi, s, tb, ob, pk):
    hb = acc(mi, fi) + 8 * s
    U, N, D = tb, tb + 8, tb + 16
    o = []
    if pk:
        for p in range(4): o.append((f"v_pk_mul_f32 {P(U+2*p)}, {P(hb+2*p)}, s[{s_cl2e}:{s_cl2e+1}]", 5))
        for i in range(8): o.append((f"v_exp_f32 v{U+i}, v{U+i}", 8))
        for p in range(4): o.append((f"v_pk_add_f32 {P(N+2*p)}, {P(U+2*p)}, s[{s_half}:{s_half+1}]", 5))
        for p in range(4): o.append((f"v_pk_fma_f32 {P(D+2*p)}, {P(U+2*p)}, {P(U+2*p)}, {P(N+2*p)}", 5))
        for i in range(8): o.append((f"v_rcp_f32 v{D+i}, v{D+i}", 8))
        for p in range(4): o.append((f"v_pk_mul_f32 {P(N+2*p)}, {P(N+2*p)}, {P(D+2*p)} clamp", 5))
        for p in range(4): o.append((f"v_pk_mul_f32 {P(N+2*p)}, {P(N+2*p)}, {P(hb+2*p)}", 5))
        for p in range(4): o.append((f"v_cvt_pk_bf16_f32 v{ob+p}, v{N+2*p}, v{N+2*p+1}", 5))
    else:
        st = [lambda i: (f"v_mul_f32 v{U+i}, s{s_cl2e}, v{hb+i}", 4),
              lambda i: (f"v_exp_f32 v{U+i}, v{U+i}", 8),
              lambda i: (f"v_add_f32 v{N+i}, 0.5, v{U+i}", 4),
              lambda i: (f"v_fma_f32 v{D+i}, v{U+i}, v{U+i}, v{N+i}", 5),
              lambda i: (f"v_rcp_f32 v{D+i}, v{D+i}", 8),
              lambda i: (f"v_mul_f32 v{N+i}, v{N+i}, v{D+i} clamp", 5),
              lambda i: (f"v_mul_f32 v{N+i}, v{N+i}, v{hb+i}", 4),
              lambda i: (f"v_cvt_pk_bf16_f32 v{ob+i//2}, v{N+i-1}, v{N+i}", 5) if i & 1 else None]
        for tt in range(8 + 7):
            for k in range(7, -1, -1):
                i = tt - k
                if 0 <= i < 8 and st[k](i): o.append(st[k](i))
        for x, y in zip(o, o[1:]):
            if x[0].startswith(("v_exp", "v_rcp")):
                dst = x[0].split()[1].rstrip(",")
                assert dst not in [z.strip(",") for z in y[0].split()[2:]], (x, y)
    return o
OUTB = MT + 24
def st_act(mi, fr):
    ob = OUTB + 16 * mi + 4 * fr
    A(f"buffer_store_dwordx4 v[{ob}:{ob+3}], v{v_l16}, {srd(sA)}, s{s_actst} offen offset:{1024*fr} {args.stfl}"); vm(f"st{mi}")
def arm_load(): A(f"buffer_load_dword v{v_arm}, v{v_armoff}, {srd(sD)}, 0 offen sc1")

mA = []
if args.cskew:
    U, N, D = MT, MT + 8, MT + 16
    hb = acc(0, 0)
    st = [lambda i: (f"v_mul_f32 v{U+i%8}, s{s_cl2e}, v{hb+i}", 4),
          lambda i: (f"v_exp_f32 v{U+i%8}, v{U+i%8}", 8),
          lambda i: (f"v_add_f32 v{N+i%8}, 0.5, v{U+i%8}", 4),
          lambda i: (f"v_fma_f32 v{D+i%8}, v{U+i%8}, v{U+i%8}, v{N+i%8}", 5),
          lambda i: (f"v_rcp_f32 v{D+i%8}, v{D+i%8}", 8),
          lambda i: (f"v_mul_f32 v{N+i%8}, v{N+i%8}, v{D+i%8} clamp", 5),
          lambda i: (f"v_mul_f32 v{N+i%8}, v{N+i%8}, v{hb+i}", 4),
          lambda i: (f"v_cvt_pk_bf16_f32 v{OUTB+i//2}, v{N+(i-1)%8}, v{N+i%8}", 5) if i & 1 else None]
    pend = []
    for tt in range(32 + 7):
        for k in (7, 1, 6, 5, 3, 4, 2, 0):
            i = tt - k
            if 0 <= i < 32 and st[k](i):
                mA.append(st[k](i))
                if k == 7 and i % 8 == 7:
                    fr = i // 8
                    if args.burstA == 0: mA.append(("ST", fr))
                    elif args.burstA == 1 and fr == 3: mA += [("ST", q) for q in range(4)]
                    elif args.burstA == 2 and fr & 1: mA += [("ST", fr - 1), ("ST", fr)]
    real = [x for x in mA if x[0] != "ST"]
    for x, y in zip(real, real[1:]):
        if x[0].startswith(("v_exp", "v_rcp")):
            dst = x[0].split()[1].rstrip(",")
            assert dst not in [z.strip(",") for z in y[0].split()[2:]], (x, y)
else:
  for fr in range(4):
    mA += mish_frag(0, fr >> 1, fr & 1, MT, OUTB + 4 * fr, args.pkA)
    if args.burstA == 0: mA += [("ST", fr)]
    elif args.burstA == 1 and fr == 3: mA += [("ST", q) for q in range(4)]
    elif args.burstA == 2 and fr & 1: mA += [("ST", fr - 1), ("ST", fr)]
totA = sum(c_ for i_, c_ in mA if i_ != "ST")
ngaps = 2 * (args.m1step - args.m0step + 1)
doneA = [0]
def mishA_gap(g):
    target = totA * (g + 1) / ngaps
    while mA and (doneA[0] < target - 2 or mA[0][0] == "ST"):
        i_, c_ = mA.pop(0)
        if i_ == "ST": st_act(0, c_)
        else: A(i_); doneA[0] += c_

dma_next(); dma_next()
wait_vm("c0")
stamp("c0_land")
A("s_barrier"); passed.add("B0")
for n in range(2):
    rd_x(n); rd_w(n, 0); rd_w(n, 1)
entered = False
nbar = [0]
for n in range(64):
    nx = n + 2
    bar = None
    if nx < 32 and nx % 4 == 0: bar = (f"B{nx//4}", f"c{nx//4}")
    if 32 <= nx < 64 and (nx - 32) % (16 if PB2 else 8) == 0: bar = (f"P{(nx-32)//8}", f"x{(nx-32)//8}")
    if nx == 64: bar = ("F", None)
    wait_lg(f"w{n}_0" if n < 32 else f"x{n}")
    mfma1(n, 0)
    if n == 6:
        for mi_, fi_ in ((1, 0), (1, 1), (0, 1), (0, 0)): mfma_bias(mi_, fi_)
    if nx == 32:
        for r in vRX: A(f"v_add_u32 v{r}, {XB - XA}, v{r}")
    if bar:
        if not entered and bar[0] == "P0":
            assert not any(t_.startswith("g") and int(t_[1:]) >= NE for t_ in vmq)
            A("L_enter:"); entered = True
        if bar[1]:
            while any(e_[2] == bar[1] for e_ in stream): dma_next()
            if args.itst: A("s_memtime s[4:5]")
            wait_vm(bar[1])
        if args.itst: A("s_memtime s[6:7]")
        wait_lg0()
        if args.itst:
            A(f"v_writelane_b32 v60, s4, {nbar[0]}\nv_writelane_b32 v61, s6, {nbar[0]}"); nbar[0] += 1
        A("s_barrier"); passed.add(bar[0])
        if bar[0] == "P0": stamp("P0")
    if nx < 64: rd_x(nx)
    if nx < 32: rd_w(nx, 0)
    def loads(g):
        kind = stream[0][2][0] if stream else ""
        if kind == "c":
            if can_issue(): dma_next()
        elif kind == "x":
            for _ in range((args.xbper + 1 - (g & 1)) // 2):
                if stream[0][2][0] == "x" and can_issue(): dma_next()
        elif kind == "g" and entered:
            if g % args.w2gap == 0 and can_issue(): dma_next()
    if n >= 32 and args.m0step <= n - 32 <= args.m1step: mishA_gap(2 * (n - 32 - args.m0step))
    loads(2 * n)
    if n < 32: wait_lg(f"w{n}_1")
    ex = n in esteps
    if ex:
        p, i = early.pop(0)
        A(f"s_mov_b32 s{s_m0s}, m0")
        A(m0row(rows[p]))
    mfma1(n, 1)
    if ex:
        if i == 0: A(gaddr(s_so2, p, s_wb, s_w2base, 0))
        A(dma(vD2[i], sW2, s_so2, i)); vm(f"g{p}")
        A(f"s_mov_b32 m0, s{s_m0s}")
    if nx < 32: rd_w(nx, 1)
    if n == 31: stamp("pAdone")
    if n == args.armstep: arm_load(); vm("arm")
    if n >= 32 and args.m0step <= n - 32 <= args.m1step: mishA_gap(2 * (n - 32 - args.m0step) + 1)
    if not ex: loads(2 * n + 1)
    elif nx >= 32: A("s_nop 0")
    if can_issue() and (entered or stream[0][2][0] != "g"): pre_next()
assert not early and not mA
stamp("p1done")
p1end = len(L)

def w2_reads(p):
    out = []
    r_ = rows[p]
    for i in range(4):
        j = 4 * p + i; ks, a_ = j >> 1, j & 1
        for ni in range(2):
            r = (ks * 2 + ni) * 4 + 2 * a_
            out.append(f"ds_read_b64_tr_b16 a[{r}:{r+1}], v{vR2[r_ >> 2][ni]} offset:{(r_ & 3)*16384+1024*i}")
    return out
def flag(stage):
    if stage == 1: A(f"s_add_u32 s{s_flagP}, s{s_flagP}, {M32S}")
    A("s_mov_b32 exec_hi, 0")
    A(f"buffer_store_dword v{v_one}, v{v_l4}, {srd(sA)}, s{s_flagP} offen sc1")
    A("s_mov_b32 exec_hi, -1")
def poll_issue():
    for i in range(7): A(f"s_buffer_load_dword s{s_pl[i]}, {srd(sL)}, s{s_flagC} offset:{128*i} glc")
cold = []
def spin_check(lbl, reissue, pre=None):
    A(f"{lbl}:")
    if lbl != "L_arm":
        A("s_waitcnt lgkmcnt(0)")
        for i in range(1, 7): A(f"s_and_b32 s{s_pl[0]}, s{s_pl[0]}, s{s_pl[i]}")
    else:
        A(f"v_cmp_eq_u32 vcc, 1, v{v_arm}")
        A("s_nop 0")
        A("s_cmp_eq_u64 vcc, -1")
    A(f"s_cbranch_scc0 {lbl}_slow")
    A(f"{lbl}_ok:")
    cold.append((lbl, reissue, pre))
A(f"s_add_u32 s{s_actst}, s{s_actst}, {M32S}")
if args.armstep >= 64: arm_load(); vm("arm")
else: A("s_nop 0")
A("s_nop 8")
nextp = [0]; rq = []; vm_known = [0]
def note_wait(tag):
    wait_vm(tag); vm_known[0] = max(vm_known[0], max(i for i, t in enumerate(vmq) if t == tag) + 1)
def queue_pos(force=False, age=12):
    p = nextp[0]
    if p >= 14 or vmq.count(f"g{p}") < 4: return False
    last = max(i for i, t in enumerate(vmq) if t == f"g{p}")
    if last >= vm_known[0]:
        if not force and len(vmq) - 1 - last < age: return False
        note_wait(f"g{max(p, NE)}")
    rq.extend((r, f"q{p}") for r in w2_reads(p)); nextp[0] += 1
    return True
def fill(k, age=12):
    for _ in range(k):
        if not rq and not queue_pos(age=age): return
        r, tg = rq.pop(0); lg(r, tg)
def need_pos(p):
    while nextp[0] <= p: assert queue_pos(force=True)
    while any(tg == f"q{p}" for _, tg in rq):
        r, tg = rq.pop(0); lg(r, tg)
    wait_lg(f"q{p}")
passed.add("R")
def dma_next2():
    tg = stream[0][2]
    if stream[0][3] == "R": need_pos(int(tg[1:]) - 10)
    dma_next()
nm = args.nmish
slotset = set(int((k + 0.5) * 160 / nm) for k in range(nm)) if nm else set()
def pubA():
    note_wait(max(("arm", "st0"), key=lambda tg: max(i for i, t in enumerate(vmq) if t == tg)))
    spin_check("L_arm", arm_load)
    flag(0); vm("flagA")
    stamp("flagA")
ND = args.ndefer
absc = []
for j in range(4):
    absc += [f"s_sub_u32 s{s_ab[j]}, s{s_wb[j]}, s{s_w2base}", f"s_lshr_b32 s{s_ab[j]}, s{s_ab[j]}, 4", f"s_add_u32 s{s_ab[j]}, s{s_ab[j]}, s{s_actld}"]
for fr in range(4):
    if fr == args.flagApos: pubA()
    body = mish_frag(1, fr >> 1, fr & 1, MT, OUTB + 16 + 4 * fr, 1)
    for n, (ins, _) in enumerate(body):
        A(ins)
        if fr * 40 + n in slotset and len(stream) > ND: dma_next2()
        if n % 4 == 1 and (rq or nextp[0] < args.rdmish): fill(1, 16)
    if not args.burstB: st_act(1, fr)
if args.burstB:
    for fr in range(4): st_act(1, fr)
stamp("mish1")
if args.flagApos >= 4: pubA()
if args.lean:
    assert stream[0][0] is not None or w2full[len(w2full) - len(stream)][0] is None
    A("L_enter2:")
    lean_dma = w2full[:len(w2full) - len(stream)]
    lean_rds = [x.strip() for x in L[p1end:] if "ds_read_b64_tr_b16 a[" in x]
polled = len(stream) <= ND + args.npoll
if polled: poll_issue()
k = 0
flagB_done = False
def maybe_flagB():
    global flagB_done
    if not flagB_done and k >= args.nb:
        note_wait("st1"); flag(1); vm("flagB"); flagB_done = True
        stamp("flagB")
while len(stream) > ND:
    dma_next2(); k += 1; maybe_flagB(); fill(4)
    if len(stream) == ND + args.npoll and not polled: poll_issue(); polled = True
for x in absc: A(x)
if not flagB_done: A(f"s_mov_b32 s{s_t1}, 0")
fill(16)
stamp("w2iss")
spin_check("L_pollA", poll_issue, pre=None if flagB_done else "B"); lg_done[0] = len(lgq)
stamp("pollA")
DEP = args.depth
NF = 56
def af(i): return AF + 4 * (i % NRING)
def act_load(i):
    mi, ks = divmod(i, 28)
    if i == 28:
        spin_check("L_pollB", poll_issue); lg_done[0] = len(lgq)
        for r in s_ab + [s_actld]: A(f"s_add_u32 s{r}, s{r}, {M32S}")
    if ks % 2 == 0: A(gaddr(s_so, ks >> 1, s_ab, s_actld, 4))
    A(f"buffer_load_dwordx4 v[{af(i)}:{af(i)+3}], v{v_l16}, {srd(sL)}, s{s_so} offen offset:{(ks%2)*1024} sc1"); vm(f"a{i}")
nd = len(stream)
ops = []
for i in range(NF):
    ops.append(("a", i))
    while nd and sum(1 for o in ops if o[0] == "d") < min(nd, -(-nd * (i + 1) // args.dspan)): ops.append(("d", 0))
opi = [0]
def issue_upto(j):
    global k
    while opi[0] <= min(j, len(ops) - 1):
        o = ops[opi[0]]; opi[0] += 1
        if o[0] == "a": act_load(o[1])
        else: dma_next2()
        k += 1; maybe_flagB()
        if opi[0] <= DEP: fill(6)
issue_upto(DEP - 1)
PB = 28 - DEP - 8
redw = [(ni, g) for ni in range(2) for g in range(4)]
R = 192
def red_reads(mi, base):
    o = []
    for src in range(4):
        for e_ in range(2):
            r = base + 8 * src + 4 * e_
            o.append(f"ds_read_b128 v[{r}:{r+3}], v{[v_redr, vT[4]][e_]} offset:{src*4096 + 32768*mi}")
    return o
def red_math(b_):
    o1 = [f"v_pk_add_f32 {P(b_+2*p)}, {P(b_+2*p)}, {P(b_+8+2*p)}" for p in range(4)]
    o2 = [f"v_pk_add_f32 {P(b_+16+2*p)}, {P(b_+16+2*p)}, {P(b_+24+2*p)}" for p in range(4)]
    o2 += [f"v_pk_add_f32 {P(b_+2*p)}, {P(b_+2*p)}, {P(b_+16+2*p)}" for p in range(4)]
    o2 += [f"v_cvt_pk_bf16_f32 v{b_+8+p}, v{b_+2*p}, v{b_+2*p+1}" for p in range(4)]
    return o1, o2
def red_math_np(b_):
    o = [f"v_add_f32 v{b_+i}, v{b_+i}, v{b_+8+i}" for i in range(8)]
    o += [f"v_add_f32 v{b_+16+i}, v{b_+16+i}, v{b_+24+i}" for i in range(8)]
    o += [f"v_add_f32 v{b_+i}, v{b_+i}, v{b_+16+i}" for i in range(8)]
    o += [f"v_cvt_pk_bf16_f32 v{b_+8+p}, v{b_+2*p}, v{b_+2*p+1}" for p in range(4)]
    return o
def out_store(b_):
    A(f"buffer_store_dwordx4 v[{b_+8}:{b_+11}], v{v_outo}, {srd(sB)}, s{s_outb} offen {args.outsc}")
side = []
TJ = args.tailj
def p2mfma(i, ni):
    mi, ks = divmod(i, 28)
    D = acc(mi, ni); wr = (ks * 2 + ni) * 4
    C = "0" if ks == 0 else f"v[{D}:{D+15}]"
    A(f"v_mfma_f32_32x32x16_bf16 v[{D}:{D+15}], a[{wr}:{wr+3}], v[{af(i)}:{af(i)+3}], {C}")
def redwr(mi, ni, g):
    va = v_redw if g == 0 else vT[g]
    r = acc(mi, ni) + 4 * g
    A(f"ds_write_b128 v{va}, v[{r}:{r+3}] offset:{32768*mi+128*ni}")
for i in range(NF):
    mi, ks = divmod(i, 28)
    note_wait(f"a{i}")
    if i == 0: stamp("a0")
    if mi == 0 and ks % 2 == 0: need_pos(ks >> 1)
    for ni in range(2 if i < NF - TJ else 1):
        p2mfma(i, ni)
        fill(2)
        for _ in range(3):
            if side: A(side.pop(0))
    if i == PB:
        A(f"s_add_u32 s{s_flagC}, s{s_flagC}, {M32S}")
        poll_issue()
    if i + 1 < NF: issue_upto(ops.index(("a", i + 1)) + DEP - 1)
    if i == 26:
        for gg in range(1, 4): A(f"v_xor_b32 v{vT[gg]}, {32*gg}, v{v_redw}")
        A(f"s_mov_b32 s{sB}, s12\ns_mov_b32 s{sB+1}, s13\ns_mov_b32 s{sB+2}, 2097152")
        A(f"v_xor_b32 v{vT[4]}, 16, v{v_redr}")
    if mi == 1 and 3 <= ks < 11: redwr(0, *redw[ks - 3])
    if i == args.redi:
        A("s_waitcnt lgkmcnt(0)")
        A("s_barrier")
        side = red_reads(0, R)
    if i == args.redi + 3:
        A("s_waitcnt lgkmcnt(0)")
        side = red_math_np(R)
    if i == args.redi + 9:
        assert not side and opi[0] >= len(ops)
        out_store(R); vm("o")
        A(f"s_add_u32 s{s_outb}, s{s_outb}, 32768")
assert flagB_done and not stream
wl = list(range(4)) if TJ else []
for j, i in enumerate(range(NF - TJ, NF)):
    p2mfma(i, 1)
    if j == 0: A("s_nop 4")
    if j == 1: A("s_nop 4")
    if j >= 1 and wl and j < TJ - 1: redwr(1, 0, wl.pop(0))
stamp("p2done")
nst = 0
while wl: redwr(1, 0, wl.pop(0)); nst += 1
if TJ:
    A(f"s_nop {11 - nst}")
    for g in range(4): redwr(1, 1, g)
else:
    A("s_nop 10")
    for ni, g in redw: redwr(1, ni, g)
A("s_waitcnt lgkmcnt(0)")
A("s_barrier")
mis = [1] if args.redA else [0, 1]
for mi in mis:
    for r in red_reads(mi, 128 + 32 * mi): A(r)
for j, mi in enumerate(mis):
    b_ = 128 + 32 * mi
    rem = 8 * (len(mis) - 1 - j)
    o1, o2 = red_math(b_)
    A(f"s_waitcnt lgkmcnt({rem + 4})")
    for x in o1: A(x)
    A(f"s_waitcnt lgkmcnt({rem})")
    for x in o2: A(x)
    if mi == 1 and not args.redA: A(f"s_add_u32 s{s_outb}, s{s_outb}, 32768")
    out_store(b_)
if args.stamps:
    A("s_waitcnt vmcnt(0)")
    stamp("end")
    A("s_memrealtime s[12:13]")
    A("s_waitcnt lgkmcnt(0)")
    n = len(stamp_names)
    A("v_mov_b32 v64, s100\nv_mov_b32 v65, s12")
    for i in range(n): A(f"v_mov_b32 v{66+i}, s{stamp_regs[i]}")
    A(f"v_mov_b32 v{66+n}, s{s_spin}")
    A(f"s_mov_b32 s{sL+2}, 0x10000000")
    A(f"s_lshl_b32 s{s_t0}, s2, 2\ns_add_u32 s{s_t0}, s{s_t0}, s{sW}\ns_lshl_b32 s{s_t0}, s{s_t0}, 7\ns_add_u32 s{s_t0}, s{s_t0}, {STAMP_OFF}")
    if args.itst:
        A("s_mov_b64 exec, 0xfff")
        A(f"s_add_u32 s{s_t1}, s{s_t0}, {1<<20}")
        for q, r in enumerate((60, 61)): A(f"buffer_store_dword v{r}, v{v_l4}, {srd(sL)}, s{s_t1} offen offset:{48*q}")
    A("s_mov_b64 exec, 1")
    for q in range(5):
        A(f"buffer_store_dwordx4 v[{64+4*q}:{67+4*q}], off, {srd(sL)}, s{s_t0} offset:{16*q}")
if args.pad:
    A("s_waitcnt vmcnt(0)")
    stamp("end")
    A("s_waitcnt lgkmcnt(0)")
    A("s_sub_u32 s84, s82, s80")
    A(f"s_cmp_eq_u32 s{s_fl}, 7")
    A("s_cselect_b32 s84, 0, s84")
    if args.padwg >= 0:
        A(f"s_cmp_eq_u32 s2, {args.padwg}")
        A("s_cselect_b32 s84, s84, 0")
    A("s_min_u32 s84, s84, 10000")
    A("s_add_u32 s84, s84, 4000")
    A("L_pad:")
    A("s_memrealtime s[86:87]")
    A("s_waitcnt lgkmcnt(0)")
    A("s_sub_u32 s85, s86, s80")
    A("s_cmp_lt_u32 s85, s84")
    A("s_cbranch_scc1 L_pad")
A("L_end:")
A("s_endpgm")
for lbl, reissue, pre in cold:
    A(f"{lbl}_slow:")
    if pre:
        A(f"s_cmp_lg_u32 s{s_t1}, 0")
        A(f"s_cbranch_scc1 {lbl}_s2")
        A(f"s_mov_b32 s{s_t1}, 1")
        A("s_waitcnt vmcnt(0)")
        A(f"s_add_u32 s{s_t0}, s{s_flagP}, {M32S}")
        A("s_mov_b32 exec_hi, 0")
        A(f"buffer_store_dword v{v_one}, v{v_l4}, {srd(sA)}, s{s_t0} offen sc1")
        A("s_mov_b32 exec_hi, -1")
        A(f"{lbl}_s2:")
    A(f"s_add_u32 s{s_spin}, s{s_spin}, 1")
    A(f"s_cmp_ge_u32 s{s_spin}, 200000")
    A(f"s_cbranch_scc1 {lbl}_ok")
    if args.sleep: A(f"s_sleep {args.sleep}")
    reissue()
    if lbl == "L_arm": A("s_waitcnt vmcnt(0)")
    A(f"s_branch {lbl}")
A("L_spare:")
A(f"s_cmp_lg_u32 s{sW}, 0")
A("s_cbranch_scc1 L_spare2")
A(f"v_and_b32 v{vT[12]}, 15, v{v_lane}")
A(f"v_min_u32 v{vT[12]}, 13, v{vT[12]}")
A(f"v_lshlrev_b32 v{vT[12]}, 7, v{vT[12]}")
A(f"s_mov_b32 s{s_t0}, {M32S}")
A(f"v_mul_lo_u32 v{vT[13]}, v{b}, s{s_t0}")
A(f"v_add_u32 v{vT[12]}, v{vT[12]}, v{vT[13]}")
A(f"s_mul_i32 s{s_t0}, s{s_mt}, {4*M32S}\ns_mul_i32 s{s_t1}, s{s_fg}, 1792\ns_add_u32 s{s_t0}, s{s_t0}, s{s_t1}\ns_add_u32 s{s_t0}, s{s_t0}, {FLAGOFF}")
A(f"v_mov_b32 v{vT[14]}, 0")
A(f"buffer_store_dword v{vT[14]}, v{vT[12]}, {srd(sA)}, s{s_t0} offen sc1")
A("L_spare2:")
A(f"s_mul_i32 s{s_t1}, s{s_ml}, 56\ns_add_u32 s{s_t1}, s{s_t1}, s{sW}\ns_lshl_b32 s{s_t1}, s{s_t1}, 13")
A(f"s_mul_i32 s{s_t2}, s{s_xcd}, 7\ns_lshr_b32 s{s_t2}, s{s_t2}, 2\ns_lshl_b32 s{s_t2}, s{s_t2}, 15\ns_add_u32 s{s_t2}, s{s_t2}, s{s_t1}")
def arm_now(n):
    A(f"s_cmp_lg_u32 s{sW}, 0")
    A("s_cbranch_scc1 L_spare3")
    A(f"s_waitcnt vmcnt({n})")
    A("s_mov_b64 exec, 1")
    A(f"buffer_store_dword v{v_one}, v{v_armoff}, {srd(sD)}, 0 offen sc1")
    A("s_mov_b64 exec, -1")
    A("L_spare3:")
armpos = min(args.armpos, len(spf))
for k_, op in enumerate(spf + [None]):
    if k_ == armpos: arm_now(armpos)
    if op is None: break
    if op in ("x1", "x2"):
        A(f"s_xor_b32 s{s_t0}, s{s_fg}, {int(op == 'x2')}\ns_lshl_b32 s{s_t0}, s{s_t0}, 13\ns_add_u32 s{s_t0}, s{s_t0}, s{s_xbase}")
        A(f"buffer_load_dword v{vT[24]}, v{vT[18]}, {srd(sX_)}, s{s_t0} offen")
    elif op[0] == "p":
        A(f"s_add_u32 s{s_t0}, s{s_t2}, {32768*int(op[1])}")
        A(f"buffer_load_dword v{vT[24]}, v{vT[18]}, {srd(sW2)}, s{s_t0} offen")
    elif op[0] == "S":
        A(f"s_add_u32 s{s_t0}, s{s_t1}, {32768*(12+int(op[1]))}")
        A(f"buffer_load_dword v{vT[24]}, v{vT[18]}, {srd(sW2)}, s{s_t0} offen")
A(f"s_mov_b32 s{sA+2}, 0")
for p in range(NE):
    A(m0row(rows[p])); A(gaddr(s_so2, p, s_wb, s_w2base, 0))
    for i in range(4): A(dma(vD2[i], sW2, s_so2, i))
if args.dbg == "nostore": A(f"s_mov_b32 s{s_spin}, 300000")
if args.lean:
    did = False
    for pre, ins, tg, rq_ in lean_dma + [(None, None, None, "R")]:
        if rq_ == "R" and not did:
            arm_load()
            nrd = (len(lean_rds) + 7) // 8
            n_issued = sum(1 for e_ in lean_dma if e_[3] != "R") + 4 * NE
            A(f"s_waitcnt vmcnt({n_issued - 4 * nrd + 1})")
            for x in lean_rds: A(x)
            A("s_waitcnt lgkmcnt(0)")
            did = True
        if ins:
            if pre: A(pre)
            A(ins)
    A("L_arm2:")
    A("s_waitcnt vmcnt(0)")
    A(f"v_cmp_eq_u32 vcc, 1, v{v_arm}")
    A(f"s_add_u32 s{s_spin}, s{s_spin}, 1")
    A("s_cmp_eq_u64 vcc, -1")
    A("s_cbranch_scc1 L_enter2")
    A(f"s_cmp_ge_u32 s{s_spin}, 200000")
    A("s_cbranch_scc1 L_enter2")
    arm_load()
    A("s_branch L_arm2")
else:
    A(f"s_mov_b32 s{s_soX}, 0")
    A(f"s_mov_b32 m0, {XB + 16384}")
    A("s_branch L_enter")
A("L_codeend:")
tail = f""".section .rodata,"a"
.p2align 6
.amdhsa_kernel {KN}
  .amdhsa_next_free_vgpr 512
  .amdhsa_next_free_sgpr 102
  .amdhsa_accum_offset 256
  .amdhsa_group_segment_fixed_size 0
  .amdhsa_kernarg_size 56
  .amdhsa_user_sgpr_count 2
  .amdhsa_user_sgpr_kernarg_segment_ptr 1
  .amdhsa_system_sgpr_workgroup_id_x 1
.end_amdhsa_kernel"""
print(hdr)
print("\n".join(L))
print(tail)
if args.stamps:
    print("; STAMPS: " + " ".join(stamp_names))
```

```python
import sys, argparse
ap = argparse.ArgumentParser()
I = lambda n, d: ap.add_argument("--" + n, type=int, default=d)
I("stamps", 0); I("rtst", 0); I("itst", 0); I("padwg", -1)
I("rot", 5); I("D", 1); I("nh", 0); I("h0", 3)
I("ne", 2); I("e0", 16); I("e1", 44)
I("w2gap", 2); I("nmish", 8); I("rdmish", 4); I("flagApos", 3); I("nb", 8); I("npoll", 8)
I("depth", 10); I("tailj", 6); I("redi", 41); I("armpos", 1); I("sleep", 0); I("biasfirst", 0); I("s2pre", 0); I("s2gap", 7)
ap.add_argument("--spf", default="p0 p1 S0 S1")
ap.add_argument("--order", default="a0 b0 c0 a1 a2 a3 S0 b1 b2 b3 S1 c1 c2 c3")
ap.add_argument("--outsc", default="nt")
ap.add_argument("--pad", default="")
ap.add_argument("--name", default="standalone__dense_activation_mish__prompt")
args = ap.parse_args()
KN = args.name + "_kernel"
D = args.D; NE = args.ne
assert 0 <= D <= 3 and NE <= 4

M32S = 118784; FLAGOFF = 114688; WS_SIZE = 64 * M32S; STAMP_OFF = 16 << 20
L = []
def A(s):
    for ln in s.split("\n"):
        L.append("    " + ln if not ln.endswith(":") else ln)

sW = 3
sX_, sWW, sB, sA, sL, sD, sW2 = 20, 24, 28, 32, 36, 40, 8
def srd(b): return f"s[{b}:{b+3}]"
s_mt, s_ft, s_fg, s_fl, s_m64, s_ml, s_wm, s_wf = 44, 45, 46, 47, 48, 49, 50, 51
s_nt = 19; s_bo = 18
s_ord, s_xbase, s_wbase, s_soX, s_soW, s_ld, s_so2, s_m0s = 53, 54, 55, 56, 57, 58, 59, 60
s_t2, s_t0, s_t1 = 61, 62, 63
s_wb = [64, 65, 66, 52]; s_ab = [48, 49, 50, 51]
s_actst, s_flagP, s_flagC, s_actld, s_spin, s_outb, s_xcd = 67, 68, 69, 70, 71, 72, 73
s_cl2e = 74; s_half = 76; s_so = 78; s_w2base = 79
s_pl = [53, 59, 60, 61, 44, 45, 46]
v_lane = 1
vDX = [2, 3, 4, 5]; vDW = [6, 7, 8, 9]; vD2 = [10, 11, 12, 13]
vRX = [14, 15, 16, 17]; vRW = [18, 19]; vR2 = [[20, 21], [22, 23], [35, 36]]
v_l16 = 24; v_armoff = 26; v_arm = 27; v_one = 29; v_l4 = 30
v_bo = 31; v_redw = 32; v_redr = 33; v_outo = 34
vT = list(range(38, 64))
ACC = 64
def acc(mi, j): return ACC + 32 * mi + 16 * j
BIAS = 128; XF = 160; MT = 192; OUTB = MT + 24
AF = 128; NRING = 16
XA = 49152

stamp_names = []
stamp_regs = list(range(80, 100, 2)) + [4, 6, 16, 54, 56, 14]
def stamp(name):
    if args.pad:
        if name == "start": A("s_memrealtime s[80:81]")
        if name == args.pad: A("s_memrealtime s[82:83]")
        return
    if not args.stamps: return
    r = stamp_regs[len(stamp_names)]; stamp_names.append(name)
    A(f"s_mem{'real' if args.rtst else ''}time s[{r}:{r+1}]")
vmq = []; vm_known = [0]
def vm(tag): vmq.append(tag)
def lastidx(tag): return max(i for i, t in enumerate(vmq) if t == tag)
def wait_vm(tag):
    idx = lastidx(tag); n = len(vmq) - 1 - idx
    assert n <= 63, n
    A(f"s_waitcnt vmcnt({n})"); vm_known[0] = max(vm_known[0], idx + 1)
lgq = []; lg_done = [0]
def lg(ins, tag=None): A(ins); lgq.append(tag)
def wait_lg(tag):
    idx = max(i for i, t in enumerate(lgq) if t == tag)
    if idx < lg_done[0]: return
    n = min(len(lgq) - 1 - idx, 12)
    A(f"s_waitcnt lgkmcnt({n})"); lg_done[0] = max(lg_done[0], len(lgq) - n)
def wait_lg0(): A("s_waitcnt lgkmcnt(0)"); lg_done[0] = len(lgq)
lastw = {}
def pad_after(key, need):
    n = 0
    for ln in L[lastw[key] + 1:]:
        t = ln.strip()
        if t.endswith(":") or t.startswith("s_mem"): continue
        n += int(t.split()[1]) + 1 if t.startswith("s_nop") else 1
    if n < need: A(f"s_nop {need - n - 1}")

hdr = f"""; fused dense -> mish -> dense, one launch, 256 persistent workgroups
; @launch grid=(256,1,1) block=(256,1,1) lds=163840
.amdgcn_target "amdgcn-amd-amdhsa--gfx950"
.text
.globl {KN}
.p2align 8
.type {KN},@function
{KN}:"""

for r, o in ((sX_, 0), (sWW, 8), (sB, 16), (sW2, 24), (12, 32), (sD, 40), (sA, 48), (sL, 48)):
    A(f"s_load_dwordx2 s[{r}:{r+1}], s[0:1], {o}")
A("s_cmp_ge_u32 s2, 256")
A("s_cbranch_scc1 L_end")
if args.stamps: A("s_memrealtime s[100:101]")
stamp("start")
a, b, c, d = vT[0], vT[1], vT[2], vT[3]
h = vT[5]; t = vT[6]; tq = vT[7]; e = vT[8]; f = vT[9]
A(f"v_lshrrev_b32 v{a}, 6, v0")
A(f"v_and_b32 v{v_lane}, 63, v0")
A(f"v_readfirstlane_b32 s{sW}, v{a}")
A(f"s_bfe_u32 s{s_fl}, s2, 0x30003")
A(f"s_mov_b32 s{sX_+3}, 0x20000")
A(f"s_cmp_lg_u32 s{s_fl}, 7")
A("s_cbranch_scc1 L_go")
A("s_getpc_b64 s[4:5]")
A("L_pcref:")
A(f"v_lshlrev_b32 v{vT[10]}, 6, v0")
A(f"v_min_u32 v{vT[10]}, L_codeend-L_pcref-4, v{vT[10]}")
A(f"v_mov_b32 v{vT[11]}, s5")
A(f"v_add_co_u32 v{vT[10]}, vcc, s4, v{vT[10]}")
A("s_nop 1")
A(f"v_addc_co_u32 v{vT[11]}, vcc, 0, v{vT[11]}, vcc")
assert vT[10] % 2 == 0
A(f"global_load_dword v{vT[24]}, v[{vT[10]}:{vT[11]}], off")
A("s_branch L_spare")
A("L_go:")
ids = [f"s_and_b32 s{s_fg}, s2, 1", f"s_lshr_b32 s{s_ml}, s2, 6", f"s_and_b32 s{s_mt}, s2, 6", f"s_lshl1_add_u32 s{s_mt}, s{s_mt}, s{s_ml}",
       f"s_lshl_b32 s{s_ld}, s{sW}, 12", f"v_lshrrev_b32 v{a}, 3, v{v_lane}", f"v_lshrrev_b32 v{b}, 4, v{v_lane}", f"v_and_b32 v{c}, 7, v{v_lane}"]
for x in ids: A(x)
A(f"s_mov_b32 s{sX_+2}, 2097152")
A(f"s_and_b32 s{s_t0}, s{sW}, 2\ns_add_u32 s{s_t0}, s{s_t0}, s{sW}\ns_lshl3_add_u32 s{s_xbase}, s{s_mt}, s{s_t0}\ns_lshl_b32 s{s_xbase}, s{s_xbase}, 14")
A(f"s_mul_i32 s{s_ft}, s{s_fg}, 7")
A(f"s_add_u32 s{s_ft}, s{s_ft}, s{s_fl}")
def rotw(): A(f"s_mov_b32 s4, 0x76543210\ns_mov_b32 s5, s4\ns_lshr_b64 s[4:5], s[4:5], s{s_t0}\ns_mov_b32 s{s_ord}, s4")
if args.rot == 5:
    A(f"s_add_u32 s{s_t0}, s{s_ml}, s{s_fl}\ns_and_b32 s{s_t0}, s{s_t0}, 1")
    A(f"s_lshr_b32 s{s_t1}, s2, 1\ns_xor_b32 s{s_t1}, s{s_t1}, s2\ns_and_b32 s{s_t1}, s{s_t1}, 1")
    A(f"s_lshl1_add_u32 s{s_t0}, s{s_t0}, s{s_t1}\ns_lshl_b32 s{s_t0}, s{s_t0}, 3"); rotw()
elif args.rot == 6:
    A(f"s_add_u32 s{s_t0}, s{s_ml}, s{s_fl}\ns_and_b32 s{s_t0}, s{s_t0}, 3\ns_lshl_b32 s{s_t0}, s{s_t0}, 3"); rotw()
elif args.rot == 2:
    A(f"s_add_u32 s{s_t0}, s{s_ml}, s{s_fl}\ns_and_b32 s{s_t0}, s{s_t0}, 1\ns_lshl_b32 s{s_t0}, s{s_t0}, 4"); rotw()
elif args.rot == 7:
    A(f"s_lshr_b32 s{s_t0}, s2, 1\ns_xor_b32 s{s_t0}, s{s_t0}, s2\ns_and_b32 s{s_t0}, s{s_t0}, 1\ns_lshl_b32 s{s_t0}, s{s_t0}, 4"); rotw()
else:
    A(f"s_mov_b32 s{s_ord}, 0x76543210")
A(f"s_mul_i32 s{s_wbase}, s{sW}, 224\ns_add_u32 s{s_wbase}, s{s_wbase}, s{s_ft}\ns_lshl_b32 s{s_wbase}, s{s_wbase}, 8")
A(f"v_xor_b32 v{d}, v{c}, v{b}")
A(f"v_lshlrev_b32 v{d}, 4, v{d}")
A(f"v_lshl_add_u32 v{vDX[0]}, v{a}, 10, v{d}")
A(f"v_xor_b32 v{d}, 64, v{vDX[0]}")
A(f"v_add_u32 v{vDX[1]}, 7168, v{d}")
A(f"v_add_u32 v{vDX[2]}, 30720, v{vDX[0]}")
A(f"v_add_u32 v{vDX[3]}, 30720, v{vDX[1]}")
A(f"v_and_b32 v{e}, 15, v{v_lane}")
A(f"v_lshlrev_b32 v{vT[4]}, 2, v{b}")
A(f"v_xor_b32 v{d}, v{e}, v{vT[4]}")
A(f"v_mul_u32_u24 v{vT[4]}, 224, v{b}")
A(f"v_add_lshl_u32 v{vDW[0]}, v{vT[4]}, v{d}, 4")
for i in range(1, 4): A(f"v_add_u32 v{vDW[i]}, {i*(4*3584-1024)}, v{vDW[0]}")
A(f"s_mov_b32 s{sWW+2}, 1835008\ns_mov_b32 s{sWW+3}, s{sX_+3}")
def soffX(j): return f"s_bfe_u32 s{s_t2}, s{s_ord}, {(3 << 16) | (4*j):#x}\ns_lshl_b32 s{s_soX}, s{s_t2}, 7\ns_add_u32 s{s_soX}, s{s_soX}, s{s_xbase}"
def soffW(): return f"s_mul_i32 s{s_soW}, s{s_t2}, 229376\ns_add_u32 s{s_soW}, s{s_soW}, s{s_wbase}"
def dma(vo, srdb, so, i): return f"buffer_load_dwordx4 v{vo}, {srd(srdb)}, s{so} offen offset:{1024*i} lds"
def m0row(r): return f"s_add_u32 m0, s{s_ld}, {r * 16384}" if r else f"s_mov_b32 m0, s{s_ld}"

order = args.order.split()
assert len(order) == 14 and len(set(order)) == 14
deferred = lambda ch: ch >= 8 - D
fr_ = []
for ch in (5, 6, 7):
    nb_ = f"B{ch+1}" if ch < 7 else ("P0" if D else "F")
    fr_.append((ch % 3, nb_)); fr_.append((3 + ch % 3, "F" if deferred(ch) or ch == 7 else nb_))
fr_.sort(key=lambda x: ["B6", "B7", "P0", "F"].index(x[1]))
rowinfo = [(6 + i, "") for i in range(4)] + fr_
rows = [r for r, _ in rowinfo] + [r for r, _ in rowinfo[:4]]
rowreq = [q for _, q in rowinfo] + ["R"] * 4
passed = set([""])
def gaddr(dst, p, bases, base0, shift):
    nm = order[p]
    if nm[0] == "S": return f"s_add_u32 s{dst}, s{base0}, {((12 + int(nm[1])) * 32768) >> shift}"
    t_, j = "abc".index(nm[0]), int(nm[1])
    return f"s_add_u32 s{dst}, s{bases[j]}, {(t_ * 131072) >> shift}"
stream = []
for j in range(8):
    rq = f"B{j-2}" if j > 2 else ""
    for i in range(2 if deferred(j) else 4):
        stream.append(((m0row(3 + j % 3) + "\n" + soffX(j)) if i == 0 else None, dma(vDX[i], sX_, s_soX, i), f"c{j}", rq))
    for i in range(4):
        stream.append(((m0row(j % 3) + "\n" + soffW()) if i == 0 else None, dma(vDW[i], sWW, s_soW, i), f"c{j}", rq))
for j in range(8 - D, 8):
    for i in (2, 3):
        stream.append(((m0row(3 + j % 3) + "\n" + soffX(j)) if i == 2 else None, dma(vDX[i], sX_, s_soX, i), "x0", ""))
w2all = [((m0row(rows[p]) + "\n" + gaddr(s_soX, p, s_wb, s_w2base, 0)) if i == 0 else None, dma(vD2[i], sW2, s_soX, i), f"g{p}", rowreq[p]) for p in range(14) for i in range(4)]
stream += w2all[4 * NE:]
early = [(p, i) for p in range(NE) for i in range(4)]
esteps = [args.e0 + (k * (args.e1 - args.e0)) // max(1, len(early) - 1) for k in range(len(early))]
assert len(set(esteps)) == len(esteps)
def can_issue(): return bool(stream) and stream[0][3] in passed
def pre_next():
    p, i_, tg, rq = stream[0]
    if p: A(p); stream[0] = (None, i_, tg, rq)
def dma_next():
    p, i_, tg, rq = stream.pop(0)
    assert rq in passed, (tg, rq)
    if p: A(p)
    A(i_); vm(tg)

pre_next()
def bias_addr():
    A(f"s_movk_i32 s{sB+2}, 3584\ns_mov_b32 s{sB+3}, s{sX_+3}")
    A(f"v_lshlrev_b32 v{v_bo}, 11, v{v_lane}")
    A(f"v_and_b32 v{v_bo}, 0x10000, v{v_bo}")
    A(f"v_lshl_add_u32 v{v_bo}, v{v_lane}, 1, v{v_bo}")
    A(f"s_lshr_b32 s{s_bo}, s{sW}, 1\ns_lshl1_add_u32 s{s_bo}, s{s_ft}, s{s_bo}\ns_lshl_b32 s{s_bo}, s{s_bo}, 7")
def bias_load():
    for fi in range(2):
        A(f"buffer_load_ushort v{BIAS+4*fi}, v{v_bo}, {srd(sB)}, s{s_bo} offen offset:{64*fi}"); vm("c0")
if args.biasfirst == 1: bias_addr()
A("s_waitcnt lgkmcnt(0)")
stamp("karg")
if args.biasfirst == 1: bias_load()
for i in range(8):
    dma_next()
    if i == 5 and args.biasfirst == 2: bias_addr(); bias_load()
common = [f"v_lshrrev_b32 v{h}, 5, v{v_lane}", f"v_and_b32 v{d}, 1, v{b}", f"v_bfe_u32 v{tq}, v{v_lane}, 2, 2",
          f"v_and_b32 v{vT[4]}, 3, v{v_lane}", f"v_lshlrev_b32 v{vT[4]}, 3, v{vT[4]}", f"v_lshl_add_u32 v{vT[4]}, v{d}, 5, v{vT[4]}",
          f"s_and_b32 s{s_wm}, s{sW}, 1", f"s_lshr_b32 s{s_wf}, s{sW}, 1"]
for x in common: A(x)
A(f"s_lshl_b32 s{s_t0}, s{s_wm}, 13\ns_add_u32 s{s_t0}, s{s_t0}, {XA}")
A(f"v_lshl_add_u32 v{e}, v{e}, 7, s{s_t0}")
A(f"v_lshl_add_u32 v{e}, v{d}, 12, v{e}")
A(f"v_bfe_u32 v{f}, v{v_lane}, 1, 3")
A(f"v_xor_b32 v{f}, v{f}, v{h}")
A(f"v_lshl_add_u32 v{vRX[0]}, v{f}, 4, v{e}")
for s in range(1, 4): A(f"v_xor_b32 v{vRX[s]}, {32*s}, v{vRX[0]}")
A(f"v_lshl_add_u32 v{f}, v{h}, 3, v{tq}")
A(f"v_lshl_add_u32 v{f}, v{f}, 8, v{vT[4]}")
A(f"s_and_b32 s{s_t0}, s{sW}, 2")
A(f"v_xor_b32 v{t}, s{s_t0}, v{tq}")
A(f"v_lshl_add_u32 v{vRW[0]}, v{t}, 6, v{f}")
A(f"v_xor_b32 v{vRW[1]}, 64, v{vRW[0]}")
if not args.biasfirst: bias_addr()
A(f"v_xor_b32 v{BIAS+8}, 1, v{h}")
A(f"v_mul_u32_u24 v{BIAS+8}, 0x3f80, v{BIAS+8}")
for i in (1, 2, 3, 5, 6, 7, 9, 10, 11): A(f"v_mov_b32 v{BIAS+i}, 0")

S2 = f"""s_mov_b32 s{sB+3}, s{sX_+3}
s_mov_b32 s{sW2+2}, 1835008
s_mov_b32 s{sW2+3}, s{sX_+3}
s_mov_b32 s{sA+2}, {WS_SIZE}
s_mov_b32 s{sA+3}, s{sX_+3}
s_mov_b32 s{sL+2}, s{sA+2}
s_mov_b32 s{sL+3}, s{sX_+3}
s_movk_i32 s{sD+2}, 256
s_mov_b32 s{sD+3}, s{sX_+3}
s_and_b32 s{s_xcd}, s2, 7
s_xor_b32 s{s_nt}, s{s_fl}, 4
s_lshl2_add_u32 s{s_m64}, s{s_xcd}, s{s_ml}
v_lshlrev_b32 v{e}, 2, v{d}
v_xor_b32 v{e}, v{c}, v{e}
v_lshlrev_b32 v{e}, 4, v{e}
v_lshl_add_u32 v{vD2[0]}, v{a}, 10, v{e}
v_add_u32 v{vD2[1]}, 7168, v{vD2[0]}
v_add_u32 v{vD2[2]}, 14336, v{vD2[0]}
v_add_u32 v{vD2[3]}, 21504, v{vD2[0]}
v_lshl_add_u32 v{f}, v{h}, 2, v{tq}
v_lshl_add_u32 v{f}, v{f}, 7, v{vT[4]}
v_bfe_u32 v{t}, v{v_lane}, 3, 1
v_lshl_add_u32 v{f}, v{t}, 6, v{f}
v_add_u32 v{vR2[0][0]}, s{s_ld}, v{f}
v_xor_b32 v{vR2[0][1]}, 64, v{vR2[0][0]}
v_add_u32 v{vR2[1][0]}, 65536, v{vR2[0][0]}
v_add_u32 v{vR2[1][1]}, 65536, v{vR2[0][1]}
v_add_u32 v{vR2[2][0]}, 131072, v{vR2[0][0]}
v_add_u32 v{vR2[2][1]}, 131072, v{vR2[0][1]}
v_lshlrev_b32 v{v_l16}, 4, v{v_lane}
v_mov_b32 v{v_one}, 1
v_lshlrev_b32 v{v_l4}, 2, v{v_lane}
s_lshl1_add_u32 s{s_t0}, s{s_mt}, s{s_fg}
s_lshl_b32 s{s_t0}, s{s_t0}, 2
s_and_b32 s{s_t1}, s{s_m64}, 30
s_add_u32 s{s_t1}, s{s_t1}, s{s_wf}
s_lshl_b32 s{s_t1}, s{s_t1}, 2
s_sub_u32 s{s_t1}, s{s_t1}, s{s_t0}
v_mul_lo_u32 v{v_armoff}, v{h}, s{s_t1}
v_add_u32 v{v_armoff}, s{s_t0}, v{v_armoff}
v_and_b32 v{e}, 15, v{v_lane}
v_lshl_add_u32 v{e}, v{e}, 8, s{s_ld}
v_lshl_add_u32 v{e}, v{d}, 14, v{e}
v_xor_b32 v{f}, v{c}, v{h}
v_lshl_add_u32 v{v_redw}, v{f}, 4, v{e}
s_lshl_b32 s{s_t0}, s{s_wf}, 14
s_lshl_b32 s{s_t1}, s{s_wm}, 11
s_add_u32 s{s_t0}, s{s_t0}, s{s_t1}
v_lshl_add_u32 v{e}, v{a}, 8, s{s_t0}
v_lshlrev_b32 v{f}, 1, v{c}
v_xor_b32 v{f}, v{f}, v{a}
v_lshl_add_u32 v{v_redr}, v{f}, 4, v{e}
v_lshlrev_b32 v{e}, 4, v{c}
v_lshl_add_u32 v{v_outo}, v{a}, 10, v{e}
s_mul_i32 s{s_w2base}, s{sW}, 3584
s_add_u32 s{s_w2base}, s{s_w2base}, s{s_nt}
s_lshl_b32 s{s_w2base}, s{s_w2base}, 7""".split("\n")
for j in range(4):
    S2 += [f"s_add_u32 s{s_t0}, s{s_ml}, {j}", f"s_and_b32 s{s_t0}, s{s_t0}, 3", f"s_lshl_b32 s{s_t0}, s{s_t0}, 15", f"s_add_u32 s{s_wb[j]}, s{s_w2base}, s{s_t0}"]
S2 += f"""s_mul_i32 s{s_t0}, s{s_m64}, {2*M32S}
s_mul_i32 s{s_flagC}, s{sW}, 896
s_add_u32 s{s_flagC}, s{s_flagC}, s{s_t0}
s_add_u32 s{s_flagC}, s{s_flagC}, {FLAGOFF}
s_mul_i32 s{s_actld}, s{sW}, 28672
s_add_u32 s{s_actld}, s{s_actld}, s{s_t0}
s_lshl3_add_u32 s{s_outb}, s{s_m64}, s{sW}
s_lshl_b32 s{s_outb}, s{s_outb}, 6
s_add_u32 s{s_outb}, s{s_outb}, s{s_nt}
s_lshl_b32 s{s_outb}, s{s_outb}, 7
s_mov_b32 s{s_spin}, 0""".split("\n")
S2p = f"""s_lshl1_add_u32 s{s_t0}, s{s_mt}, s{s_wm}
s_mul_i32 s{s_t0}, s{s_t0}, {2*M32S}
s_lshl_b32 s{s_actst}, s{s_bo}, 5
s_add_u32 s{s_actst}, s{s_actst}, s{s_t0}
s_add_u32 s{s_flagP}, s{s_bo}, s{s_t0}
s_add_u32 s{s_flagP}, s{s_flagP}, {FLAGOFF}
s_mov_b32 s{s_cl2e}, 0xbfb8aa3b
s_mov_b32 s{s_cl2e+1}, s{s_cl2e}
s_mov_b32 s{s_half}, 0.5
s_mov_b32 s{s_half+1}, 0.5""".split("\n")
s2q = S2[1:] + S2p
def emit_s2(k):
    for _ in range(k):
        if s2q: A(s2q.pop(0))
emit_s2(args.s2pre)
stamp("setup")
if not args.biasfirst: bias_load()
for i in range(8): dma_next()

seq = []
for ch in range(8):
    for s in range(4):
        seq.append((ch, 0, s))
        if not deferred(ch): seq.append((ch, 1, s))
nA = len(seq)
for ch in range(8 - D, 8): seq += [(ch, 1, s) for s in range(4)]
assert len(seq) == 64
def xf(n): return XF + 4 * (n % 4)
def rd_x(n):
    ch, mi, s = seq[n]
    lg(f"ds_read_b128 v[{xf(n)}:{xf(n)+3}], v{vRX[s]} offset:{(ch % 3)*16384 + 2048*mi}", f"x{n}")
def rd_w(n, fi):
    ch, mi, s = seq[n]
    if mi: return
    for a_ in range(2):
        r = (ch * 4 + s) * 8 + 4 * fi + 2 * a_
        lg(f"ds_read_b64_tr_b16 a[{r}:{r+1}], v{vRW[fi]} offset:{(ch % 3)*16384+4096*s+1024*a_}", f"w{n}_{fi}")
def mfma1(n, fi):
    ch, mi, s = seq[n]
    Dr = acc(mi, fi); wr = (ch * 4 + s) * 8 + 4 * fi
    C = f"v[{Dr}:{Dr+15}]"
    A(f"v_mfma_f32_32x32x16_bf16 v[{Dr}:{Dr+15}], a[{wr}:{wr+3}], v[{xf(n)}:{xf(n)+3}], {C}"); lastw[(mi, fi)] = len(L) - 1
def mfma_bias(mi, fi):
    Dr = acc(mi, fi)
    A(f"v_mfma_f32_32x32x16_bf16 v[{Dr}:{Dr+15}], v[{BIAS+4*fi}:{BIAS+4*fi+3}], v[{BIAS+8}:{BIAS+11}], 0")
P = lambda r: f"v[{r}:{r+1}]"
def mish_pk(k):
    hb = ACC + 8 * k; ob = OUTB + 4 * k
    U, N, Dd = MT, MT + 8, MT + 16
    o = [f"v_pk_mul_f32 {P(U+2*p)}, {P(hb+2*p)}, s[{s_cl2e}:{s_cl2e+1}]" for p in range(4)]
    o += [f"v_exp_f32 v{U+i}, v{U+i}" for i in range(8)]
    o += [f"v_pk_add_f32 {P(N+2*p)}, {P(U+2*p)}, s[{s_half}:{s_half+1}]" for p in range(4)]
    o += [f"v_pk_fma_f32 {P(Dd+2*p)}, {P(U+2*p)}, {P(U+2*p)}, {P(N+2*p)}" for p in range(4)]
    o += [f"v_rcp_f32 v{Dd+i}, v{Dd+i}" for i in range(8)]
    o += [f"v_pk_mul_f32 {P(N+2*p)}, {P(N+2*p)}, {P(Dd+2*p)} clamp" for p in range(4)]
    o += [f"v_pk_mul_f32 {P(N+2*p)}, {P(N+2*p)}, {P(hb+2*p)}" for p in range(4)]
    o += [f"v_cvt_pk_bf16_f32 v{ob+p}, v{N+2*p}, v{N+2*p+1}" for p in range(4)]
    return o
def st_act(k):
    ob = OUTB + 4 * k
    if k == 4: A(f"s_add_u32 s{s_actst}, s{s_actst}, {M32S}")
    A(f"buffer_store_dwordx4 v[{ob}:{ob+3}], v{v_l16}, {srd(sA)}, s{s_actst} offen offset:{1024*(k & 3)} sc1"); vm(f"st{k >> 2}")
def arm_load(): A(f"buffer_load_dword v{v_arm}, v{v_armoff}, {srd(sD)}, 0 offen sc1")
NH = args.nh if D else 0
mA = []
U, N, Dd = MT, MT + 8, MT + 16
stg = [lambda i: (f"v_mul_f32 v{U+i%8}, s{s_cl2e}, v{ACC+i}", 4), lambda i: (f"v_exp_f32 v{U+i%8}, v{U+i%8}", 8),
       lambda i: (f"v_add_f32 v{N+i%8}, 0.5, v{U+i%8}", 4), lambda i: (f"v_fma_f32 v{Dd+i%8}, v{U+i%8}, v{U+i%8}, v{N+i%8}", 5),
       lambda i: (f"v_rcp_f32 v{Dd+i%8}, v{Dd+i%8}", 8), lambda i: (f"v_mul_f32 v{N+i%8}, v{N+i%8}, v{Dd+i%8} clamp", 5),
       lambda i: (f"v_mul_f32 v{N+i%8}, v{N+i%8}, v{ACC+i}", 4),
       lambda i: (f"v_cvt_pk_bf16_f32 v{OUTB+i//2}, v{N+(i-1)%8}, v{N+i%8}", 5) if i & 1 else None]
for tt in range(8 * NH + 7 if NH else 0):
    for k in (7, 1, 6, 5, 3, 4, 2, 0):
        i = tt - k
        if 0 <= i < 8 * NH and stg[k](i):
            if mA and mA[-1][0].startswith(("v_exp", "v_rcp")) and mA[-1][0].split()[1].rstrip(",") in [z.strip(",") for z in stg[k](i)[0].split()[2:]]:
                mA.append(("s_nop 0", 4))
            mA.append(stg[k](i))
            if k == 7 and i % 8 == 7: mA.append(("ST", i // 8))
totA = sum(c_ for i_, c_ in mA if i_ != "ST"); doneA = [0]
g0 = 2 * nA + args.h0 - 1; ngaps = 128 - g0
def mishA_gap(g):
    if g < g0 or not mA: return
    if g == g0: pad_after((0, 0), 12)
    target = totA * (g - g0 + 1) / ngaps
    while mA and (doneA[0] < target - 2 or mA[0][0] == "ST"):
        i_, c_ = mA.pop(0)
        if i_ == "ST": st_act(c_)
        else: A(i_); doneA[0] += c_

pre_next()
wait_vm("c0")
stamp("c0_land")
A("s_barrier"); passed.add("B0")
mfma_bias(0, 0)
for n in range(2): rd_x(n); rd_w(n, 0); rd_w(n, 1)
mfma_bias(0, 1); emit_s2(args.s2gap); mfma_bias(1, 0); emit_s2(args.s2gap); mfma_bias(1, 1)
dma_next(); dma_next()
nbar = [0]
for n in range(64):
    nx = n + 2
    ch, mi, s = seq[n]
    bar = None
    if nx < nA and seq[nx][1:] == (0, 0): bar = (f"B{seq[nx][0]}", f"c{seq[nx][0]}")
    if nx == nA and D: bar = ("P0", "x0")
    if nx == 64: bar = ("F", None)
    wait_lg(f"x{n}" if mi else f"w{n}_0")
    mfma1(n, 0)
    if bar:
        if bar[1]:
            while any(e_[2] == bar[1] for e_ in stream): dma_next()
            if args.itst: A("s_memtime s[4:5]")
            wait_vm(bar[1])
        if args.itst: A("s_memtime s[6:7]")
        wait_lg0()
        if args.itst: A(f"v_writelane_b32 v60, s4, {nbar[0]}\nv_writelane_b32 v61, s6, {nbar[0]}"); nbar[0] += 1
        A("s_barrier"); passed.add(bar[0])
    def loads(g):
        if not can_issue(): return
        if n >= nA: ok = g % args.w2gap == args.w2gap - 1
        elif deferred(ch): ok = True
        else: ok = g & 1
        if ok: dma_next()
    if nx < 64: rd_x(nx); rd_w(nx, 0)
    mishA_gap(2 * n)
    emit_s2(args.s2gap)
    if n in esteps:
        assert not s2q
        p, i = early.pop(0)
        A(f"s_mov_b32 s{s_m0s}, m0"); A(m0row(rows[p]))
        A(gaddr(s_so2, p, s_wb, s_w2base, 0) if i == 0 else "s_nop 0")
        A(dma(vD2[i], sW2, s_so2, i)); vm(f"g{p}")
        A(f"s_mov_b32 m0, s{s_m0s}")
    else: loads(2 * n)
    if can_issue(): pre_next()
    if not mi: wait_lg(f"w{n}_1")
    mfma1(n, 1)
    if nx < 64: rd_w(nx, 1)
    if n == nA - 1: stamp("pAdone")
    mishA_gap(2 * n + 1)
    emit_s2(args.s2gap)
    loads(2 * n + 1)
assert not early and not mA
stamp("p1done")
p1end = len(L)

def w2_reads(p):
    out = []; r_ = rows[p]
    for i in range(4):
        j = 4 * p + i; ks, a_ = j >> 1, j & 1
        for ni in range(2):
            r = (ks * 2 + ni) * 4 + 2 * a_
            out.append(f"ds_read_b64_tr_b16 a[{r}:{r+1}], v{vR2[r_ >> 2][ni]} offset:{(r_ & 3)*16384+1024*i}")
    return out
def flag(stage):
    if stage == 1: A(f"s_add_u32 s{s_flagP}, s{s_flagP}, {M32S}")
    A("s_mov_b32 exec_hi, 0")
    A(f"buffer_store_dword v{v_one}, v{v_l4}, {srd(sA)}, s{s_flagP} offen sc1")
    A("s_mov_b32 exec_hi, -1")
def poll_issue():
    for i in range(7): A(f"s_buffer_load_dword s{s_pl[i]}, {srd(sL)}, s{s_flagC} offset:{128*i} glc")
cold = []
def spin_check(lbl, reissue, pre=None):
    A(f"{lbl}:")
    if lbl != "L_arm":
        wait_lg0()
        for i in range(1, 7): A(f"s_and_b32 s{s_pl[0]}, s{s_pl[0]}, s{s_pl[i]}")
    else:
        A(f"v_cmp_eq_u32 vcc, 1, v{v_arm}"); A("s_nop 0"); A("s_cmp_eq_u64 vcc, -1")
    A(f"s_cbranch_scc0 {lbl}_slow")
    A(f"{lbl}_ok:")
    cold.append((lbl, reissue, pre))
nextp = [0]; rq = []
def queue_pos(force=False, age=12):
    p = nextp[0]
    if p >= 14 or vmq.count(f"g{p}") < 4: return False
    last = lastidx(f"g{p}")
    if last >= vm_known[0]:
        if not force and len(vmq) - 1 - last < age: return False
        wait_vm(f"g{p}")
    rq.extend((r, f"q{p}") for r in w2_reads(p)); nextp[0] += 1
    return True
def fill(k, age=12):
    for _ in range(k):
        if not rq and not queue_pos(age=age): return
        r, tg = rq.pop(0); lg(r, tg)
def need_pos(p):
    while nextp[0] <= p: assert queue_pos(force=True)
    while any(tg == f"q{p}" for _, tg in rq):
        r, tg = rq.pop(0); lg(r, tg)
    wait_lg(f"q{p}")
passed.add("R")
def dma_next2():
    if stream[0][3] == "R": need_pos(int(stream[0][2][1:]) - 10)
    dma_next()
def pubA():
    wait_vm(max(("arm", "st0"), key=lastidx))
    spin_check("L_arm", arm_load)
    flag(0); vm("flagA")
    stamp("flagA")
arm_load(); vm("arm")
nfr = 8 - NH
nm = args.nmish
slotset = set(int((k + 0.5) * 40 * nfr / nm) for k in range(nm)) if nm else set()
for k_ in range(NH, 8):
    if k_ == 4 + args.flagApos: pubA()
    pad_after((k_ >> 2, (k_ >> 1) & 1), 12)
    for n, ins in enumerate(mish_pk(k_)):
        A(ins)
        if (k_ - NH) * 40 + n in slotset and len(stream) > args.npoll: dma_next2()
        if k_ >= 4 and n % 4 == 1 and (rq or nextp[0] < args.rdmish): fill(1, 16)
    st_act(k_)
    if k_ == 3: stamp("mish0")
stamp("mish1")
if args.flagApos >= 4: pubA()
assert stream[0][0] is not None or w2all[56 - len(stream)][0] is None
A("L_enter2:")
lean_dma = w2all[:56 - len(stream)]
lean_rds = [x.strip() for x in L[p1end:] if "ds_read_b64_tr_b16 a[" in x]
polled = len(stream) <= args.npoll
if polled: poll_issue()
k = 0; flagB_done = False
def maybe_flagB():
    global flagB_done
    if not flagB_done and k >= args.nb:
        wait_vm("st1"); flag(1); vm("flagB"); flagB_done = True
        stamp("flagB")
absc = []
for j in range(4):
    absc += [f"s_sub_u32 s{s_ab[j]}, s{s_wb[j]}, s{s_w2base}", f"s_lshr_b32 s{s_ab[j]}, s{s_ab[j]}, 4", f"s_add_u32 s{s_ab[j]}, s{s_ab[j]}, s{s_actld}"]
while stream:
    dma_next2(); k += 1; maybe_flagB(); fill(4)
    for _ in range(3):
        if absc: A(absc.pop(0))
    if len(stream) == args.npoll and not polled: poll_issue(); polled = True
for x in absc: A(x)
if not flagB_done: A(f"s_mov_b32 s{s_t1}, 0")
stamp("w2iss")
spin_check("L_pollA", poll_issue, pre=None if flagB_done else "B")
stamp("pollA")
DEP = args.depth; NF = 56
assert DEP < NRING
def af(i): return AF + 4 * (i % NRING)
def act_load(i):
    global k
    mi, ks = divmod(i, 28)
    if i == 28:
        spin_check("L_pollB", poll_issue)
        for r in s_ab + [s_actld]: A(f"s_add_u32 s{r}, s{r}, {M32S}")
    if ks % 2 == 0: A(gaddr(s_so, ks >> 1, s_ab, s_actld, 4))
    A(f"buffer_load_dwordx4 v[{af(i)}:{af(i)+3}], v{v_l16}, {srd(sL)}, s{s_so} offen offset:{(ks%2)*1024} sc1"); vm(f"a{i}")
    k += 1; maybe_flagB()
for i in range(DEP): act_load(i); fill(6)
PB = 28 - DEP - 8
redw = [(ni, g) for ni in range(2) for g in range(4)]
R = 192
def red_reads(mi, base):
    return [f"ds_read_b128 v[{base+8*src+4*e_}:{base+8*src+4*e_+3}], v{[v_redr, vT[4]][e_]} offset:{src*4096 + 32768*mi}" for src in range(4) for e_ in range(2)]
def out_store(b_): A(f"buffer_store_dwordx4 v[{b_+8}:{b_+11}], v{v_outo}, {srd(sB)}, s{s_outb} offen {args.outsc}")
side = []; TJ = args.tailj
def p2mfma(i, ni):
    mi, ks = divmod(i, 28)
    Dr = acc(mi, ni); wr = (ks * 2 + ni) * 4
    C = "0" if ks == 0 else f"v[{Dr}:{Dr+15}]"
    A(f"v_mfma_f32_32x32x16_bf16 v[{Dr}:{Dr+15}], a[{wr}:{wr+3}], v[{af(i)}:{af(i)+3}], {C}"); lastw[(mi, ni)] = len(L) - 1
def redwr(mi, ni, g):
    pad_after((mi, ni), 12)
    r = acc(mi, ni) + 4 * g
    A(f"ds_write_b128 v{v_redw if g == 0 else vT[g]}, v[{r}:{r+3}] offset:{32768*mi+128*ni}")
for i in range(NF):
    mi, ks = divmod(i, 28)
    wait_vm(f"a{i}")
    if i == 0: stamp("a0")
    if mi == 0 and ks % 2 == 0: need_pos(ks >> 1)
    for ni in range(2 if i < NF - TJ else 1):
        p2mfma(i, ni); fill(2)
        for _ in range(3):
            if side: A(side.pop(0))
    if i == PB:
        A(f"s_add_u32 s{s_flagC}, s{s_flagC}, {M32S}"); poll_issue()
    if i + DEP < NF: act_load(i + DEP)
    if i == 26:
        for gg in range(1, 4): A(f"v_xor_b32 v{vT[gg]}, {32*gg}, v{v_redw}")
        A(f"s_mov_b32 s{sB}, s12\ns_mov_b32 s{sB+1}, s13\ns_mov_b32 s{sB+2}, 2097152")
        A(f"v_xor_b32 v{vT[4]}, 16, v{v_redr}")
    if mi == 1 and 3 <= ks < 11: redwr(0, *redw[ks - 3])
    if i == args.redi:
        A("s_waitcnt lgkmcnt(0)"); A("s_barrier"); side = red_reads(0, R)
    if i == args.redi + 3:
        A("s_waitcnt lgkmcnt(0)")
        side = [f"v_add_f32 v{R+j}, v{R+j}, v{R+8+j}" for j in range(8)] + [f"v_add_f32 v{R+16+j}, v{R+16+j}, v{R+24+j}" for j in range(8)]
        side += [f"v_add_f32 v{R+j}, v{R+j}, v{R+16+j}" for j in range(8)] + [f"v_cvt_pk_bf16_f32 v{R+8+p}, v{R+2*p}, v{R+2*p+1}" for p in range(4)]
    if i == args.redi + 9:
        assert not side and i + DEP >= NF - 1
        out_store(R); vm("o")
        A(f"s_add_u32 s{s_outb}, s{s_outb}, 32768")
assert flagB_done and not stream
wl = list(range(4))
for j, i in enumerate(range(NF - TJ, NF)):
    p2mfma(i, 1)
    if j == 0: A("s_nop 4")
    if j >= 1 and wl and j < TJ - 1: redwr(1, 0, wl.pop(0))
stamp("p2done")
while wl: redwr(1, 0, wl.pop(0))
for g in range(4): redwr(1, 1, g)
A("s_waitcnt lgkmcnt(0)")
A("s_barrier")
b_ = 160
for r in red_reads(1, b_): A(r)
A("s_waitcnt lgkmcnt(4)")
for p in range(4): A(f"v_pk_add_f32 {P(b_+2*p)}, {P(b_+2*p)}, {P(b_+8+2*p)}")
A("s_waitcnt lgkmcnt(0)")
for p in range(4): A(f"v_pk_add_f32 {P(b_+16+2*p)}, {P(b_+16+2*p)}, {P(b_+24+2*p)}")
for p in range(4): A(f"v_pk_add_f32 {P(b_+2*p)}, {P(b_+2*p)}, {P(b_+16+2*p)}")
for p in range(4): A(f"v_cvt_pk_bf16_f32 v{b_+8+p}, v{b_+2*p}, v{b_+2*p+1}")
out_store(b_)
if args.stamps:
    A("s_waitcnt vmcnt(0)")
    stamp("end")
    A("s_memrealtime s[12:13]")
    A("s_waitcnt lgkmcnt(0)")
    n = len(stamp_names)
    A("v_mov_b32 v64, s100\nv_mov_b32 v65, s12")
    for i in range(n): A(f"v_mov_b32 v{66+i}, s{stamp_regs[i]}")
    A(f"v_mov_b32 v{66+n}, s{s_spin}")
    A(f"s_mov_b32 s{sL+2}, 0x10000000")
    A(f"s_lshl_b32 s{s_t0}, s2, 2\ns_add_u32 s{s_t0}, s{s_t0}, s{sW}\ns_lshl_b32 s{s_t0}, s{s_t0}, 7\ns_add_u32 s{s_t0}, s{s_t0}, {STAMP_OFF}")
    if args.itst:
        A("s_mov_b64 exec, 0xfff")
        A(f"s_add_u32 s{s_t1}, s{s_t0}, {1<<20}")
        for q, r in enumerate((60, 61)): A(f"buffer_store_dword v{r}, v{v_l4}, {srd(sL)}, s{s_t1} offen offset:{48*q}")
    A("s_mov_b64 exec, 1")
    for q in range(5): A(f"buffer_store_dwordx4 v[{64+4*q}:{67+4*q}], off, {srd(sL)}, s{s_t0} offset:{16*q}")
if args.pad:
    A("s_waitcnt vmcnt(0)")
    stamp("end")
    A("s_waitcnt lgkmcnt(0)")
    A("s_sub_u32 s84, s82, s80")
    A(f"s_cmp_eq_u32 s{s_fl}, 7\ns_cselect_b32 s84, 0, s84")
    if args.padwg >= 0: A(f"s_cmp_eq_u32 s2, {args.padwg}\ns_cselect_b32 s84, s84, 0")
    A("s_min_u32 s84, s84, 10000\ns_add_u32 s84, s84, 4000")
    A("L_pad:\ns_memrealtime s[86:87]\ns_waitcnt lgkmcnt(0)\ns_sub_u32 s85, s86, s80\ns_cmp_lt_u32 s85, s84\ns_cbranch_scc1 L_pad")
A("L_end:")
A("s_endpgm")
for lbl, reissue, pre in cold:
    A(f"{lbl}_slow:")
    if pre:
        A(f"s_cmp_lg_u32 s{s_t1}, 0\ns_cbranch_scc1 {lbl}_s2\ns_mov_b32 s{s_t1}, 1\ns_waitcnt vmcnt(0)")
        A(f"s_add_u32 s{s_t0}, s{s_flagP}, {M32S}")
        A("s_mov_b32 exec_hi, 0")
        A(f"buffer_store_dword v{v_one}, v{v_l4}, {srd(sA)}, s{s_t0} offen sc1")
        A("s_mov_b32 exec_hi, -1")
        A(f"{lbl}_s2:")
    A(f"s_add_u32 s{s_spin}, s{s_spin}, 1")
    A(f"s_cmp_ge_u32 s{s_spin}, 200000")
    A(f"s_cbranch_scc1 {lbl}_ok")
    if args.sleep: A(f"s_sleep {args.sleep}")
    reissue()
    if lbl == "L_arm": A("s_waitcnt vmcnt(0)")
    A(f"s_branch {lbl}")
A("L_spare:")
for x in ids: A(x)
A(f"v_lshlrev_b32 v{vT[18]}, 7, v{v_lane}")
A(f"s_mov_b32 s{sW2+2}, 1835008\ns_mov_b32 s{sW2+3}, s{sX_+3}\ns_and_b32 s{s_xcd}, s2, 7")
A(f"s_mul_i32 s{s_so2}, s{s_ml}, 56\ns_add_u32 s{s_so2}, s{s_so2}, s{sW}\ns_lshl_b32 s{s_so2}, s{s_so2}, 13")
A(f"s_mul_i32 s{s_t2}, s{s_xcd}, 7\ns_lshr_b32 s{s_t2}, s{s_t2}, 2\ns_lshl_b32 s{s_t2}, s{s_t2}, 15\ns_add_u32 s{s_t2}, s{s_t2}, s{s_so2}")
A("s_waitcnt lgkmcnt(0)")
def spf_op(op):
    if op[0] == "p": A(f"s_add_u32 s{s_t0}, s{s_t2}, {32768*int(op[1])}")
    elif op[0] == "g": A(f"s_add_u32 s{s_t0}, s{s_so2}, {32768*int(op[1:])}")
    else: A(f"s_add_u32 s{s_t0}, s{s_so2}, {32768*(12+int(op[1]))}")
    A(f"buffer_load_dword v{vT[24]}, v{vT[18]}, {srd(sW2)}, s{s_t0} offen")
spf = args.spf.split()
if spf: spf_op(spf.pop(0))
for x in common + S2: A(x)
A(f"s_mov_b32 s{s_flagP}, 0")
A(f"s_cmp_lg_u32 s{sW}, 0")
A("s_cbranch_scc1 L_spare2")
A(f"v_and_b32 v{vT[12]}, 15, v{v_lane}")
A(f"v_min_u32 v{vT[12]}, 13, v{vT[12]}")
A(f"v_lshlrev_b32 v{vT[12]}, 7, v{vT[12]}")
A(f"s_mov_b32 s{s_t0}, {M32S}")
A(f"v_mul_lo_u32 v{vT[13]}, v{b}, s{s_t0}")
A(f"v_add_u32 v{vT[12]}, v{vT[12]}, v{vT[13]}")
A(f"s_mul_i32 s{s_t0}, s{s_mt}, {4*M32S}\ns_mul_i32 s{s_t1}, s{s_fg}, 1792\ns_add_u32 s{s_t0}, s{s_t0}, s{s_t1}\ns_add_u32 s{s_t0}, s{s_t0}, {FLAGOFF}")
A(f"v_mov_b32 v{vT[14]}, 0")
A(f"buffer_store_dword v{vT[14]}, v{vT[12]}, {srd(sA)}, s{s_t0} offen sc1")
A("L_spare2:")
armpos = min(args.armpos, len(spf))
for k_, op in enumerate(spf + [None]):
    if k_ == armpos:
        A(f"s_cmp_lg_u32 s{sW}, 0\ns_cbranch_scc1 L_spare3\ns_waitcnt vmcnt({armpos})\ns_mov_b64 exec, 1")
        A(f"buffer_store_dword v{v_one}, v{v_armoff}, {srd(sD)}, 0 offen sc1")
        A("s_mov_b64 exec, -1\nL_spare3:")
    if op: spf_op(op)
A(f"s_mov_b32 s{sA+2}, 0")
did = False
for pre, ins, tg, rq_ in lean_dma + [(None, None, None, "R")]:
    if rq_ == "R" and not did:
        arm_load()
        nrd = (len(lean_rds) + 7) // 8
        n_issued = sum(1 for e_ in lean_dma if e_[3] != "R")
        A(f"s_waitcnt vmcnt({n_issued - 4 * nrd + 1})")
        for x in lean_rds: A(x)
        A("s_waitcnt lgkmcnt(0)")
        did = True
    if ins:
        if pre: A(pre)
        A(ins)
A("L_arm2:")
A("s_waitcnt vmcnt(0)")
A(f"v_cmp_eq_u32 vcc, 1, v{v_arm}")
A(f"s_add_u32 s{s_spin}, s{s_spin}, 1")
A("s_cmp_eq_u64 vcc, -1")
A("s_cbranch_scc1 L_enter2")
A(f"s_cmp_ge_u32 s{s_spin}, 200000")
A("s_cbranch_scc1 L_enter2")
arm_load()
A("s_branch L_arm2")
A("L_codeend:")
tail = f""".section .rodata,"a"
.p2align 6
.amdhsa_kernel {KN}
  .amdhsa_next_free_vgpr 512
  .amdhsa_next_free_sgpr 102
  .amdhsa_accum_offset 256
  .amdhsa_group_segment_fixed_size 0
  .amdhsa_kernarg_size 56
  .amdhsa_user_sgpr_count 2
  .amdhsa_user_sgpr_kernarg_segment_ptr 1
  .amdhsa_system_sgpr_workgroup_id_x 1
.end_amdhsa_kernel"""
print(hdr); print("\n".join(L)); print(tail)
if args.stamps: print("; STAMPS: " + " ".join(stamp_names))
```

```python
import sys, argparse
ap = argparse.ArgumentParser()
I = lambda n, d: ap.add_argument("--" + n, type=int, default=d)
I("stamps", 0); I("rtst", 0); I("itst", 0); I("padwg", -1); I("padonly", -1)
I("rot", 5); I("D", 8); I("nh", 4); I("h0", 5); I("h1", 10); I("xbper", 1); I("x2pre", 2); I("xearly", 1)
I("ne", 0); I("e0", 16); I("e1", 44)
I("w2gap", 2); I("nmish", 14); I("rdmish", 4); I("flagApos", 2); I("nb", 10); I("npoll", 8)
I("depth", 10); I("tailj", 6); I("redi", 41); I("armpos", 1); I("sleep", 0); I("biasfirst", 2); I("s2pre", 0); I("s2gap", 7)
ap.add_argument("--spf", default="x1 p0 p1 x2")
ap.add_argument("--order", default="a0 S0 S1 b0 a1 a2 a3 c0 b1 b2 b3 c1 c2 c3")
ap.add_argument("--outsc", default="nt")
ap.add_argument("--pad", default="")
ap.add_argument("--name", default="standalone__dense_activation_mish__prompt")
args = ap.parse_args()
KN = args.name + "_kernel"
D = args.D; NE = args.ne
BIG = D > 3
assert (D % 2 == 0 and NE <= 1) if BIG else NE <= 4

M32S = 118784; FLAGOFF = 114688; WS_SIZE = 64 * M32S; STAMP_OFF = 16 << 20
L = []
def A(s):
    for ln in s.split("\n"):
        L.append("    " + ln if not ln.endswith(":") else ln)

sW = 3
sX_, sWW, sB, sA, sL, sD, sW2 = 20, 24, 28, 32, 36, 40, 8
def srd(b): return f"s[{b}:{b+3}]"
s_mt, s_ft, s_fg, s_fl, s_m64, s_ml, s_wm, s_wf = 44, 45, 46, 47, 48, 49, 50, 51
s_nt = 19; s_bo = 18
s_ord, s_xbase, s_wbase, s_soX, s_soW, s_ld, s_so2, s_m0s = 53, 54, 55, 56, 57, 58, 59, 60
s_t2, s_t0, s_t1 = 61, 62, 63
s_wb = [64, 65, 66, 52]; s_ab = [48, 49, 50, 51]
s_actst, s_flagP, s_flagC, s_actld, s_spin, s_outb, s_xcd = 67, 68, 69, 70, 71, 72, 73
s_cl2e = 74; s_half = 76; s_so = 78; s_w2base = 79
s_pl = [53, 59, 60, 61, 44, 45, 46]
v_lane = 1
vDX = [2, 3, 4, 5]; vDW = [6, 7, 8, 9]; vD2 = [10, 11, 12, 13]
vRX = [14, 15, 16, 17]; vRX2 = [176, 177, 178, 179]; vRW = [18, 19]; vR2 = [[20, 21], [22, 23], [35, 36]]
v_l16 = 24; v_armoff = 26; v_arm = 27; v_one = 29; v_l4 = 30
v_bo = 31; v_redw = 32; v_redr = 33; v_outo = 34
vT = list(range(38, 64))
ACC = 64
def acc(mi, j): return ACC + 32 * mi + 16 * j
BIAS = 128; XF = 160; MT = 192; OUTB = MT + 24
AF = 128; NRING = 16
XA = 49152

stamp_names = []
stamp_regs = list(range(80, 100, 2)) + [4, 6, 16, 54, 56, 14]
def stamp(name):
    if args.pad:
        if name == "start": A("s_memrealtime s[80:81]")
        if name == args.pad: A("s_memrealtime s[82:83]")
        return
    if args.stamps != 1: return
    r = stamp_regs[len(stamp_names)]; stamp_names.append(name)
    A(f"s_mem{'real' if args.rtst else ''}time s[{r}:{r+1}]")
vmq = []; vm_known = [0]
def vm(tag): vmq.append(tag)
def lastidx(tag): return max(i for i, t in enumerate(vmq) if t == tag)
def wait_vm(tag):
    idx = lastidx(tag); n = len(vmq) - 1 - idx
    assert n <= 63, n
    A(f"s_waitcnt vmcnt({n})"); vm_known[0] = max(vm_known[0], idx + 1)
lgq = []; lg_done = [0]
def lg(ins, tag=None): A(ins); lgq.append(tag)
def wait_lg(tag):
    idx = max(i for i, t in enumerate(lgq) if t == tag)
    if idx < lg_done[0]: return
    n = min(len(lgq) - 1 - idx, 12)
    A(f"s_waitcnt lgkmcnt({n})"); lg_done[0] = max(lg_done[0], len(lgq) - n)
def wait_lg0(): A("s_waitcnt lgkmcnt(0)"); lg_done[0] = len(lgq)
lastw = {}
def pad_after(key, need):
    n = 0
    for ln in L[lastw[key] + 1:]:
        t = ln.strip()
        if t.endswith(":") or t.startswith("s_mem"): continue
        n += int(t.split()[1]) + 1 if t.startswith("s_nop") else 1
    if n < need: A(f"s_nop {need - n - 1}")

hdr = f"""; fused dense -> mish -> dense, one launch, 256 persistent workgroups
; @launch grid=(256,1,1) block=(256,1,1) lds=163840
.amdgcn_target "amdgcn-amd-amdhsa--gfx950"
.text
.globl {KN}
.p2align 8
.type {KN},@function
{KN}:"""

for r, o in ((sX_, 0), (sWW, 8), (sB, 16), (sW2, 24), (12, 32), (sD, 40), (sA, 48), (sL, 48)):
    A(f"s_load_dwordx2 s[{r}:{r+1}], s[0:1], {o}")
A("s_cmp_ge_u32 s2, 256")
A("s_cbranch_scc1 L_end")
if args.stamps: A("s_memrealtime s[100:101]")
stamp("start")
a, b, c, d = vT[0], vT[1], vT[2], vT[3]
h = vT[5]; t = vT[6]; tq = vT[7]; e = vT[8]; f = vT[9]
A(f"v_lshrrev_b32 v{a}, 6, v0")
A(f"v_and_b32 v{v_lane}, 63, v0")
A(f"v_readfirstlane_b32 s{sW}, v{a}")
A(f"s_bfe_u32 s{s_fl}, s2, 0x30003")
A(f"s_mov_b32 s{sX_+3}, 0x20000")
A(f"s_cmp_lg_u32 s{s_fl}, 7")
A("s_cbranch_scc1 L_go")
A("s_getpc_b64 s[4:5]")
A("L_pcref:")
A(f"v_lshlrev_b32 v{vT[10]}, 6, v0")
A(f"v_min_u32 v{vT[10]}, L_codeend-L_pcref-4, v{vT[10]}")
A(f"v_mov_b32 v{vT[11]}, s5")
A(f"v_add_co_u32 v{vT[10]}, vcc, s4, v{vT[10]}")
A("s_nop 1")
A(f"v_addc_co_u32 v{vT[11]}, vcc, 0, v{vT[11]}, vcc")
assert vT[10] % 2 == 0
A(f"global_load_dword v{vT[24]}, v[{vT[10]}:{vT[11]}], off")
A("s_branch L_spare")
A("L_go:")
ids = [f"s_and_b32 s{s_fg}, s2, 1", f"s_lshr_b32 s{s_ml}, s2, 6", f"s_and_b32 s{s_mt}, s2, 6", f"s_lshl1_add_u32 s{s_mt}, s{s_mt}, s{s_ml}",
       f"s_lshl_b32 s{s_ld}, s{sW}, 12", f"v_lshrrev_b32 v{a}, 3, v{v_lane}", f"v_lshrrev_b32 v{b}, 4, v{v_lane}", f"v_and_b32 v{c}, 7, v{v_lane}"]
for x in ids: A(x)
A(f"s_mov_b32 s{sX_+2}, 2097152")
A(f"s_and_b32 s{s_t0}, s{sW}, 2\ns_add_u32 s{s_t0}, s{s_t0}, s{sW}\ns_lshl3_add_u32 s{s_xbase}, s{s_mt}, s{s_t0}\ns_lshl_b32 s{s_xbase}, s{s_xbase}, 14")
A(f"s_mul_i32 s{s_ft}, s{s_fg}, 7")
A(f"s_add_u32 s{s_ft}, s{s_ft}, s{s_fl}")
def rotw(): A(f"s_mov_b32 s4, 0x76543210\ns_mov_b32 s5, s4\ns_lshr_b64 s[4:5], s[4:5], s{s_t0}\ns_mov_b32 s{s_ord}, s4")
if args.rot == 5:
    A(f"s_add_u32 s{s_t0}, s{s_ml}, s{s_fl}\ns_and_b32 s{s_t0}, s{s_t0}, 1")
    A(f"s_lshr_b32 s{s_t1}, s2, 1\ns_xor_b32 s{s_t1}, s{s_t1}, s2\ns_and_b32 s{s_t1}, s{s_t1}, 1")
    A(f"s_lshl1_add_u32 s{s_t0}, s{s_t0}, s{s_t1}\ns_lshl_b32 s{s_t0}, s{s_t0}, 3"); rotw()
elif args.rot == 6:
    A(f"s_add_u32 s{s_t0}, s{s_ml}, s{s_fl}\ns_and_b32 s{s_t0}, s{s_t0}, 3\ns_lshl_b32 s{s_t0}, s{s_t0}, 3"); rotw()
elif args.rot == 2:
    A(f"s_add_u32 s{s_t0}, s{s_ml}, s{s_fl}\ns_and_b32 s{s_t0}, s{s_t0}, 1\ns_lshl_b32 s{s_t0}, s{s_t0}, 4"); rotw()
elif args.rot == 7:
    A(f"s_lshr_b32 s{s_t0}, s2, 1\ns_xor_b32 s{s_t0}, s{s_t0}, s2\ns_and_b32 s{s_t0}, s{s_t0}, 1\ns_lshl_b32 s{s_t0}, s{s_t0}, 4"); rotw()
else:
    A(f"s_mov_b32 s{s_ord}, 0x76543210")
A(f"s_mul_i32 s{s_wbase}, s{sW}, 224\ns_add_u32 s{s_wbase}, s{s_wbase}, s{s_ft}\ns_lshl_b32 s{s_wbase}, s{s_wbase}, 8")
A(f"v_xor_b32 v{d}, v{c}, v{b}")
A(f"v_lshlrev_b32 v{d}, 4, v{d}")
A(f"v_lshl_add_u32 v{vDX[0]}, v{a}, 10, v{d}")
A(f"v_xor_b32 v{d}, 64, v{vDX[0]}")
A(f"v_add_u32 v{vDX[1]}, 7168, v{d}")
A(f"v_add_u32 v{vDX[2]}, 30720, v{vDX[0]}")
A(f"v_add_u32 v{vDX[3]}, 30720, v{vDX[1]}")
A(f"v_and_b32 v{e}, 15, v{v_lane}")
A(f"v_lshlrev_b32 v{vT[4]}, 2, v{b}")
A(f"v_xor_b32 v{d}, v{e}, v{vT[4]}")
A(f"v_mul_u32_u24 v{vT[4]}, 224, v{b}")
A(f"v_add_lshl_u32 v{vDW[0]}, v{vT[4]}, v{d}, 4")
for i in range(1, 4): A(f"v_add_u32 v{vDW[i]}, {i*(4*3584-1024)}, v{vDW[0]}")
A(f"s_mov_b32 s{sWW+2}, 1835008\ns_mov_b32 s{sWW+3}, s{sX_+3}")
def soffX(j): return f"s_bfe_u32 s{s_t2}, s{s_ord}, {(3 << 16) | (4*j):#x}\ns_lshl_b32 s{s_soX}, s{s_t2}, 7\ns_add_u32 s{s_soX}, s{s_soX}, s{s_xbase}"
def soffW(): return f"s_mul_i32 s{s_soW}, s{s_t2}, 229376\ns_add_u32 s{s_soW}, s{s_soW}, s{s_wbase}"
def dma(vo, srdb, so, i): return f"buffer_load_dwordx4 v{vo}, {srd(srdb)}, s{so} offen offset:{1024*i} lds"
def m0row(r): return f"s_add_u32 m0, s{s_ld}, {r * 16384}" if r else f"s_mov_b32 m0, s{s_ld}"

order = args.order.split()
assert len(order) == 14 and len(set(order)) == 14
deferred = lambda ch: ch >= 8 - D
def xslot(ch, mi):
    if not BIG: return 3 + ch % 3, mi
    return (5 + ch // 2, ch & 1) if mi else (3 + (ch % 4) // 2, ch & 1)
def m0x(ch, mi):
    r, hf = xslot(ch, mi)
    return f"s_add_u32 m0, s{s_ld}, {r * 16384 + (hf - mi) * 2048}"
barorder = [f"B{i}" for i in range(8)] + [f"P{i}" for i in range(4)] + ["F"]
if not BIG:
    fr_ = []
    for ch in (5, 6, 7):
        nb_ = f"B{ch+1}" if ch < 7 else ("P0" if D else "F")
        fr_.append((ch % 3, nb_)); fr_.append((3 + ch % 3, "F" if deferred(ch) or ch == 7 else nb_))
    fr_.sort(key=lambda x: barorder.index(x[1]))
    rowinfo = [(6 + i, "") for i in range(4)] + fr_
else:
    fr_ = [(2, "B6"), (3, "B6"), (0, "B7"), (1, "P0"), (4, "P0")]
    for j in range(4):
        k_ = j - (4 - D // 2)
        fr_.append((5 + j, f"B{2*j+2}" if k_ < 0 else (f"P{k_+1}" if j < 3 else "F")))
    fr_.sort(key=lambda x: barorder.index(x[1]))
    rowinfo = [(9, "")] + fr_
rows = [r for r, _ in rowinfo] + [r for r, _ in rowinfo[:4]]
rowreq = [q for _, q in rowinfo] + ["R"] * 4
passed = set([""])
def gaddr(dst, p, bases, base0, shift):
    nm = order[p]
    if nm[0] == "S": return f"s_add_u32 s{dst}, s{base0}, {((12 + int(nm[1])) * 32768) >> shift}"
    t_, j = "abc".index(nm[0]), int(nm[1])
    return f"s_add_u32 s{dst}, s{bases[j]}, {(t_ * 131072) >> shift}"
stream = []
for j in range(8):
    rq = f"B{j-2}" if j > 2 else ""
    for i in range(2 if deferred(j) else 4):
        pre = None
        if i == 0: pre = m0x(j, 0) + "\n" + soffX(j)
        if i == 2 and BIG: pre = m0x(j, 1) + "\ns_nop 0"
        rqx = (f"B{j-3}" if j > 3 else "") if BIG and args.xearly else rq
        stream.append((pre, dma(vDX[i], sX_, s_soX, i), f"c{j}", rqx))
    for i in range(4):
        stream.append(((m0row(j % 3) + "\n" + soffW()) if i == 0 else None, dma(vDW[i], sWW, s_soW, i), f"c{j}", rq))
for j in range(8 - D, 8):
    for i in (2, 3):
        stream.append(((m0x(j, 1) + "\n" + soffX(j)) if i == 2 else None, dma(vDX[i], sX_, s_soX, i), f"x{(j - 8 + D) // 2 if BIG else 0}", ""))
w2all = [((m0row(rows[p]) + "\n" + gaddr(s_soX, p, s_wb, s_w2base, 0)) if i == 0 else None, dma(vD2[i], sW2, s_soX, i), f"g{p}", rowreq[p]) for p in range(14) for i in range(4)]
stream += w2all[4 * NE:]
early = [(p, i) for p in range(NE) for i in range(4)]
esteps = [args.e0 + (k * (args.e1 - args.e0)) // max(1, len(early) - 1) for k in range(len(early))]
assert len(set(esteps)) == len(esteps)
def can_issue(): return bool(stream) and stream[0][3] in passed
def pre_next():
    p, i_, tg, rq = stream[0]
    if p: A(p); stream[0] = (None, i_, tg, rq)
def dma_next():
    p, i_, tg, rq = stream.pop(0)
    assert rq in passed, (tg, rq)
    if p: A(p)
    A(i_); vm(tg)

pre_next()
def bias_addr():
    A(f"s_movk_i32 s{sB+2}, 3584\ns_mov_b32 s{sB+3}, s{sX_+3}")
    A(f"v_lshlrev_b32 v{v_bo}, 11, v{v_lane}")
    A(f"v_and_b32 v{v_bo}, 0x10000, v{v_bo}")
    A(f"v_lshl_add_u32 v{v_bo}, v{v_lane}, 1, v{v_bo}")
    A(f"s_lshr_b32 s{s_bo}, s{sW}, 1\ns_lshl1_add_u32 s{s_bo}, s{s_ft}, s{s_bo}\ns_lshl_b32 s{s_bo}, s{s_bo}, 7")
def bias_load():
    for fi in range(2):
        A(f"buffer_load_ushort v{BIAS+4*fi}, v{v_bo}, {srd(sB)}, s{s_bo} offen offset:{64*fi}"); vm("c0")
if args.biasfirst == 1: bias_addr()
A("s_waitcnt lgkmcnt(0)")
stamp("karg")
if args.biasfirst == 1: bias_load()
for i in range(8):
    dma_next()
    if i == 4 and args.biasfirst == 2: bias_addr(); bias_load()
common = [f"v_lshrrev_b32 v{h}, 5, v{v_lane}", f"v_and_b32 v{d}, 1, v{b}", f"v_bfe_u32 v{tq}, v{v_lane}, 2, 2",
          f"v_and_b32 v{vT[4]}, 3, v{v_lane}", f"v_lshlrev_b32 v{vT[4]}, 3, v{vT[4]}", f"v_lshl_add_u32 v{vT[4]}, v{d}, 5, v{vT[4]}",
          f"s_and_b32 s{s_wm}, s{sW}, 1", f"s_lshr_b32 s{s_wf}, s{sW}, 1"]
for x in common: A(x)
A(f"s_lshl_b32 s{s_t0}, s{s_wm}, 13\ns_add_u32 s{s_t0}, s{s_t0}, {XA}")
A(f"v_lshl_add_u32 v{e}, v{e}, 7, s{s_t0}")
A(f"v_lshl_add_u32 v{e}, v{d}, 12, v{e}")
A(f"v_bfe_u32 v{f}, v{v_lane}, 1, 3")
A(f"v_xor_b32 v{f}, v{f}, v{h}")
A(f"v_lshl_add_u32 v{vRX[0]}, v{f}, 4, v{e}")
for s in range(1, 4): A(f"v_xor_b32 v{vRX[s]}, {32*s}, v{vRX[0]}")
A(f"v_lshl_add_u32 v{f}, v{h}, 3, v{tq}")
A(f"v_lshl_add_u32 v{f}, v{f}, 8, v{vT[4]}")
A(f"s_and_b32 s{s_t0}, s{sW}, 2")
A(f"v_xor_b32 v{t}, s{s_t0}, v{tq}")
A(f"v_lshl_add_u32 v{vRW[0]}, v{t}, 6, v{f}")
A(f"v_xor_b32 v{vRW[1]}, 64, v{vRW[0]}")
if not args.biasfirst: bias_addr()
A(f"v_xor_b32 v{BIAS+8}, 1, v{h}")
A(f"v_mul_u32_u24 v{BIAS+8}, 0x3f80, v{BIAS+8}")
for i in (1, 2, 3, 5, 6, 7, 9, 10, 11): A(f"v_mov_b32 v{BIAS+i}, 0")

S2 = f"""s_mov_b32 s{sB+3}, s{sX_+3}
s_mov_b32 s{sW2+2}, 1835008
s_mov_b32 s{sW2+3}, s{sX_+3}
s_mov_b32 s{sA+2}, {WS_SIZE}
s_mov_b32 s{sA+3}, s{sX_+3}
s_mov_b32 s{sL+2}, s{sA+2}
s_mov_b32 s{sL+3}, s{sX_+3}
s_movk_i32 s{sD+2}, 256
s_mov_b32 s{sD+3}, s{sX_+3}
s_and_b32 s{s_xcd}, s2, 7
s_xor_b32 s{s_nt}, s{s_fl}, 4
s_lshl2_add_u32 s{s_m64}, s{s_xcd}, s{s_ml}
v_lshlrev_b32 v{e}, 2, v{d}
v_xor_b32 v{e}, v{c}, v{e}
v_lshlrev_b32 v{e}, 4, v{e}
v_lshl_add_u32 v{vD2[0]}, v{a}, 10, v{e}
v_add_u32 v{vD2[1]}, 7168, v{vD2[0]}
v_add_u32 v{vD2[2]}, 14336, v{vD2[0]}
v_add_u32 v{vD2[3]}, 21504, v{vD2[0]}
v_lshl_add_u32 v{f}, v{h}, 2, v{tq}
v_lshl_add_u32 v{f}, v{f}, 7, v{vT[4]}
v_bfe_u32 v{t}, v{v_lane}, 3, 1
v_lshl_add_u32 v{f}, v{t}, 6, v{f}
v_add_u32 v{vR2[0][0]}, s{s_ld}, v{f}
v_xor_b32 v{vR2[0][1]}, 64, v{vR2[0][0]}
v_add_u32 v{vR2[1][0]}, 65536, v{vR2[0][0]}
v_add_u32 v{vR2[1][1]}, 65536, v{vR2[0][1]}
v_add_u32 v{vR2[2][0]}, 131072, v{vR2[0][0]}
v_add_u32 v{vR2[2][1]}, 131072, v{vR2[0][1]}
v_lshlrev_b32 v{v_l16}, 4, v{v_lane}
v_mov_b32 v{v_one}, 1
v_lshlrev_b32 v{v_l4}, 2, v{v_lane}
s_lshl1_add_u32 s{s_t0}, s{s_mt}, s{s_fg}
s_lshl_b32 s{s_t0}, s{s_t0}, 2
s_and_b32 s{s_t1}, s{s_m64}, 30
s_add_u32 s{s_t1}, s{s_t1}, s{s_wf}
s_lshl_b32 s{s_t1}, s{s_t1}, 2
s_sub_u32 s{s_t1}, s{s_t1}, s{s_t0}
v_mul_lo_u32 v{v_armoff}, v{h}, s{s_t1}
v_add_u32 v{v_armoff}, s{s_t0}, v{v_armoff}
v_and_b32 v{e}, 15, v{v_lane}
v_lshl_add_u32 v{e}, v{e}, 8, s{s_ld}
v_lshl_add_u32 v{e}, v{d}, 14, v{e}
v_xor_b32 v{f}, v{c}, v{h}
v_lshl_add_u32 v{v_redw}, v{f}, 4, v{e}
s_lshl_b32 s{s_t0}, s{s_wf}, 14
s_lshl_b32 s{s_t1}, s{s_wm}, 11
s_add_u32 s{s_t0}, s{s_t0}, s{s_t1}
v_lshl_add_u32 v{e}, v{a}, 8, s{s_t0}
v_lshlrev_b32 v{f}, 1, v{c}
v_xor_b32 v{f}, v{f}, v{a}
v_lshl_add_u32 v{v_redr}, v{f}, 4, v{e}
v_lshlrev_b32 v{e}, 4, v{c}
v_lshl_add_u32 v{v_outo}, v{a}, 10, v{e}
s_mul_i32 s{s_w2base}, s{sW}, 3584
s_add_u32 s{s_w2base}, s{s_w2base}, s{s_nt}
s_lshl_b32 s{s_w2base}, s{s_w2base}, 7""".split("\n")
for j in range(4):
    S2 += [f"s_add_u32 s{s_t0}, s{s_ml}, {j}", f"s_and_b32 s{s_t0}, s{s_t0}, 3", f"s_lshl_b32 s{s_t0}, s{s_t0}, 15", f"s_add_u32 s{s_wb[j]}, s{s_w2base}, s{s_t0}"]
S2 += f"""s_mul_i32 s{s_t0}, s{s_m64}, {2*M32S}
s_mul_i32 s{s_flagC}, s{sW}, 896
s_add_u32 s{s_flagC}, s{s_flagC}, s{s_t0}
s_add_u32 s{s_flagC}, s{s_flagC}, {FLAGOFF}
s_mul_i32 s{s_actld}, s{sW}, 28672
s_add_u32 s{s_actld}, s{s_actld}, s{s_t0}
s_lshl3_add_u32 s{s_outb}, s{s_m64}, s{sW}
s_lshl_b32 s{s_outb}, s{s_outb}, 6
s_add_u32 s{s_outb}, s{s_outb}, s{s_nt}
s_lshl_b32 s{s_outb}, s{s_outb}, 7
s_mov_b32 s{s_spin}, 0""".split("\n")
S2p = f"""s_lshl1_add_u32 s{s_t0}, s{s_mt}, s{s_wm}
s_mul_i32 s{s_t0}, s{s_t0}, {2*M32S}
s_lshl_b32 s{s_actst}, s{s_bo}, 5
s_add_u32 s{s_actst}, s{s_actst}, s{s_t0}
s_add_u32 s{s_flagP}, s{s_bo}, s{s_t0}
s_add_u32 s{s_flagP}, s{s_flagP}, {FLAGOFF}
s_mov_b32 s{s_cl2e}, 0xbfb8aa3b
s_mov_b32 s{s_cl2e+1}, s{s_cl2e}
s_mov_b32 s{s_half}, 0.5
s_mov_b32 s{s_half+1}, 0.5""".split("\n")
s2q = S2[1:] + S2p
if BIG:
    rx2 = [f"v_add_u32 v{vRX2[s]}, 32768, v{vRX[s]}" for s in range(4)]
    if D == 8: s2q += rx2
    else:
        for x in rx2: A(x)
def emit_s2(k):
    for _ in range(k):
        if s2q: A(s2q.pop(0))
emit_s2(args.s2pre)
stamp("setup")
if not args.biasfirst: bias_load()
while stream[0][2] == "c1": dma_next()
if deferred(0):
    for i in range(args.x2pre): dma_next()

seq = []
for ch in range(8):
    for s in range(4):
        seq.append((ch, 0, s))
        if not deferred(ch): seq.append((ch, 1, s))
nA = len(seq)
for ch in range(8 - D, 8): seq += [(ch, 1, s) for s in range(4)]
assert len(seq) == 64
def xf(n): return XF + 4 * (n % 4)
def rd_x(n):
    ch, mi, s = seq[n]
    r, hf = xslot(ch, mi)
    va, r0 = (vRX2[s], 5) if BIG and mi else (vRX[s], 3)
    lg(f"ds_read_b128 v[{xf(n)}:{xf(n)+3}], v{va} offset:{(r - r0)*16384 + 2048*hf}", f"x{n}")
def rd_w(n, fi):
    ch, mi, s = seq[n]
    if mi: return
    for a_ in range(2):
        r = (ch * 4 + s) * 8 + 4 * fi + 2 * a_
        lg(f"ds_read_b64_tr_b16 a[{r}:{r+1}], v{vRW[fi]} offset:{(ch % 3)*16384+4096*s+1024*a_}", f"w{n}_{fi}")
def mfma1(n, fi):
    ch, mi, s = seq[n]
    Dr = acc(mi, fi); wr = (ch * 4 + s) * 8 + 4 * fi
    C = f"v[{Dr}:{Dr+15}]"
    A(f"v_mfma_f32_32x32x16_bf16 v[{Dr}:{Dr+15}], a[{wr}:{wr+3}], v[{xf(n)}:{xf(n)+3}], {C}"); lastw[(mi, fi)] = len(L) - 1
def mfma_bias(mi, fi):
    Dr = acc(mi, fi)
    A(f"v_mfma_f32_32x32x16_bf16 v[{Dr}:{Dr+15}], v[{BIAS+4*fi}:{BIAS+4*fi+3}], v[{BIAS+8}:{BIAS+11}], 0")
P = lambda r: f"v[{r}:{r+1}]"
def mish_pk(k):
    hb = ACC + 8 * k; ob = OUTB + 4 * k
    U, N, Dd = MT, MT + 8, MT + 16
    o = [f"v_pk_mul_f32 {P(U+2*p)}, {P(hb+2*p)}, s[{s_cl2e}:{s_cl2e+1}]" for p in range(4)]
    o += [f"v_exp_f32 v{U+i}, v{U+i}" for i in range(8)]
    o += [f"v_pk_add_f32 {P(N+2*p)}, {P(U+2*p)}, s[{s_half}:{s_half+1}]" for p in range(4)]
    o += [f"v_pk_fma_f32 {P(Dd+2*p)}, {P(U+2*p)}, {P(U+2*p)}, {P(N+2*p)}" for p in range(4)]
    o += [f"v_rcp_f32 v{Dd+i}, v{Dd+i}" for i in range(8)]
    o += [f"v_pk_mul_f32 {P(N+2*p)}, {P(N+2*p)}, {P(Dd+2*p)} clamp" for p in range(4)]
    o += [f"v_pk_mul_f32 {P(N+2*p)}, {P(N+2*p)}, {P(hb+2*p)}" for p in range(4)]
    o += [f"v_cvt_pk_bf16_f32 v{ob+p}, v{N+2*p}, v{N+2*p+1}" for p in range(4)]
    return o
def st_act(k):
    ob = OUTB + 4 * k
    if k == 4: A(f"s_add_u32 s{s_actst}, s{s_actst}, {M32S}")
    A(f"buffer_store_dwordx4 v[{ob}:{ob+3}], v{v_l16}, {srd(sA)}, s{s_actst} offen offset:{1024*(k & 3)} sc1"); vm(f"st{k >> 2}")
def arm_load(): A(f"buffer_load_dword v{v_arm}, v{v_armoff}, {srd(sD)}, 0 offen sc1")
NH = args.nh if D else 0
mA = []
U, N, Dd = MT, MT + 8, MT + 16
stg = [lambda i: (f"v_mul_f32 v{U+i%8}, s{s_cl2e}, v{ACC+i}", 4), lambda i: (f"v_exp_f32 v{U+i%8}, v{U+i%8}", 8),
       lambda i: (f"v_add_f32 v{N+i%8}, 0.5, v{U+i%8}", 4), lambda i: (f"v_fma_f32 v{Dd+i%8}, v{U+i%8}, v{U+i%8}, v{N+i%8}", 5),
       lambda i: (f"v_rcp_f32 v{Dd+i%8}, v{Dd+i%8}", 8), lambda i: (f"v_mul_f32 v{N+i%8}, v{N+i%8}, v{Dd+i%8} clamp", 5),
       lambda i: (f"v_mul_f32 v{N+i%8}, v{N+i%8}, v{ACC+i}", 4),
       lambda i: (f"v_cvt_pk_bf16_f32 v{OUTB+i//2}, v{N+(i-1)%8}, v{N+i%8}", 5) if i & 1 else None]
for tt in range(8 * NH + 7 if NH else 0):
    for k in (7, 1, 6, 5, 3, 4, 2, 0):
        i = tt - k
        if 0 <= i < 8 * NH and stg[k](i):
            if mA and mA[-1][0].startswith(("v_exp", "v_rcp")) and mA[-1][0].split()[1].rstrip(",") in [z.strip(",") for z in stg[k](i)[0].split()[2:]]:
                mA.append(("s_nop 0", 4))
            mA.append(stg[k](i))
            if k == 7 and i % 8 == 7: mA.append(("ST", i // 8))
totA = sum(c_ for i_, c_ in mA if i_ != "ST"); doneA = [0]
g0 = 2 * nA + args.h0 - 1; ngaps = 128 - g0 - args.h1
def mishA_gap(g):
    if g < g0 or not mA: return
    if g == g0: pad_after((0, 0), 12)
    target = totA * (g - g0 + 1) / ngaps
    while mA and (doneA[0] < target - 2 or mA[0][0] == "ST"):
        i_, c_ = mA.pop(0)
        if i_ == "ST": st_act(c_)
        else: A(i_); doneA[0] += c_

pre_next()
wait_vm("c0")
stamp("c0_land")
A("s_barrier"); passed.add("B0")
mfma_bias(0, 0)
for n in range(2): rd_x(n); rd_w(n, 0); rd_w(n, 1)
mfma_bias(0, 1); emit_s2(args.s2gap); mfma_bias(1, 0); emit_s2(args.s2gap); mfma_bias(1, 1)
if not deferred(0): dma_next(); dma_next()
nbar = [0]
for n in range(64):
    nx = n + 2
    ch, mi, s = seq[n]
    bar = None
    if nx < nA and seq[nx][1:] == (0, 0): bar = (f"B{seq[nx][0]}", f"c{seq[nx][0]}")
    if nA <= nx < 64 and (nx == nA or (BIG and (nx - nA) % 8 == 0)): bar = (f"P{(nx-nA)//8}", f"x{(nx-nA)//8}")
    if nx == 64: bar = ("F", None)
    wait_lg(f"x{n}" if mi else f"w{n}_0")
    mfma1(n, 0)
    if bar:
        if bar[1]:
            while any(e_[2] == bar[1] for e_ in stream): dma_next()
            if args.itst: A("s_memtime s[4:5]")
            wait_vm(bar[1])
        if args.itst: A("s_memtime s[6:7]")
        wait_lg0()
        if args.itst: A(f"v_writelane_b32 v60, s4, {nbar[0]}\nv_writelane_b32 v61, s6, {nbar[0]}"); nbar[0] += 1
        A("s_barrier"); passed.add(bar[0])
    def loads(g):
        if not can_issue(): return
        kind = stream[0][2][0]
        if BIG and kind == "x": ok = args.xbper == 2 or g & 1 == 0
        elif n >= nA or (BIG and kind == "g"): ok = g % args.w2gap == 0
        elif deferred(ch): ok = True
        else: ok = g & 1
        if ok: dma_next()
    if nx < 64: rd_x(nx); rd_w(nx, 0)
    mishA_gap(2 * n)
    emit_s2(args.s2gap)
    if n in esteps:
        assert not s2q
        p, i = early.pop(0)
        A(f"s_mov_b32 s{s_m0s}, m0"); A(m0row(rows[p]))
        A(gaddr(s_so2, p, s_wb, s_w2base, 0) if i == 0 else "s_nop 0")
        A(dma(vD2[i], sW2, s_so2, i)); vm(f"g{p}")
        A(f"s_mov_b32 m0, s{s_m0s}")
    else: loads(2 * n)
    if can_issue(): pre_next()
    if not mi: wait_lg(f"w{n}_1")
    mfma1(n, 1)
    if nx < 64: rd_w(nx, 1)
    if n == nA - 1: stamp("pAdone")
    mishA_gap(2 * n + 1)
    emit_s2(args.s2gap)
    loads(2 * n + 1)
assert not early and not mA
stamp("p1done")
p1end = len(L)

def w2_reads(p):
    out = []; r_ = rows[p]
    for i in range(4):
        j = 4 * p + i; ks, a_ = j >> 1, j & 1
        for ni in range(2):
            r = (ks * 2 + ni) * 4 + 2 * a_
            out.append(f"ds_read_b64_tr_b16 a[{r}:{r+1}], v{vR2[r_ >> 2][ni]} offset:{(r_ & 3)*16384+1024*i}")
    return out
def flag(stage):
    if stage == 1: A(f"s_add_u32 s{s_flagP}, s{s_flagP}, {M32S}")
    A("s_mov_b32 exec_hi, 0")
    A(f"buffer_store_dword v{v_one}, v{v_l4}, {srd(sA)}, s{s_flagP} offen sc1")
    A("s_mov_b32 exec_hi, -1")
def poll_issue():
    for i in range(7): A(f"s_buffer_load_dword s{s_pl[i]}, {srd(sL)}, s{s_flagC} offset:{128*i} glc")
cold = []
def spin_check(lbl, reissue, pre=None):
    A(f"{lbl}:")
    if lbl != "L_arm":
        wait_lg0()
        for i in range(1, 7): A(f"s_and_b32 s{s_pl[0]}, s{s_pl[0]}, s{s_pl[i]}")
    else:
        A(f"v_cmp_eq_u32 vcc, 1, v{v_arm}"); A("s_nop 0"); A("s_cmp_eq_u64 vcc, -1")
    A(f"s_cbranch_scc0 {lbl}_slow")
    A(f"{lbl}_ok:")
    cold.append((lbl, reissue, pre))
nextp = [0]; rq = []
def queue_pos(force=False, age=12):
    p = nextp[0]
    if p >= 14 or vmq.count(f"g{p}") < 4: return False
    last = lastidx(f"g{p}")
    if last >= vm_known[0]:
        if not force and len(vmq) - 1 - last < age: return False
        wait_vm(f"g{p}")
    rq.extend((r, f"q{p}") for r in w2_reads(p)); nextp[0] += 1
    return True
def fill(k, age=12):
    for _ in range(k):
        if not rq and not queue_pos(age=age): return
        r, tg = rq.pop(0); lg(r, tg)
def need_pos(p):
    while nextp[0] <= p: assert queue_pos(force=True)
    while any(tg == f"q{p}" for _, tg in rq):
        r, tg = rq.pop(0); lg(r, tg)
    wait_lg(f"q{p}")
passed.add("R")
def dma_next2():
    if stream[0][3] == "R": need_pos(int(stream[0][2][1:]) - 10)
    dma_next()
def pubA():
    wait_vm(max(("arm", "st0"), key=lastidx))
    spin_check("L_arm", arm_load)
    flag(0); vm("flagA")
    stamp("flagA")
arm_load(); vm("arm")
nfr = 8 - NH
nm = args.nmish
slotset = set(int((k + 0.5) * 40 * nfr / nm) for k in range(nm)) if nm else set()
for k_ in range(NH, 8):
    if k_ == 4 + args.flagApos: pubA()
    pad_after((k_ >> 2, (k_ >> 1) & 1), 12)
    for n, ins in enumerate(mish_pk(k_)):
        A(ins)
        if (k_ - NH) * 40 + n in slotset and len(stream) > args.npoll: dma_next2()
        if k_ >= 4 and n % 4 == 1 and (rq or nextp[0] < args.rdmish): fill(1, 16)
    st_act(k_)
    if k_ == 3 and NH < 4: stamp("mish0")
stamp("mish1")
if args.flagApos >= 4: pubA()
assert stream[0][0] is not None or w2all[56 - len(stream)][0] is None
A("L_enter2:")
lean_dma = w2all[:56 - len(stream)]
lean_rds = [x.strip() for x in L[p1end:] if "ds_read_b64_tr_b16 a[" in x]
polled = len(stream) <= args.npoll
if polled: poll_issue()
k = 0; flagB_done = False
def maybe_flagB():
    global flagB_done
    if not flagB_done and k >= args.nb:
        wait_vm("st1"); flag(1); vm("flagB"); flagB_done = True
        stamp("flagB")
absc = []
for j in range(4):
    absc += [f"s_sub_u32 s{s_ab[j]}, s{s_wb[j]}, s{s_w2base}", f"s_lshr_b32 s{s_ab[j]}, s{s_ab[j]}, 4", f"s_add_u32 s{s_ab[j]}, s{s_ab[j]}, s{s_actld}"]
while stream:
    dma_next2(); k += 1; maybe_flagB(); fill(4)
    for _ in range(3):
        if absc: A(absc.pop(0))
    if len(stream) == args.npoll and not polled: poll_issue(); polled = True
for x in absc: A(x)
if not flagB_done: A(f"s_mov_b32 s{s_t1}, 0")
stamp("w2iss")
spin_check("L_pollA", poll_issue, pre=None if flagB_done else "B")
stamp("pollA")
DEP = args.depth; NF = 56
assert DEP < NRING
def af(i): return AF + 4 * (i % NRING)
def act_load(i):
    global k
    mi, ks = divmod(i, 28)
    if i == 28:
        spin_check("L_pollB", poll_issue)
        for r in s_ab + [s_actld]: A(f"s_add_u32 s{r}, s{r}, {M32S}")
    if ks % 2 == 0: A(gaddr(s_so, ks >> 1, s_ab, s_actld, 4))
    A(f"buffer_load_dwordx4 v[{af(i)}:{af(i)+3}], v{v_l16}, {srd(sL)}, s{s_so} offen offset:{(ks%2)*1024} sc1"); vm(f"a{i}")
    k += 1; maybe_flagB()
for i in range(DEP): act_load(i); fill(6)
PB = 28 - DEP - 8
redw = [(ni, g) for ni in range(2) for g in range(4)]
R = 192
def red_reads(mi, base):
    return [f"ds_read_b128 v[{base+8*src+4*e_}:{base+8*src+4*e_+3}], v{[v_redr, vT[4]][e_]} offset:{src*4096 + 32768*mi}" for src in range(4) for e_ in range(2)]
def out_store(b_): A(f"buffer_store_dwordx4 v[{b_+8}:{b_+11}], v{v_outo}, {srd(sB)}, s{s_outb} offen {args.outsc}")
side = []; TJ = args.tailj
def p2mfma(i, ni):
    mi, ks = divmod(i, 28)
    Dr = acc(mi, ni); wr = (ks * 2 + ni) * 4
    C = "0" if ks == 0 else f"v[{Dr}:{Dr+15}]"
    A(f"v_mfma_f32_32x32x16_bf16 v[{Dr}:{Dr+15}], a[{wr}:{wr+3}], v[{af(i)}:{af(i)+3}], {C}"); lastw[(mi, ni)] = len(L) - 1
def redwr(mi, ni, g):
    pad_after((mi, ni), 12)
    r = acc(mi, ni) + 4 * g
    A(f"ds_write_b128 v{v_redw if g == 0 else vT[g]}, v[{r}:{r+3}] offset:{32768*mi+128*ni}")
for i in range(NF):
    mi, ks = divmod(i, 28)
    wait_vm(f"a{i}")
    if i == 0: stamp("a0")
    if mi == 0 and ks % 2 == 0: need_pos(ks >> 1)
    for ni in range(2 if i < NF - TJ else 1):
        p2mfma(i, ni); fill(2)
        for _ in range(3):
            if side: A(side.pop(0))
    if i == PB:
        A(f"s_add_u32 s{s_flagC}, s{s_flagC}, {M32S}"); poll_issue()
    if i + DEP < NF: act_load(i + DEP)
    if i == 26:
        for gg in range(1, 4): A(f"v_xor_b32 v{vT[gg]}, {32*gg}, v{v_redw}")
        A(f"s_mov_b32 s{sB}, s12\ns_mov_b32 s{sB+1}, s13\ns_mov_b32 s{sB+2}, 2097152")
        A(f"v_xor_b32 v{vT[4]}, 16, v{v_redr}")
    if mi == 1 and 3 <= ks < 11: redwr(0, *redw[ks - 3])
    if i == args.redi:
        A("s_waitcnt lgkmcnt(0)"); A("s_barrier"); side = red_reads(0, R)
    if i == args.redi + 3:
        A("s_waitcnt lgkmcnt(0)")
        side = [f"v_add_f32 v{R+j}, v{R+j}, v{R+8+j}" for j in range(8)] + [f"v_add_f32 v{R+16+j}, v{R+16+j}, v{R+24+j}" for j in range(8)]
        side += [f"v_add_f32 v{R+j}, v{R+j}, v{R+16+j}" for j in range(8)] + [f"v_cvt_pk_bf16_f32 v{R+8+p}, v{R+2*p}, v{R+2*p+1}" for p in range(4)]
    if i == args.redi + 9:
        assert not side and i + DEP >= NF - 1
        out_store(R); vm("o")
        A(f"s_add_u32 s{s_outb}, s{s_outb}, 32768")
assert flagB_done and not stream
wl = list(range(4))
for j, i in enumerate(range(NF - TJ, NF)):
    p2mfma(i, 1)
    if j == 0: A("s_nop 4")
    if j >= 1 and wl and j < TJ - 1: redwr(1, 0, wl.pop(0))
stamp("p2done")
while wl: redwr(1, 0, wl.pop(0))
for g in range(4): redwr(1, 1, g)
A("s_waitcnt lgkmcnt(0)")
A("s_barrier")
b_ = 160
for r in red_reads(1, b_): A(r)
A("s_waitcnt lgkmcnt(4)")
for p in range(4): A(f"v_pk_add_f32 {P(b_+2*p)}, {P(b_+2*p)}, {P(b_+8+2*p)}")
A("s_waitcnt lgkmcnt(0)")
for p in range(4): A(f"v_pk_add_f32 {P(b_+16+2*p)}, {P(b_+16+2*p)}, {P(b_+24+2*p)}")
for p in range(4): A(f"v_pk_add_f32 {P(b_+2*p)}, {P(b_+2*p)}, {P(b_+16+2*p)}")
for p in range(4): A(f"v_cvt_pk_bf16_f32 v{b_+8+p}, v{b_+2*p}, v{b_+2*p+1}")
out_store(b_)
if args.stamps:
    A("s_waitcnt vmcnt(0)")
    stamp("end")
    A("s_memrealtime s[12:13]")
    A("s_waitcnt lgkmcnt(0)")
    n = len(stamp_names)
    A("v_mov_b32 v64, s100\nv_mov_b32 v65, s12")
    for i in range(n): A(f"v_mov_b32 v{66+i}, s{stamp_regs[i]}")
    A(f"v_mov_b32 v{66+n}, s{s_spin}")
    A(f"s_mov_b32 s{sL+2}, 0x10000000")
    A(f"s_lshl_b32 s{s_t0}, s2, 2\ns_add_u32 s{s_t0}, s{s_t0}, s{sW}\ns_lshl_b32 s{s_t0}, s{s_t0}, 7\ns_add_u32 s{s_t0}, s{s_t0}, {STAMP_OFF}")
    if args.itst:
        A("s_mov_b64 exec, 0xfff")
        A(f"s_add_u32 s{s_t1}, s{s_t0}, {1<<20}")
        for q, r in enumerate((60, 61)): A(f"buffer_store_dword v{r}, v{v_l4}, {srd(sL)}, s{s_t1} offen offset:{48*q}")
    A("s_mov_b64 exec, 1")
    for q in range(5): A(f"buffer_store_dwordx4 v[{64+4*q}:{67+4*q}], off, {srd(sL)}, s{s_t0} offset:{16*q}")
if args.pad:
    A("s_waitcnt vmcnt(0)")
    stamp("end")
    A("s_waitcnt lgkmcnt(0)")
    A("s_sub_u32 s84, s82, s80")
    A(f"s_cmp_eq_u32 s{s_fl}, 7\ns_cselect_b32 s84, 0, s84")
    if args.padwg >= 0: A(f"s_cmp_eq_u32 s2, {args.padwg}\ns_cselect_b32 s84, s84, 0")
    A("s_min_u32 s84, s84, 10000\ns_add_u32 s84, s84, 4000")
    if args.padonly >= 0: A(f"s_cmp_lg_u32 s2, {args.padonly}\ns_cbranch_scc1 L_end")
    A("L_pad:\ns_memrealtime s[86:87]\ns_waitcnt lgkmcnt(0)\ns_sub_u32 s85, s86, s80\ns_cmp_lt_u32 s85, s84\ns_cbranch_scc1 L_pad")
A("L_end:")
A("s_endpgm")
for lbl, reissue, pre in cold:
    A(f"{lbl}_slow:")
    if pre:
        A(f"s_cmp_lg_u32 s{s_t1}, 0\ns_cbranch_scc1 {lbl}_s2\ns_mov_b32 s{s_t1}, 1\ns_waitcnt vmcnt(0)")
        A(f"s_add_u32 s{s_t0}, s{s_flagP}, {M32S}")
        A("s_mov_b32 exec_hi, 0")
        A(f"buffer_store_dword v{v_one}, v{v_l4}, {srd(sA)}, s{s_t0} offen sc1")
        A("s_mov_b32 exec_hi, -1")
        A(f"{lbl}_s2:")
    A(f"s_add_u32 s{s_spin}, s{s_spin}, 1")
    A(f"s_cmp_ge_u32 s{s_spin}, 200000")
    A(f"s_cbranch_scc1 {lbl}_ok")
    if args.sleep: A(f"s_sleep {args.sleep}")
    reissue()
    if lbl == "L_arm": A("s_waitcnt vmcnt(0)")
    A(f"s_branch {lbl}")
A("L_spare:")
for x in ids: A(x)
A(f"v_lshlrev_b32 v{vT[18]}, 7, v{v_lane}")
A(f"s_mov_b32 s{sW2+2}, 1835008\ns_mov_b32 s{sW2+3}, s{sX_+3}\ns_and_b32 s{s_xcd}, s2, 7")
A(f"s_mul_i32 s{s_so2}, s{s_ml}, 56\ns_add_u32 s{s_so2}, s{s_so2}, s{sW}\ns_lshl_b32 s{s_so2}, s{s_so2}, 13")
A(f"s_mul_i32 s{s_t2}, s{s_xcd}, 7\ns_lshr_b32 s{s_t2}, s{s_t2}, 2\ns_lshl_b32 s{s_t2}, s{s_t2}, 15\ns_add_u32 s{s_t2}, s{s_t2}, s{s_so2}")
A(f"s_mov_b32 s{sX_+2}, 2097152")
A(f"s_and_b32 s{s_t0}, s{sW}, 2\ns_add_u32 s{s_t0}, s{s_t0}, s{sW}\ns_lshl3_add_u32 s{s_xbase}, s{s_mt}, s{s_t0}\ns_add_u32 s{s_xbase}, s{s_xbase}, 2\ns_lshl_b32 s{s_xbase}, s{s_xbase}, 14")
A("s_waitcnt lgkmcnt(0)")
def spf_op(op):
    if op[0] == "x":
        A(f"s_xor_b32 s{s_t0}, s{s_fg}, {int(op == 'x2')}\ns_lshl_b32 s{s_t0}, s{s_t0}, 13\ns_add_u32 s{s_t0}, s{s_t0}, s{s_xbase}")
        A(f"buffer_load_dword v{vT[24]}, v{vT[18]}, {srd(sX_)}, s{s_t0} offen")
        return
    if op[0] == "p": A(f"s_add_u32 s{s_t0}, s{s_t2}, {32768*int(op[1])}")
    elif op[0] == "g": A(f"s_add_u32 s{s_t0}, s{s_so2}, {32768*int(op[1:])}")
    else: A(f"s_add_u32 s{s_t0}, s{s_so2}, {32768*(12+int(op[1]))}")
    A(f"buffer_load_dword v{vT[24]}, v{vT[18]}, {srd(sW2)}, s{s_t0} offen")
spf = args.spf.split()
if spf: spf_op(spf.pop(0))
for x in common + S2: A(x)
A(f"s_mov_b32 s{s_flagP}, 0")
A(f"s_cmp_lg_u32 s{sW}, 0")
A("s_cbranch_scc1 L_spare2")
A(f"v_and_b32 v{vT[12]}, 15, v{v_lane}")
A(f"v_min_u32 v{vT[12]}, 13, v{vT[12]}")
A(f"v_lshlrev_b32 v{vT[12]}, 7, v{vT[12]}")
A(f"s_mov_b32 s{s_t0}, {M32S}")
A(f"v_mul_lo_u32 v{vT[13]}, v{b}, s{s_t0}")
A(f"v_add_u32 v{vT[12]}, v{vT[12]}, v{vT[13]}")
A(f"s_mul_i32 s{s_t0}, s{s_mt}, {4*M32S}\ns_mul_i32 s{s_t1}, s{s_fg}, 1792\ns_add_u32 s{s_t0}, s{s_t0}, s{s_t1}\ns_add_u32 s{s_t0}, s{s_t0}, {FLAGOFF}")
A(f"v_mov_b32 v{vT[14]}, 0")
A(f"buffer_store_dword v{vT[14]}, v{vT[12]}, {srd(sA)}, s{s_t0} offen sc1")
A("L_spare2:")
armpos = min(args.armpos, len(spf))
for k_, op in enumerate(spf + [None]):
    if k_ == armpos:
        A(f"s_cmp_lg_u32 s{sW}, 0\ns_cbranch_scc1 L_spare3\ns_waitcnt vmcnt({armpos})\ns_mov_b64 exec, 1")
        A(f"buffer_store_dword v{v_one}, v{v_armoff}, {srd(sD)}, 0 offen sc1")
        A("s_mov_b64 exec, -1\nL_spare3:")
    if op: spf_op(op)
A(f"s_mov_b32 s{sA+2}, 0")
did = False
for pre, ins, tg, rq_ in lean_dma + [(None, None, None, "R")]:
    if rq_ == "R" and not did:
        arm_load()
        nrd = (len(lean_rds) + 7) // 8
        n_issued = sum(1 for e_ in lean_dma if e_[3] != "R")
        A(f"s_waitcnt vmcnt({n_issued - 4 * nrd + 1})")
        for x in lean_rds: A(x)
        A("s_waitcnt lgkmcnt(0)")
        did = True
    if ins:
        if pre: A(pre)
        A(ins)
A("L_arm2:")
A("s_waitcnt vmcnt(0)")
A(f"v_cmp_eq_u32 vcc, 1, v{v_arm}")
A(f"s_add_u32 s{s_spin}, s{s_spin}, 1")
A("s_cmp_eq_u64 vcc, -1")
A("s_cbranch_scc1 L_enter2")
A(f"s_cmp_ge_u32 s{s_spin}, 200000")
A("s_cbranch_scc1 L_enter2")
arm_load()
A("s_branch L_arm2")
A("L_codeend:")
tail = f""".section .rodata,"a"
.p2align 6
.amdhsa_kernel {KN}
  .amdhsa_next_free_vgpr 512
  .amdhsa_next_free_sgpr 102
  .amdhsa_accum_offset 256
  .amdhsa_group_segment_fixed_size 0
  .amdhsa_kernarg_size 56
  .amdhsa_user_sgpr_count 2
  .amdhsa_user_sgpr_kernarg_segment_ptr 1
  .amdhsa_system_sgpr_workgroup_id_x 1
.end_amdhsa_kernel"""
print(hdr); print("\n".join(L)); print(tail)
if args.stamps: print("; STAMPS: " + " ".join(stamp_names))
```

```python
import sys, argparse
ap = argparse.ArgumentParser()
I = lambda n, d: ap.add_argument("--" + n, type=int, default=d)
I("stamps", 0); I("rtst", 0); I("itst", 0); I("padwg", -1); I("padonly", -1)
I("rot", 5); I("D", 8); I("nh", 4); I("h0", 5); I("h1", 10); I("xbper", 1); I("armn", 64); I("w2num", 1); I("x2pre", 2); I("xearly", 1)
I("ne", 0); I("e0", 16); I("e1", 44)
I("w2gap", 2); I("nmish", 14); I("rdmish", 4); I("flagApos", 2); I("nb", 10); I("npoll", 8)
I("depth", 10); I("tailj", 6); I("redi", 41); I("armpos", 1); I("sleep", 0); I("biasfirst", 2); I("s2pre", 60); I("s2gap", 7)
ap.add_argument("--spf", default="x1 p0 p1 x2")
ap.add_argument("--order", default="a0 a1 a2 a3 b0 b1 b2 b3 c0 c1 c2 c3 S0 S1")
ap.add_argument("--w2rot", default="none")
ap.add_argument("--outsc", default="nt")
ap.add_argument("--pad", default="")
ap.add_argument("--name", default="standalone__dense_activation_mish__prompt")
args = ap.parse_args()
KN = args.name + "_kernel"
D = args.D; NE = args.ne
BIG = D > 3
assert (D % 2 == 0 and NE <= 1) if BIG else NE <= 4

M32S = 118784; FLAGOFF = 114688; WS_SIZE = 64 * M32S; STAMP_OFF = 16 << 20
L = []
def A(s):
    for ln in s.split("\n"):
        L.append("    " + ln if not ln.endswith(":") else ln)

sW = 3
sX_, sWW, sB, sA, sL, sD, sW2 = 20, 24, 28, 32, 36, 40, 8
def srd(b): return f"s[{b}:{b+3}]"
s_mt, s_ft, s_fg, s_fl, s_m64, s_ml, s_wm, s_wf = 44, 45, 46, 47, 48, 49, 50, 51
s_nt = 19; s_bo = 18
s_ord, s_xbase, s_wbase, s_soX, s_soW, s_ld, s_so2, s_m0s = 53, 54, 55, 56, 57, 58, 59, 60
s_t2, s_t0, s_t1 = 61, 62, 63
s_wb = [64, 65, 66, 52]; s_ab = [48, 49, 50, 51]
s_actst, s_flagP, s_flagC, s_actld, s_spin, s_outb, s_xcd = 67, 68, 69, 70, 71, 72, 73
s_cl2e = 74; s_half = 76; s_so = 78; s_w2base = 79
s_pl = [53, 59, 60, 61, 44, 45, 46]
v_lane = 1
vDX = [2, 3, 4, 5]; vDW = [6, 7, 8, 9]; vD2 = [10, 11, 12, 13]
vRX = [14, 15, 16, 17]; vRX2 = [176, 177, 178, 179]; vRW = [18, 19]; vR2 = [[20, 21], [22, 23], [35, 36]]
v_l16 = 24; v_armoff = 26; v_arm = 27; v_one = 29; v_l4 = 30
v_bo = 31; v_redw = 32; v_redr = 33; v_outo = 34
vT = list(range(38, 64))
ACC = 64
def acc(mi, j): return ACC + 32 * mi + 16 * j
BIAS = 128; XF = 160; MT = 192; OUTB = MT + 24
AF = 128; NRING = 16
XA = 49152

stamp_names = []
stamp_regs = list(range(80, 100, 2)) + [4, 6, 16, 54, 56, 14]
def stamp(name):
    if args.pad:
        if name == "start": A("s_memrealtime s[80:81]")
        if name == args.pad: A("s_memrealtime s[82:83]")
        return
    if args.stamps != 1: return
    r = stamp_regs[len(stamp_names)]; stamp_names.append(name)
    A(f"s_mem{'real' if args.rtst else ''}time s[{r}:{r+1}]")
vmq = []; vm_known = [0]
def vm(tag): vmq.append(tag)
def lastidx(tag): return max(i for i, t in enumerate(vmq) if t == tag)
def wait_vm(tag):
    idx = lastidx(tag); n = len(vmq) - 1 - idx
    assert n <= 63, n
    A(f"s_waitcnt vmcnt({n})"); vm_known[0] = max(vm_known[0], idx + 1)
lgq = []; lg_done = [0]
def lg(ins, tag=None): A(ins); lgq.append(tag)
def wait_lg(tag):
    idx = max(i for i, t in enumerate(lgq) if t == tag)
    if idx < lg_done[0]: return
    n = min(len(lgq) - 1 - idx, 12)
    A(f"s_waitcnt lgkmcnt({n})"); lg_done[0] = max(lg_done[0], len(lgq) - n)
def wait_lg0(): A("s_waitcnt lgkmcnt(0)"); lg_done[0] = len(lgq)
lastw = {}
def pad_after(key, need):
    n = 0
    for ln in L[lastw[key] + 1:]:
        t = ln.strip()
        if t.endswith(":") or t.startswith("s_mem"): continue
        n += int(t.split()[1]) + 1 if t.startswith("s_nop") else 1
    if n < need: A(f"s_nop {need - n - 1}")

hdr = f"""; fused dense -> mish -> dense, one launch, 256 persistent workgroups
; @launch grid=(256,1,1) block=(256,1,1) lds=163840
.amdgcn_target "amdgcn-amd-amdhsa--gfx950"
.text
.globl {KN}
.p2align 8
.type {KN},@function
{KN}:"""

for r, o in ((sX_, 0), (sWW, 8), (sB, 16), (sW2, 24), (12, 32), (sD, 40), (sA, 48), (sL, 48)):
    A(f"s_load_dwordx2 s[{r}:{r+1}], s[0:1], {o}")
A("s_cmp_ge_u32 s2, 256")
A("s_cbranch_scc1 L_end")
if args.stamps: A("s_memrealtime s[100:101]")
stamp("start")
a, b, c, d = vT[0], vT[1], vT[2], vT[3]
h = vT[5]; t = vT[6]; tq = vT[7]; e = vT[8]; f = vT[9]
A(f"v_lshrrev_b32 v{a}, 6, v0")
A(f"v_and_b32 v{v_lane}, 63, v0")
A(f"v_readfirstlane_b32 s{sW}, v{a}")
A(f"s_bfe_u32 s{s_fl}, s2, 0x30003")
A(f"s_mov_b32 s{sX_+3}, 0x20000")
A(f"s_cmp_lg_u32 s{s_fl}, 7")
A("s_cbranch_scc1 L_go")
A("s_getpc_b64 s[4:5]")
A("L_pcref:")
A(f"v_lshlrev_b32 v{vT[10]}, 6, v0")
A(f"v_min_u32 v{vT[10]}, L_codeend-L_pcref-4, v{vT[10]}")
A(f"v_mov_b32 v{vT[11]}, s5")
A(f"v_add_co_u32 v{vT[10]}, vcc, s4, v{vT[10]}")
A("s_nop 1")
A(f"v_addc_co_u32 v{vT[11]}, vcc, 0, v{vT[11]}, vcc")
assert vT[10] % 2 == 0
A(f"global_load_dword v{vT[24]}, v[{vT[10]}:{vT[11]}], off")
A("s_branch L_spare")
A("L_go:")
ids = [f"s_and_b32 s{s_fg}, s2, 1", f"s_lshr_b32 s{s_ml}, s2, 6", f"s_and_b32 s{s_mt}, s2, 6", f"s_lshl1_add_u32 s{s_mt}, s{s_mt}, s{s_ml}",
       f"s_lshl_b32 s{s_ld}, s{sW}, 12", f"v_lshrrev_b32 v{a}, 3, v{v_lane}", f"v_lshrrev_b32 v{b}, 4, v{v_lane}", f"v_and_b32 v{c}, 7, v{v_lane}"]
for x in ids: A(x)
A(f"s_mov_b32 s{sX_+2}, 2097152")
A(f"s_and_b32 s{s_t0}, s{sW}, 2\ns_add_u32 s{s_t0}, s{s_t0}, s{sW}\ns_lshl3_add_u32 s{s_xbase}, s{s_mt}, s{s_t0}\ns_lshl_b32 s{s_xbase}, s{s_xbase}, 14")
A(f"s_mul_i32 s{s_ft}, s{s_fg}, 7")
A(f"s_add_u32 s{s_ft}, s{s_ft}, s{s_fl}")
def rotw(): A(f"s_mov_b32 s4, 0x76543210\ns_mov_b32 s5, s4\ns_lshr_b64 s[4:5], s[4:5], s{s_t0}\ns_mov_b32 s{s_ord}, s4")
if args.rot == 5:
    A(f"s_add_u32 s{s_t0}, s{s_ml}, s{s_fl}\ns_and_b32 s{s_t0}, s{s_t0}, 1")
    A(f"s_lshr_b32 s{s_t1}, s2, 1\ns_xor_b32 s{s_t1}, s{s_t1}, s2\ns_and_b32 s{s_t1}, s{s_t1}, 1")
    A(f"s_lshl1_add_u32 s{s_t0}, s{s_t0}, s{s_t1}\ns_lshl_b32 s{s_t0}, s{s_t0}, 3"); rotw()
elif args.rot == 6:
    A(f"s_add_u32 s{s_t0}, s{s_ml}, s{s_fl}\ns_and_b32 s{s_t0}, s{s_t0}, 3\ns_lshl_b32 s{s_t0}, s{s_t0}, 3"); rotw()
elif args.rot == 2:
    A(f"s_add_u32 s{s_t0}, s{s_ml}, s{s_fl}\ns_and_b32 s{s_t0}, s{s_t0}, 1\ns_lshl_b32 s{s_t0}, s{s_t0}, 4"); rotw()
elif args.rot == 7:
    A(f"s_lshr_b32 s{s_t0}, s2, 1\ns_xor_b32 s{s_t0}, s{s_t0}, s2\ns_and_b32 s{s_t0}, s{s_t0}, 1\ns_lshl_b32 s{s_t0}, s{s_t0}, 4"); rotw()
else:
    A(f"s_mov_b32 s{s_ord}, 0x76543210")
A(f"s_mul_i32 s{s_wbase}, s{sW}, 224\ns_add_u32 s{s_wbase}, s{s_wbase}, s{s_ft}\ns_lshl_b32 s{s_wbase}, s{s_wbase}, 8")
A(f"v_xor_b32 v{d}, v{c}, v{b}")
A(f"v_lshlrev_b32 v{d}, 4, v{d}")
A(f"v_lshl_add_u32 v{vDX[0]}, v{a}, 10, v{d}")
A(f"v_xor_b32 v{d}, 64, v{vDX[0]}")
A(f"v_add_u32 v{vDX[1]}, 7168, v{d}")
A(f"v_add_u32 v{vDX[2]}, 30720, v{vDX[0]}")
A(f"v_add_u32 v{vDX[3]}, 30720, v{vDX[1]}")
A(f"v_and_b32 v{e}, 15, v{v_lane}")
A(f"v_lshlrev_b32 v{vT[4]}, 2, v{b}")
A(f"v_xor_b32 v{d}, v{e}, v{vT[4]}")
A(f"v_mul_u32_u24 v{vT[4]}, 224, v{b}")
A(f"v_add_lshl_u32 v{vDW[0]}, v{vT[4]}, v{d}, 4")
for i in range(1, 4): A(f"v_add_u32 v{vDW[i]}, {i*(4*3584-1024)}, v{vDW[0]}")
A(f"s_mov_b32 s{sWW+2}, 1835008\ns_mov_b32 s{sWW+3}, s{sX_+3}")
def soffX(j): return f"s_bfe_u32 s{s_t2}, s{s_ord}, {(3 << 16) | (4*j):#x}\ns_lshl_b32 s{s_soX}, s{s_t2}, 7\ns_add_u32 s{s_soX}, s{s_soX}, s{s_xbase}"
def soffW(): return f"s_mul_i32 s{s_soW}, s{s_t2}, 229376\ns_add_u32 s{s_soW}, s{s_soW}, s{s_wbase}"
def dma(vo, srdb, so, i): return f"buffer_load_dwordx4 v{vo}, {srd(srdb)}, s{so} offen offset:{1024*i} lds"
def m0row(r): return f"s_add_u32 m0, s{s_ld}, {r * 16384}" if r else f"s_mov_b32 m0, s{s_ld}"

deferred = lambda ch: ch >= 8 - D
def xslot(ch, mi):
    if not BIG: return 3 + ch % 3, mi
    return (5 + ch // 2, ch & 1) if mi else (3 + (ch % 4) // 2, ch & 1)
def m0x(ch, mi):
    r, hf = xslot(ch, mi)
    return f"s_add_u32 m0, s{s_ld}, {r * 16384 + (hf - mi) * 2048}"
barorder = [f"B{i}" for i in range(8)] + [f"P{i}" for i in range(4)] + ["F"]
if not BIG:
    fr_ = []
    for ch in (5, 6, 7):
        nb_ = f"B{ch+1}" if ch < 7 else ("P0" if D else "F")
        fr_.append((ch % 3, nb_)); fr_.append((3 + ch % 3, "F" if deferred(ch) or ch == 7 else nb_))
    fr_.sort(key=lambda x: barorder.index(x[1]))
    rowinfo = [(6 + i, "") for i in range(4)] + fr_
else:
    fr_ = [(2, "B6"), (3, "B6"), (0, "B7"), (1, "P0"), (4, "P0")]
    for j in range(4):
        k_ = j - (4 - D // 2)
        fr_.append((5 + j, f"B{2*j+2}" if k_ < 0 else (f"P{k_+1}" if j < 3 else "F")))
    fr_.sort(key=lambda x: barorder.index(x[1]))
    rowinfo = [(9, "")] + fr_
rows = [r for r, _ in rowinfo] + [r for r, _ in rowinfo[:4]]
rowreq = [q for _, q in rowinfo] + ["R"] * 4
passed = set([""])
def gaddr(dst, p): return f"s_add_u32 s{dst}, s{s_w2base}, {p * 32768}"
stream = []
for j in range(8):
    rq = f"B{j-2}" if j > 2 else ""
    for i in range(2 if deferred(j) else 4):
        pre = None
        if i == 0: pre = m0x(j, 0) + "\n" + soffX(j)
        if i == 2 and BIG: pre = m0x(j, 1) + "\ns_nop 0"
        rqx = (f"B{j-3}" if j > 3 else "") if BIG and args.xearly else rq
        stream.append((pre, dma(vDX[i], sX_, s_soX, i), f"c{j}", rqx))
    for i in range(4):
        stream.append(((m0row(j % 3) + "\n" + soffW()) if i == 0 else None, dma(vDW[i], sWW, s_soW, i), f"c{j}", rq))
for j in range(8 - D, 8):
    for i in (2, 3):
        stream.append(((m0x(j, 1) + "\n" + soffX(j)) if i == 2 else None, dma(vDX[i], sX_, s_soX, i), f"x{(j - 8 + D) // 2 if BIG else 0}", ""))
w2all = [((m0row(rows[p]) + "\n" + gaddr(s_soX, p)) if i == 0 else None, dma(vD2[i], sW2, s_soX, i), f"g{p}", rowreq[p]) for p in range(14) for i in range(4)]
stream += w2all[4 * NE:]
early = [(p, i) for p in range(NE) for i in range(4)]
esteps = [args.e0 + (k * (args.e1 - args.e0)) // max(1, len(early) - 1) for k in range(len(early))]
assert len(set(esteps)) == len(esteps)
def can_issue(): return bool(stream) and stream[0][3] in passed
def pre_next():
    p, i_, tg, rq = stream[0]
    if p: A(p); stream[0] = (None, i_, tg, rq)
def dma_next():
    p, i_, tg, rq = stream.pop(0)
    assert rq in passed, (tg, rq)
    if p: A(p)
    A(i_); vm(tg)

pre_next()
def bias_addr():
    A(f"s_movk_i32 s{sB+2}, 3584\ns_mov_b32 s{sB+3}, s{sX_+3}")
    A(f"v_lshlrev_b32 v{v_bo}, 11, v{v_lane}")
    A(f"v_and_b32 v{v_bo}, 0x10000, v{v_bo}")
    A(f"v_lshl_add_u32 v{v_bo}, v{v_lane}, 1, v{v_bo}")
    A(f"s_lshr_b32 s{s_bo}, s{sW}, 1\ns_lshl1_add_u32 s{s_bo}, s{s_ft}, s{s_bo}\ns_lshl_b32 s{s_bo}, s{s_bo}, 7")
def bias_load():
    for fi in range(2):
        A(f"buffer_load_ushort v{BIAS+4*fi}, v{v_bo}, {srd(sB)}, s{s_bo} offen offset:{64*fi}"); vm("c0")
if args.biasfirst == 1: bias_addr()
A("s_waitcnt lgkmcnt(0)")
stamp("karg")
if args.biasfirst == 1: bias_load()
for i in range(8):
    dma_next()
    if i == 4 and args.biasfirst == 2: bias_addr(); bias_load()
common = [f"v_lshrrev_b32 v{h}, 5, v{v_lane}", f"v_and_b32 v{d}, 1, v{b}", f"v_bfe_u32 v{tq}, v{v_lane}, 2, 2",
          f"v_and_b32 v{vT[4]}, 3, v{v_lane}", f"v_lshlrev_b32 v{vT[4]}, 3, v{vT[4]}", f"v_lshl_add_u32 v{vT[4]}, v{d}, 5, v{vT[4]}",
          f"s_and_b32 s{s_wm}, s{sW}, 1", f"s_lshr_b32 s{s_wf}, s{sW}, 1"]
for x in common: A(x)
A(f"s_lshl_b32 s{s_t0}, s{s_wm}, 13\ns_add_u32 s{s_t0}, s{s_t0}, {XA}")
A(f"v_lshl_add_u32 v{e}, v{e}, 7, s{s_t0}")
A(f"v_lshl_add_u32 v{e}, v{d}, 12, v{e}")
A(f"v_bfe_u32 v{f}, v{v_lane}, 1, 3")
A(f"v_xor_b32 v{f}, v{f}, v{h}")
A(f"v_lshl_add_u32 v{vRX[0]}, v{f}, 4, v{e}")
for s in range(1, 4): A(f"v_xor_b32 v{vRX[s]}, {32*s}, v{vRX[0]}")
A(f"v_lshl_add_u32 v{f}, v{h}, 3, v{tq}")
A(f"v_lshl_add_u32 v{f}, v{f}, 8, v{vT[4]}")
A(f"s_and_b32 s{s_t0}, s{sW}, 2")
A(f"v_xor_b32 v{t}, s{s_t0}, v{tq}")
A(f"v_lshl_add_u32 v{vRW[0]}, v{t}, 6, v{f}")
A(f"v_xor_b32 v{vRW[1]}, 64, v{vRW[0]}")
if not args.biasfirst: bias_addr()
A(f"v_xor_b32 v{BIAS+8}, 1, v{h}")
A(f"v_mul_u32_u24 v{BIAS+8}, 0x3f80, v{BIAS+8}")
for i in (1, 2, 3, 5, 6, 7, 9, 10, 11): A(f"v_mov_b32 v{BIAS+i}, 0")

S2 = f"""s_mov_b32 s{sB+3}, s{sX_+3}
s_mov_b32 s{sW2+2}, 1835008
s_mov_b32 s{sW2+3}, s{sX_+3}
s_mov_b32 s{sA+2}, {WS_SIZE}
s_mov_b32 s{sA+3}, s{sX_+3}
s_mov_b32 s{sL+2}, s{sA+2}
s_mov_b32 s{sL+3}, s{sX_+3}
s_movk_i32 s{sD+2}, 256
s_mov_b32 s{sD+3}, s{sX_+3}
s_and_b32 s{s_xcd}, s2, 7
s_xor_b32 s{s_nt}, s{s_fl}, 4
s_lshl2_add_u32 s{s_m64}, s{s_xcd}, s{s_ml}
v_lshlrev_b32 v{e}, 2, v{d}
v_xor_b32 v{e}, v{c}, v{e}
v_lshlrev_b32 v{e}, 4, v{e}
v_lshl_add_u32 v{vD2[0]}, v{a}, 10, v{e}
v_add_u32 v{vD2[1]}, 7168, v{vD2[0]}
v_add_u32 v{vD2[2]}, 14336, v{vD2[0]}
v_add_u32 v{vD2[3]}, 21504, v{vD2[0]}
v_lshl_add_u32 v{f}, v{h}, 2, v{tq}
v_lshl_add_u32 v{f}, v{f}, 7, v{vT[4]}
v_bfe_u32 v{t}, v{v_lane}, 3, 1
v_lshl_add_u32 v{f}, v{t}, 6, v{f}
v_add_u32 v{vR2[0][0]}, s{s_ld}, v{f}
v_xor_b32 v{vR2[0][1]}, 64, v{vR2[0][0]}
v_add_u32 v{vR2[1][0]}, 65536, v{vR2[0][0]}
v_add_u32 v{vR2[1][1]}, 65536, v{vR2[0][1]}
v_add_u32 v{vR2[2][0]}, 131072, v{vR2[0][0]}
v_add_u32 v{vR2[2][1]}, 131072, v{vR2[0][1]}
v_lshlrev_b32 v{v_l16}, 4, v{v_lane}
v_mov_b32 v{v_one}, 1
v_lshlrev_b32 v{v_l4}, 2, v{v_lane}
s_lshl1_add_u32 s{s_t0}, s{s_mt}, s{s_fg}
s_lshl_b32 s{s_t0}, s{s_t0}, 2
s_and_b32 s{s_t1}, s{s_m64}, 30
s_add_u32 s{s_t1}, s{s_t1}, s{s_wf}
s_lshl_b32 s{s_t1}, s{s_t1}, 2
s_sub_u32 s{s_t1}, s{s_t1}, s{s_t0}
v_mul_lo_u32 v{v_armoff}, v{h}, s{s_t1}
v_add_u32 v{v_armoff}, s{s_t0}, v{v_armoff}
v_and_b32 v{e}, 15, v{v_lane}
v_lshl_add_u32 v{e}, v{e}, 8, s{s_ld}
v_lshl_add_u32 v{e}, v{d}, 14, v{e}
v_xor_b32 v{f}, v{c}, v{h}
v_lshl_add_u32 v{v_redw}, v{f}, 4, v{e}
s_lshl_b32 s{s_t0}, s{s_wf}, 14
s_lshl_b32 s{s_t1}, s{s_wm}, 11
s_add_u32 s{s_t0}, s{s_t0}, s{s_t1}
v_lshl_add_u32 v{e}, v{a}, 8, s{s_t0}
v_lshlrev_b32 v{f}, 1, v{c}
v_xor_b32 v{f}, v{f}, v{a}
v_lshl_add_u32 v{v_redr}, v{f}, 4, v{e}
v_lshlrev_b32 v{e}, 4, v{c}
v_lshl_add_u32 v{v_outo}, v{a}, 10, v{e}
s_mul_i32 s{s_w2base}, s{sW}, 3584
s_add_u32 s{s_w2base}, s{s_w2base}, s{s_nt}
s_lshl_b32 s{s_w2base}, s{s_w2base}, 7""".split("\n")
S2 += f"""s_mul_i32 s{s_t0}, s{s_m64}, {2*M32S}
s_mul_i32 s{s_flagC}, s{sW}, 896
s_add_u32 s{s_flagC}, s{s_flagC}, s{s_t0}
s_add_u32 s{s_flagC}, s{s_flagC}, {FLAGOFF}
s_mul_i32 s{s_actld}, s{sW}, 28672
s_add_u32 s{s_actld}, s{s_actld}, s{s_t0}
s_lshl3_add_u32 s{s_outb}, s{s_m64}, s{sW}
s_lshl_b32 s{s_outb}, s{s_outb}, 6
s_add_u32 s{s_outb}, s{s_outb}, s{s_nt}
s_lshl_b32 s{s_outb}, s{s_outb}, 7
s_mov_b32 s{s_spin}, 0""".split("\n")
S2p = f"""s_lshl1_add_u32 s{s_t0}, s{s_mt}, s{s_wm}
s_mul_i32 s{s_t0}, s{s_t0}, {2*M32S}
s_lshl_b32 s{s_actst}, s{s_bo}, 5
s_add_u32 s{s_actst}, s{s_actst}, s{s_t0}
s_add_u32 s{s_flagP}, s{s_bo}, s{s_t0}
s_add_u32 s{s_flagP}, s{s_flagP}, {FLAGOFF}
s_mov_b32 s{s_cl2e}, 0xbfb8aa3b
s_mov_b32 s{s_cl2e+1}, s{s_cl2e}
s_mov_b32 s{s_half}, 0.5
s_mov_b32 s{s_half+1}, 0.5""".split("\n")
s2q = S2[1:] + S2p
if BIG:
    rx2 = [f"v_add_u32 v{vRX2[s]}, 32768, v{vRX[s]}" for s in range(4)]
    if D == 8: s2q += rx2
    else:
        for x in rx2: A(x)
def emit_s2(k):
    for _ in range(k):
        if s2q: A(s2q.pop(0))
emit_s2(args.s2pre)
stamp("setup")
if not args.biasfirst: bias_load()
while stream[0][2] == "c1": dma_next()
if deferred(0):
    for i in range(args.x2pre): dma_next()

seq = []
for ch in range(8):
    for s in range(4):
        seq.append((ch, 0, s))
        if not deferred(ch): seq.append((ch, 1, s))
nA = len(seq)
for ch in range(8 - D, 8): seq += [(ch, 1, s) for s in range(4)]
assert len(seq) == 64
def xf(n): return XF + 4 * (n % 4)
def rd_x(n):
    ch, mi, s = seq[n]
    r, hf = xslot(ch, mi)
    va, r0 = (vRX2[s], 5) if BIG and mi else (vRX[s], 3)
    lg(f"ds_read_b128 v[{xf(n)}:{xf(n)+3}], v{va} offset:{(r - r0)*16384 + 2048*hf}", f"x{n}")
def rd_w(n, fi):
    ch, mi, s = seq[n]
    if mi: return
    for a_ in range(2):
        r = (ch * 4 + s) * 8 + 4 * fi + 2 * a_
        lg(f"ds_read_b64_tr_b16 a[{r}:{r+1}], v{vRW[fi]} offset:{(ch % 3)*16384+4096*s+1024*a_}", f"w{n}_{fi}")
def mfma1(n, fi):
    ch, mi, s = seq[n]
    Dr = acc(mi, fi); wr = (ch * 4 + s) * 8 + 4 * fi
    C = f"v[{Dr}:{Dr+15}]"
    A(f"v_mfma_f32_32x32x16_bf16 v[{Dr}:{Dr+15}], a[{wr}:{wr+3}], v[{xf(n)}:{xf(n)+3}], {C}"); lastw[(mi, fi)] = len(L) - 1
def mfma_bias(mi, fi):
    Dr = acc(mi, fi)
    A(f"v_mfma_f32_32x32x16_bf16 v[{Dr}:{Dr+15}], v[{BIAS+4*fi}:{BIAS+4*fi+3}], v[{BIAS+8}:{BIAS+11}], 0")
P = lambda r: f"v[{r}:{r+1}]"
def mish_pk(k):
    hb = ACC + 8 * k; ob = OUTB + 4 * k
    U, N, Dd = MT, MT + 8, MT + 16
    o = [f"v_pk_mul_f32 {P(U+2*p)}, {P(hb+2*p)}, s[{s_cl2e}:{s_cl2e+1}]" for p in range(4)]
    o += [f"v_exp_f32 v{U+i}, v{U+i}" for i in range(8)]
    o += [f"v_pk_add_f32 {P(N+2*p)}, {P(U+2*p)}, s[{s_half}:{s_half+1}]" for p in range(4)]
    o += [f"v_pk_fma_f32 {P(Dd+2*p)}, {P(U+2*p)}, {P(U+2*p)}, {P(N+2*p)}" for p in range(4)]
    o += [f"v_rcp_f32 v{Dd+i}, v{Dd+i}" for i in range(8)]
    o += [f"v_pk_mul_f32 {P(N+2*p)}, {P(N+2*p)}, {P(Dd+2*p)} clamp" for p in range(4)]
    o += [f"v_pk_mul_f32 {P(N+2*p)}, {P(N+2*p)}, {P(hb+2*p)}" for p in range(4)]
    o += [f"v_cvt_pk_bf16_f32 v{ob+p}, v{N+2*p}, v{N+2*p+1}" for p in range(4)]
    return o
def st_act(k):
    ob = OUTB + 4 * k
    if k == 4: A(f"s_add_u32 s{s_actst}, s{s_actst}, {M32S}")
    A(f"buffer_store_dwordx4 v[{ob}:{ob+3}], v{v_l16}, {srd(sA)}, s{s_actst} offen offset:{1024*(k & 3)} sc1"); vm(f"st{k >> 2}")
def arm_load(): A(f"buffer_load_dword v{v_arm}, v{v_armoff}, {srd(sD)}, 0 offen sc1")
NH = args.nh if D else 0
mA = []
U, N, Dd = MT, MT + 8, MT + 16
stg = [lambda i: (f"v_mul_f32 v{U+i%8}, s{s_cl2e}, v{ACC+i}", 4), lambda i: (f"v_exp_f32 v{U+i%8}, v{U+i%8}", 8),
       lambda i: (f"v_add_f32 v{N+i%8}, 0.5, v{U+i%8}", 4), lambda i: (f"v_fma_f32 v{Dd+i%8}, v{U+i%8}, v{U+i%8}, v{N+i%8}", 5),
       lambda i: (f"v_rcp_f32 v{Dd+i%8}, v{Dd+i%8}", 8), lambda i: (f"v_mul_f32 v{N+i%8}, v{N+i%8}, v{Dd+i%8} clamp", 5),
       lambda i: (f"v_mul_f32 v{N+i%8}, v{N+i%8}, v{ACC+i}", 4),
       lambda i: (f"v_cvt_pk_bf16_f32 v{OUTB+i//2}, v{N+(i-1)%8}, v{N+i%8}", 5) if i & 1 else None]
for tt in range(8 * NH + 7 if NH else 0):
    for k in (7, 1, 6, 5, 3, 4, 2, 0):
        i = tt - k
        if 0 <= i < 8 * NH and stg[k](i):
            if mA and mA[-1][0].startswith(("v_exp", "v_rcp")) and mA[-1][0].split()[1].rstrip(",") in [z.strip(",") for z in stg[k](i)[0].split()[2:]]:
                mA.append(("s_nop 0", 4))
            mA.append(stg[k](i))
            if k == 7 and i % 8 == 7: mA.append(("ST", i // 8))
totA = sum(c_ for i_, c_ in mA if i_ != "ST"); doneA = [0]
g0 = 2 * nA + args.h0 - 1; ngaps = 128 - g0 - args.h1
def mishA_gap(g):
    if g < g0 or not mA: return
    if g == g0: pad_after((0, 0), 12)
    target = totA * (g - g0 + 1) / ngaps
    while mA and (doneA[0] < target - 2 or mA[0][0] == "ST"):
        i_, c_ = mA.pop(0)
        if i_ == "ST": st_act(c_)
        else: A(i_); doneA[0] += c_

pre_next()
wait_vm("c0")
stamp("c0_land")
A("s_barrier"); passed.add("B0")
mfma_bias(0, 0)
for n in range(2): rd_x(n); rd_w(n, 0); rd_w(n, 1)
mfma_bias(0, 1); emit_s2(args.s2gap); mfma_bias(1, 0); emit_s2(args.s2gap); mfma_bias(1, 1)
if not deferred(0): dma_next(); dma_next()
nbar = [0]
for n in range(64):
    nx = n + 2
    ch, mi, s = seq[n]
    bar = None
    if nx < nA and seq[nx][1:] == (0, 0): bar = (f"B{seq[nx][0]}", f"c{seq[nx][0]}")
    if nA <= nx < 64 and (nx == nA or (BIG and (nx - nA) % 8 == 0)): bar = (f"P{(nx-nA)//8}", f"x{(nx-nA)//8}")
    if nx == 64: bar = ("F", None)
    wait_lg(f"x{n}" if mi else f"w{n}_0")
    mfma1(n, 0)
    if bar:
        if bar[1]:
            while any(e_[2] == bar[1] for e_ in stream): dma_next()
            if args.itst: A("s_memtime s[4:5]")
            wait_vm(bar[1])
        if args.itst: A("s_memtime s[6:7]")
        wait_lg0()
        if args.itst: A(f"v_writelane_b32 v60, s4, {nbar[0]}\nv_writelane_b32 v61, s6, {nbar[0]}"); nbar[0] += 1
        A("s_barrier"); passed.add(bar[0])
    def loads(g):
        if not can_issue(): return
        kind = stream[0][2][0]
        if BIG and kind == "x": ok = args.xbper == 2 or g & 1 == 0
        elif n >= nA or (BIG and kind == "g"): ok = g % args.w2gap < args.w2num
        elif deferred(ch): ok = True
        else: ok = g & 1
        if ok: dma_next()
    if nx < 64: rd_x(nx); rd_w(nx, 0)
    mishA_gap(2 * n)
    emit_s2(args.s2gap)
    if n in esteps:
        assert not s2q
        p, i = early.pop(0)
        A(f"s_mov_b32 s{s_m0s}, m0"); A(m0row(rows[p]))
        A(gaddr(s_so2, p) if i == 0 else "s_nop 0")
        A(dma(vD2[i], sW2, s_so2, i)); vm(f"g{p}")
        A(f"s_mov_b32 m0, s{s_m0s}")
    else: loads(2 * n)
    if can_issue(): pre_next()
    if not mi: wait_lg(f"w{n}_1")
    mfma1(n, 1)
    if nx < 64: rd_w(nx, 1)
    if n == nA - 1: stamp("pAdone")
    if n == args.armn: arm_load(); vm("arm")
    mishA_gap(2 * n + 1)
    emit_s2(args.s2gap)
    loads(2 * n + 1)
assert not early and not mA
stamp("p1done")
p1end = len(L)

def w2_reads(p):
    out = []; r_ = rows[p]
    for i in range(4):
        j = 4 * p + i; ks, a_ = j >> 1, j & 1
        for ni in range(2):
            r = (ks * 2 + ni) * 4 + 2 * a_
            out.append(f"ds_read_b64_tr_b16 a[{r}:{r+1}], v{vR2[r_ >> 2][ni]} offset:{(r_ & 3)*16384+1024*i}")
    return out
def flag(stage):
    if stage == 1: A(f"s_add_u32 s{s_flagP}, s{s_flagP}, {M32S}")
    A("s_mov_b32 exec_hi, 0")
    A(f"buffer_store_dword v{v_one}, v{v_l4}, {srd(sA)}, s{s_flagP} offen sc1")
    A("s_mov_b32 exec_hi, -1")
def poll_issue():
    for i in range(7): A(f"s_buffer_load_dword s{s_pl[i]}, {srd(sL)}, s{s_flagC} offset:{128*i} glc")
cold = []
def spin_check(lbl, reissue, pre=None):
    A(f"{lbl}:")
    if lbl != "L_arm":
        wait_lg0()
        for i in range(1, 7): A(f"s_and_b32 s{s_pl[0]}, s{s_pl[0]}, s{s_pl[i]}")
    else:
        A(f"v_cmp_eq_u32 vcc, 1, v{v_arm}"); A("s_nop 0"); A("s_cmp_eq_u64 vcc, -1")
    A(f"s_cbranch_scc0 {lbl}_slow")
    A(f"{lbl}_ok:")
    cold.append((lbl, reissue, pre))
nextp = [0]; rq = []
def queue_pos(force=False, age=12):
    p = nextp[0]
    if p >= 14 or vmq.count(f"g{p}") < 4: return False
    last = lastidx(f"g{p}")
    if last >= vm_known[0]:
        if not force and len(vmq) - 1 - last < age: return False
        wait_vm(f"g{p}")
    rq.extend((r, f"q{p}") for r in w2_reads(p)); nextp[0] += 1
    return True
def fill(k, age=12):
    for _ in range(k):
        if not rq and not queue_pos(age=age): return
        r, tg = rq.pop(0); lg(r, tg)
def need_pos(p):
    while nextp[0] <= p: assert queue_pos(force=True)
    while any(tg == f"q{p}" for _, tg in rq):
        r, tg = rq.pop(0); lg(r, tg)
    wait_lg(f"q{p}")
passed.add("R")
def dma_next2():
    if stream[0][3] == "R": need_pos(int(stream[0][2][1:]) - 10)
    dma_next()
def pubA():
    wait_vm(max(("arm", "st0"), key=lastidx))
    spin_check("L_arm", arm_load)
    flag(0); vm("flagA")
    stamp("flagA")
if args.armn >= 64: arm_load(); vm("arm")
nfr = 8 - NH
nm = args.nmish
slotset = set(int((k + 0.5) * 40 * nfr / nm) for k in range(nm)) if nm else set()
for k_ in range(NH, 8):
    if k_ == 4 + args.flagApos: pubA()
    pad_after((k_ >> 2, (k_ >> 1) & 1), 12)
    for n, ins in enumerate(mish_pk(k_)):
        A(ins)
        if (k_ - NH) * 40 + n in slotset and len(stream) > args.npoll: dma_next2()
        if k_ >= 4 and n % 4 == 1 and (rq or nextp[0] < args.rdmish): fill(1, 16)
    st_act(k_)
    if k_ == 3 and NH < 4: stamp("mish0")
stamp("mish1")
if args.flagApos >= 4: pubA()
assert stream[0][0] is not None or w2all[56 - len(stream)][0] is None
A("L_enter2:")
lean_dma = w2all[:56 - len(stream)]
lean_rds = [x.strip() for x in L[p1end:] if "ds_read_b64_tr_b16 a[" in x]
polled = len(stream) <= args.npoll
if polled: poll_issue()
k = 0; flagB_done = False
def maybe_flagB():
    global flagB_done
    if not flagB_done and k >= args.nb:
        wait_vm("st1"); flag(1); vm("flagB"); flagB_done = True
        stamp("flagB")
while stream:
    dma_next2(); k += 1; maybe_flagB(); fill(4)
    if len(stream) == args.npoll and not polled: poll_issue(); polled = True
if not flagB_done: A(f"s_mov_b32 s{s_t1}, 0")
stamp("w2iss")
spin_check("L_pollA", poll_issue, pre=None if flagB_done else "B")
stamp("pollA")
DEP = args.depth; NF = 56
assert DEP < NRING
def af(i): return AF + 4 * (i % NRING)
def act_load(i):
    global k
    mi, ks = divmod(i, 28)
    if i == 28:
        spin_check("L_pollB", poll_issue)
    if ks % 4 == 0: A(f"s_add_u32 s{s_so}, s{s_actld}, {mi*M32S + ks*1024}")
    A(f"buffer_load_dwordx4 v[{af(i)}:{af(i)+3}], v{v_l16}, {srd(sL)}, s{s_so} offen offset:{(ks%4)*1024} sc1"); vm(f"a{i}")
    k += 1; maybe_flagB()
for i in range(DEP): act_load(i); fill(6)
PB = 28 - DEP - 8
redw = [(ni, g) for ni in range(2) for g in range(4)]
R = 192
def red_reads(mi, base):
    return [f"ds_read_b128 v[{base+8*src+4*e_}:{base+8*src+4*e_+3}], v{[v_redr, vT[4]][e_]} offset:{src*4096 + 32768*mi}" for src in range(4) for e_ in range(2)]
def out_store(b_): A(f"buffer_store_dwordx4 v[{b_+8}:{b_+11}], v{v_outo}, {srd(sB)}, s{s_outb} offen {args.outsc}")
side = []; TJ = args.tailj
def p2mfma(i, ni):
    mi, ks = divmod(i, 28)
    Dr = acc(mi, ni); wr = (ks * 2 + ni) * 4
    C = "0" if ks == 0 else f"v[{Dr}:{Dr+15}]"
    A(f"v_mfma_f32_32x32x16_bf16 v[{Dr}:{Dr+15}], a[{wr}:{wr+3}], v[{af(i)}:{af(i)+3}], {C}"); lastw[(mi, ni)] = len(L) - 1
def redwr(mi, ni, g):
    pad_after((mi, ni), 12)
    r = acc(mi, ni) + 4 * g
    A(f"ds_write_b128 v{v_redw if g == 0 else vT[g]}, v[{r}:{r+3}] offset:{32768*mi+128*ni}")
for i in range(NF):
    mi, ks = divmod(i, 28)
    wait_vm(f"a{i}")
    if i == 0: stamp("a0")
    if mi == 0 and ks % 2 == 0: need_pos(ks >> 1)
    for ni in range(2 if i < NF - TJ else 1):
        p2mfma(i, ni); fill(2)
        for _ in range(3):
            if side: A(side.pop(0))
    if i == PB:
        A(f"s_add_u32 s{s_flagC}, s{s_flagC}, {M32S}"); poll_issue()
    if i + DEP < NF: act_load(i + DEP)
    if i == 26:
        for gg in range(1, 4): A(f"v_xor_b32 v{vT[gg]}, {32*gg}, v{v_redw}")
        A(f"s_mov_b32 s{sB}, s12\ns_mov_b32 s{sB+1}, s13\ns_mov_b32 s{sB+2}, 2097152")
        A(f"v_xor_b32 v{vT[4]}, 16, v{v_redr}")
    if mi == 1 and 3 <= ks < 11: redwr(0, *redw[ks - 3])
    if i == args.redi:
        A("s_waitcnt lgkmcnt(0)"); A("s_barrier"); side = red_reads(0, R)
    if i == args.redi + 3:
        A("s_waitcnt lgkmcnt(0)")
        side = [f"v_add_f32 v{R+j}, v{R+j}, v{R+8+j}" for j in range(8)] + [f"v_add_f32 v{R+16+j}, v{R+16+j}, v{R+24+j}" for j in range(8)]
        side += [f"v_add_f32 v{R+j}, v{R+j}, v{R+16+j}" for j in range(8)] + [f"v_cvt_pk_bf16_f32 v{R+8+p}, v{R+2*p}, v{R+2*p+1}" for p in range(4)]
    if i == args.redi + 9:
        assert not side and i + DEP >= NF - 1
        out_store(R); vm("o")
        A(f"s_add_u32 s{s_outb}, s{s_outb}, 32768")
assert flagB_done and not stream
wl = list(range(4))
for j, i in enumerate(range(NF - TJ, NF)):
    p2mfma(i, 1)
    if j == 0: A("s_nop 4")
    if j >= 1 and wl and j < TJ - 1: redwr(1, 0, wl.pop(0))
stamp("p2done")
while wl: redwr(1, 0, wl.pop(0))
for g in range(4): redwr(1, 1, g)
A("s_waitcnt lgkmcnt(0)")
A("s_barrier")
b_ = 160
for r in red_reads(1, b_): A(r)
A("s_waitcnt lgkmcnt(4)")
for p in range(4): A(f"v_pk_add_f32 {P(b_+2*p)}, {P(b_+2*p)}, {P(b_+8+2*p)}")
A("s_waitcnt lgkmcnt(0)")
for p in range(4): A(f"v_pk_add_f32 {P(b_+16+2*p)}, {P(b_+16+2*p)}, {P(b_+24+2*p)}")
for p in range(4): A(f"v_pk_add_f32 {P(b_+2*p)}, {P(b_+2*p)}, {P(b_+16+2*p)}")
for p in range(4): A(f"v_cvt_pk_bf16_f32 v{b_+8+p}, v{b_+2*p}, v{b_+2*p+1}")
out_store(b_)
if args.stamps:
    A("s_waitcnt vmcnt(0)")
    stamp("end")
    A("s_memrealtime s[12:13]")
    A("s_waitcnt lgkmcnt(0)")
    n = len(stamp_names)
    A("v_mov_b32 v64, s100\nv_mov_b32 v65, s12")
    for i in range(n): A(f"v_mov_b32 v{66+i}, s{stamp_regs[i]}")
    A(f"v_mov_b32 v{66+n}, s{s_spin}")
    A(f"s_mov_b32 s{sL+2}, 0x10000000")
    A(f"s_lshl_b32 s{s_t0}, s2, 2\ns_add_u32 s{s_t0}, s{s_t0}, s{sW}\ns_lshl_b32 s{s_t0}, s{s_t0}, 7\ns_add_u32 s{s_t0}, s{s_t0}, {STAMP_OFF}")
    if args.itst:
        A("s_mov_b64 exec, 0xfff")
        A(f"s_add_u32 s{s_t1}, s{s_t0}, {1<<20}")
        for q, r in enumerate((60, 61)): A(f"buffer_store_dword v{r}, v{v_l4}, {srd(sL)}, s{s_t1} offen offset:{48*q}")
    A("s_mov_b64 exec, 1")
    for q in range(5): A(f"buffer_store_dwordx4 v[{64+4*q}:{67+4*q}], off, {srd(sL)}, s{s_t0} offset:{16*q}")
if args.pad:
    A("s_waitcnt vmcnt(0)")
    stamp("end")
    A("s_waitcnt lgkmcnt(0)")
    A("s_sub_u32 s84, s82, s80")
    A(f"s_cmp_eq_u32 s{s_fl}, 7\ns_cselect_b32 s84, 0, s84")
    if args.padwg >= 0: A(f"s_cmp_eq_u32 s2, {args.padwg}\ns_cselect_b32 s84, s84, 0")
    A("s_min_u32 s84, s84, 10000\ns_add_u32 s84, s84, 4000")
    if args.padonly >= 0: A(f"s_cmp_lg_u32 s2, {args.padonly}\ns_cbranch_scc1 L_end")
    A("L_pad:\ns_memrealtime s[86:87]\ns_waitcnt lgkmcnt(0)\ns_sub_u32 s85, s86, s80\ns_cmp_lt_u32 s85, s84\ns_cbranch_scc1 L_pad")
A("L_end:")
A("s_endpgm")
for lbl, reissue, pre in cold:
    A(f"{lbl}_slow:")
    if pre:
        A(f"s_cmp_lg_u32 s{s_t1}, 0\ns_cbranch_scc1 {lbl}_s2\ns_mov_b32 s{s_t1}, 1\ns_waitcnt vmcnt(0)")
        A(f"s_add_u32 s{s_t0}, s{s_flagP}, {M32S}")
        A("s_mov_b32 exec_hi, 0")
        A(f"buffer_store_dword v{v_one}, v{v_l4}, {srd(sA)}, s{s_t0} offen sc1")
        A("s_mov_b32 exec_hi, -1")
        A(f"{lbl}_s2:")
    A(f"s_add_u32 s{s_spin}, s{s_spin}, 1")
    A(f"s_cmp_ge_u32 s{s_spin}, 200000")
    A(f"s_cbranch_scc1 {lbl}_ok")
    if args.sleep: A(f"s_sleep {args.sleep}")
    reissue()
    if lbl == "L_arm": A("s_waitcnt vmcnt(0)")
    A(f"s_branch {lbl}")
A("L_spare:")
for x in ids: A(x)
A(f"v_lshlrev_b32 v{vT[18]}, 7, v{v_lane}")
A(f"s_mov_b32 s{sW2+2}, 1835008\ns_mov_b32 s{sW2+3}, s{sX_+3}\ns_and_b32 s{s_xcd}, s2, 7")
A(f"s_mul_i32 s{s_so2}, s{s_ml}, 56\ns_add_u32 s{s_so2}, s{s_so2}, s{sW}\ns_lshl_b32 s{s_so2}, s{s_so2}, 13")
A(f"s_mul_i32 s{s_t2}, s{s_xcd}, 7\ns_lshr_b32 s{s_t2}, s{s_t2}, 2\ns_lshl_b32 s{s_t2}, s{s_t2}, 15\ns_add_u32 s{s_t2}, s{s_t2}, s{s_so2}")
A(f"s_mov_b32 s{sX_+2}, 2097152")
A(f"s_and_b32 s{s_t0}, s{sW}, 2\ns_add_u32 s{s_t0}, s{s_t0}, s{sW}\ns_lshl3_add_u32 s{s_xbase}, s{s_mt}, s{s_t0}\ns_add_u32 s{s_xbase}, s{s_xbase}, 2\ns_lshl_b32 s{s_xbase}, s{s_xbase}, 14")
A("s_waitcnt lgkmcnt(0)")
def spf_op(op):
    if op[0] == "x":
        A(f"s_xor_b32 s{s_t0}, s{s_fg}, {int(op == 'x2')}\ns_lshl_b32 s{s_t0}, s{s_t0}, 13\ns_add_u32 s{s_t0}, s{s_t0}, s{s_xbase}")
        A(f"buffer_load_dword v{vT[24]}, v{vT[18]}, {srd(sX_)}, s{s_t0} offen")
        return
    if op[0] == "p": A(f"s_add_u32 s{s_t0}, s{s_t2}, {32768*int(op[1])}")
    elif op[0] == "g": A(f"s_add_u32 s{s_t0}, s{s_so2}, {32768*int(op[1:])}")
    else: A(f"s_add_u32 s{s_t0}, s{s_so2}, {32768*(12+int(op[1]))}")
    A(f"buffer_load_dword v{vT[24]}, v{vT[18]}, {srd(sW2)}, s{s_t0} offen")
spf = args.spf.split()
if spf: spf_op(spf.pop(0))
for x in common + S2: A(x)
A(f"s_mov_b32 s{s_flagP}, 0")
A(f"s_cmp_lg_u32 s{sW}, 0")
A("s_cbranch_scc1 L_spare2")
A(f"v_and_b32 v{vT[12]}, 15, v{v_lane}")
A(f"v_min_u32 v{vT[12]}, 13, v{vT[12]}")
A(f"v_lshlrev_b32 v{vT[12]}, 7, v{vT[12]}")
A(f"s_mov_b32 s{s_t0}, {M32S}")
A(f"v_mul_lo_u32 v{vT[13]}, v{b}, s{s_t0}")
A(f"v_add_u32 v{vT[12]}, v{vT[12]}, v{vT[13]}")
A(f"s_mul_i32 s{s_t0}, s{s_mt}, {4*M32S}\ns_mul_i32 s{s_t1}, s{s_fg}, 1792\ns_add_u32 s{s_t0}, s{s_t0}, s{s_t1}\ns_add_u32 s{s_t0}, s{s_t0}, {FLAGOFF}")
A(f"v_mov_b32 v{vT[14]}, 0")
A(f"buffer_store_dword v{vT[14]}, v{vT[12]}, {srd(sA)}, s{s_t0} offen sc1")
A("L_spare2:")
armpos = min(args.armpos, len(spf))
for k_, op in enumerate(spf + [None]):
    if k_ == armpos:
        A(f"s_cmp_lg_u32 s{sW}, 0\ns_cbranch_scc1 L_spare3\ns_waitcnt vmcnt({armpos})\ns_mov_b64 exec, 1")
        A(f"buffer_store_dword v{v_one}, v{v_armoff}, {srd(sD)}, 0 offen sc1")
        A("s_mov_b64 exec, -1\nL_spare3:")
    if op: spf_op(op)
A(f"s_mov_b32 s{sA+2}, 0")
did = False
for pre, ins, tg, rq_ in lean_dma + [(None, None, None, "R")]:
    if rq_ == "R" and not did:
        arm_load()
        nrd = (len(lean_rds) + 7) // 8
        n_issued = sum(1 for e_ in lean_dma if e_[3] != "R")
        A(f"s_waitcnt vmcnt({n_issued - 4 * nrd + 1})")
        for x in lean_rds: A(x)
        A("s_waitcnt lgkmcnt(0)")
        did = True
    if ins:
        if pre: A(pre)
        A(ins)
A("L_arm2:")
A("s_waitcnt vmcnt(0)")
A(f"v_cmp_eq_u32 vcc, 1, v{v_arm}")
A(f"s_add_u32 s{s_spin}, s{s_spin}, 1")
A("s_cmp_eq_u64 vcc, -1")
A("s_cbranch_scc1 L_enter2")
A(f"s_cmp_ge_u32 s{s_spin}, 200000")
A("s_cbranch_scc1 L_enter2")
arm_load()
A("s_branch L_arm2")
A("L_codeend:")
tail = f""".section .rodata,"a"
.p2align 6
.amdhsa_kernel {KN}
  .amdhsa_next_free_vgpr 512
  .amdhsa_next_free_sgpr 102
  .amdhsa_accum_offset 256
  .amdhsa_group_segment_fixed_size 0
  .amdhsa_kernarg_size 56
  .amdhsa_user_sgpr_count 2
  .amdhsa_user_sgpr_kernarg_segment_ptr 1
  .amdhsa_system_sgpr_workgroup_id_x 1
.end_amdhsa_kernel"""
print(hdr); print("\n".join(L)); print(tail)
if args.stamps: print("; STAMPS: " + " ".join(stamp_names))
```

```python
import sys, argparse
ap = argparse.ArgumentParser()
I = lambda n, d: ap.add_argument("--" + n, type=int, default=d)
I("stamps", 0); I("rtst", 0); I("itst", 0); I("padwg", -1); I("padonly", -1)
I("rot", 5); I("D", 8); I("nh", 4); I("h0", 5); I("h1", 10); I("xbper", 2); I("burstA", 0); I("burstB", 0); I("jit", 0); I("pbars", 4); I("useF", 1); I("rdB", 0); I("pollfr", 9); I("pbk", 8); I("armn", 64); I("w2num", 2); I("x2pre", 2); I("xearly", 1)
I("ne", 0); I("e0", 16); I("e1", 44)
I("w2gap", 3); I("nmish", 14); I("rdmish", 4); I("flagApos", 2); I("nb", 6); I("npoll", 8)
I("depth", 9); I("tailj", 6); I("redi", 42); I("armpos", 1); I("sleep", 0); I("biasfirst", 2); I("s2pre", 60); I("s2gap", 7)
ap.add_argument("--spf", default="x1 p0 p1 x2")
ap.add_argument("--order", default="a0 a1 a2 a3 b0 b1 b2 b3 c0 c1 c2 c3 S0 S1")
ap.add_argument("--w2rot", default="none")
ap.add_argument("--outsc", default="nt")
ap.add_argument("--pad", default="")
ap.add_argument("--name", default="standalone__dense_activation_mish__prompt")
args = ap.parse_args()
KN = args.name + "_kernel"
D = args.D; NE = args.ne
BIG = D > 3
assert (D % 2 == 0 and NE <= 1) if BIG else NE <= 4

M32S = 118784; FLAGOFF = 114688; WS_SIZE = 64 * M32S; STAMP_OFF = 16 << 20
L = []
def A(s):
    for ln in s.split("\n"):
        L.append("    " + ln if not ln.endswith(":") else ln)

sW = 3
sX_, sWW, sB, sA, sL, sD, sW2 = 20, 24, 28, 32, 36, 40, 8
def srd(b): return f"s[{b}:{b+3}]"
s_mt, s_ft, s_fg, s_fl, s_m64, s_ml, s_wm, s_wf = 44, 45, 46, 47, 48, 49, 50, 51
s_nt = 19; s_bo = 18
s_ord, s_xbase, s_wbase, s_soX, s_soW, s_ld, s_so2, s_m0s = 53, 54, 55, 56, 57, 58, 59, 60
s_t2, s_t0, s_t1 = 61, 62, 63
s_wb = [64, 65, 66, 52]; s_ab = [48, 49, 50, 51]
s_actst, s_flagP, s_flagC, s_actld, s_spin, s_outb, s_xcd = 67, 68, 69, 70, 71, 72, 73
s_cl2e = 74; s_half = 76; s_so = 78; s_w2base = 79
s_pl = [53, 59, 60, 61, 44, 45, 46]
v_lane = 1
vDX = [2, 3, 4, 5]; vDW = [6, 7, 8, 9]; vD2 = [10, 11, 12, 13]
vRX = [14, 15, 16, 17]; vRX2 = [176, 177, 178, 179]; vRW = [18, 19]; vR2 = [[20, 21], [22, 23], [35, 36]]
v_l16 = 24; v_armoff = 26; v_arm = 27; v_one = 29; v_l4 = 30
v_bo = 31; v_redw = 32; v_redr = 33; v_outo = 34
vT = list(range(38, 64))
ACC = 64
def acc(mi, j): return ACC + 32 * mi + 16 * j
BIAS = 128; XF = 160; MT = 192; OUTB = MT + 24
AF = 128; NRING = 16
XA = 49152

stamp_names = []
stamp_regs = list(range(80, 100, 2)) + [4, 6, 16, 54, 56, 14]
def stamp(name):
    if args.pad:
        if name == "start": A("s_memrealtime s[80:81]")
        if name == args.pad: A("s_memrealtime s[82:83]")
        return
    if args.stamps != 1: return
    r = stamp_regs[len(stamp_names)]; stamp_names.append(name)
    A(f"s_mem{'real' if args.rtst else ''}time s[{r}:{r+1}]")
vmq = []; vm_known = [0]
def vm(tag): vmq.append(tag)
def lastidx(tag): return max(i for i, t in enumerate(vmq) if t == tag)
def wait_vm(tag):
    idx = lastidx(tag); n = len(vmq) - 1 - idx
    assert n <= 63, n
    A(f"s_waitcnt vmcnt({n})"); vm_known[0] = max(vm_known[0], idx + 1)
lgq = []; lg_done = [0]
def lg(ins, tag=None): A(ins); lgq.append(tag)
def wait_lg(tag):
    idx = max(i for i, t in enumerate(lgq) if t == tag)
    if idx < lg_done[0]: return
    n = min(len(lgq) - 1 - idx, 12)
    A(f"s_waitcnt lgkmcnt({n})"); lg_done[0] = max(lg_done[0], len(lgq) - n)
def wait_lg0(): A("s_waitcnt lgkmcnt(0)"); lg_done[0] = len(lgq)
lastw = {}
def pad_after(key, need):
    n = 0
    for ln in L[lastw[key] + 1:]:
        t = ln.strip()
        if t.endswith(":") or t.startswith("s_mem"): continue
        n += int(t.split()[1]) + 1 if t.startswith("s_nop") else 1
    if n < need: A(f"s_nop {need - n - 1}")

hdr = f"""; out = mish(x @ w1 + b1) @ w2     x[2048,512] w1[512,1792] b1[1792] w2[1792,512] out[2048,512], all bf16
; @launch grid=(256,1,1) block=(256,1,1) lds=163840
.amdgcn_target "amdgcn-amd-amdhsa--gfx950"
.text
.globl {KN}
.p2align 8
.type {KN},@function
{KN}:"""

for r, o in ((sX_, 0), (sWW, 8), (sB, 16), (sW2, 24), (12, 32), (sD, 40), (sA, 48), (sL, 48)):
    A(f"s_load_dwordx2 s[{r}:{r+1}], s[0:1], {o}")
A("s_cmp_ge_u32 s2, 256")
A("s_cbranch_scc1 L_end")
if args.stamps: A("s_memrealtime s[100:101]")
stamp("start")
a, b, c, d = vT[0], vT[1], vT[2], vT[3]
h = vT[5]; t = vT[6]; tq = vT[7]; e = vT[8]; f = vT[9]
A(f"v_lshrrev_b32 v{a}, 6, v0")
A(f"v_and_b32 v{v_lane}, 63, v0")
A(f"v_readfirstlane_b32 s{sW}, v{a}")
A(f"s_bfe_u32 s{s_fl}, s2, 0x30003")
A(f"s_mov_b32 s{sX_+3}, 0x20000")
def jitter(lbl, expr):
    A(expr); A(f"{lbl}:\ns_sleep 16\ns_sub_u32 s90, s90, 1\ns_cmp_gt_i32 s90, 0\ns_cbranch_scc1 {lbl}")
if args.jit == 1: jitter("L_j1", f"s_cmp_eq_u32 s{s_fl}, 7\ns_cselect_b32 s90, 60, 0")
if args.jit in (2, 3): jitter("L_j1", "s_memtime s[92:93]\ns_waitcnt lgkmcnt(0)\ns_mul_i32 s90, s2, 0x9e3779b1\ns_lshl_b32 s92, s92, 20\ns_add_u32 s90, s90, s92\ns_lshr_b32 s90, s90, 27")
A(f"s_cmp_lg_u32 s{s_fl}, 7")
A("s_cbranch_scc1 L_go")
A("s_getpc_b64 s[4:5]")
A("L_pcref:")
A(f"v_lshlrev_b32 v{vT[10]}, 6, v0")
A(f"v_min_u32 v{vT[10]}, L_codeend-L_pcref-4, v{vT[10]}")
A(f"v_mov_b32 v{vT[11]}, s5")
A(f"v_add_co_u32 v{vT[10]}, vcc, s4, v{vT[10]}")
A("s_nop 1")
A(f"v_addc_co_u32 v{vT[11]}, vcc, 0, v{vT[11]}, vcc")
assert vT[10] % 2 == 0
A(f"global_load_dword v{vT[24]}, v[{vT[10]}:{vT[11]}], off")
A("s_branch L_spare")
A("L_go:")
ids = [f"s_and_b32 s{s_fg}, s2, 1", f"s_lshr_b32 s{s_ml}, s2, 6", f"s_and_b32 s{s_mt}, s2, 6", f"s_lshl1_add_u32 s{s_mt}, s{s_mt}, s{s_ml}",
       f"s_lshl_b32 s{s_ld}, s{sW}, 12", f"v_lshrrev_b32 v{a}, 3, v{v_lane}", f"v_lshrrev_b32 v{b}, 4, v{v_lane}", f"v_and_b32 v{c}, 7, v{v_lane}"]
for x in ids: A(x)
A(f"s_mov_b32 s{sX_+2}, 2097152")
A(f"s_and_b32 s{s_t0}, s{sW}, 2\ns_add_u32 s{s_t0}, s{s_t0}, s{sW}\ns_lshl3_add_u32 s{s_xbase}, s{s_mt}, s{s_t0}\ns_lshl_b32 s{s_xbase}, s{s_xbase}, 14")
A(f"s_mul_i32 s{s_ft}, s{s_fg}, 7")
A(f"s_add_u32 s{s_ft}, s{s_ft}, s{s_fl}")
def rotw(): A(f"s_mov_b32 s4, 0x76543210\ns_mov_b32 s5, s4\ns_lshr_b64 s[4:5], s[4:5], s{s_t0}\ns_mov_b32 s{s_ord}, s4")
if args.rot == 5:
    A(f"s_add_u32 s{s_t0}, s{s_ml}, s{s_fl}\ns_and_b32 s{s_t0}, s{s_t0}, 1")
    A(f"s_lshr_b32 s{s_t1}, s2, 1\ns_xor_b32 s{s_t1}, s{s_t1}, s2\ns_and_b32 s{s_t1}, s{s_t1}, 1")
    A(f"s_lshl1_add_u32 s{s_t0}, s{s_t0}, s{s_t1}\ns_lshl_b32 s{s_t0}, s{s_t0}, 3"); rotw()
elif args.rot == 6:
    A(f"s_add_u32 s{s_t0}, s{s_ml}, s{s_fl}\ns_and_b32 s{s_t0}, s{s_t0}, 3\ns_lshl_b32 s{s_t0}, s{s_t0}, 3"); rotw()
elif args.rot == 2:
    A(f"s_add_u32 s{s_t0}, s{s_ml}, s{s_fl}\ns_and_b32 s{s_t0}, s{s_t0}, 1\ns_lshl_b32 s{s_t0}, s{s_t0}, 4"); rotw()
elif args.rot == 7:
    A(f"s_lshr_b32 s{s_t0}, s2, 1\ns_xor_b32 s{s_t0}, s{s_t0}, s2\ns_and_b32 s{s_t0}, s{s_t0}, 1\ns_lshl_b32 s{s_t0}, s{s_t0}, 4"); rotw()
else:
    A(f"s_mov_b32 s{s_ord}, 0x76543210")
A(f"s_mul_i32 s{s_wbase}, s{sW}, 224\ns_add_u32 s{s_wbase}, s{s_wbase}, s{s_ft}\ns_lshl_b32 s{s_wbase}, s{s_wbase}, 8")
A(f"v_xor_b32 v{d}, v{c}, v{b}")
A(f"v_lshlrev_b32 v{d}, 4, v{d}")
A(f"v_lshl_add_u32 v{vDX[0]}, v{a}, 10, v{d}")
A(f"v_xor_b32 v{d}, 64, v{vDX[0]}")
A(f"v_add_u32 v{vDX[1]}, 7168, v{d}")
A(f"v_add_u32 v{vDX[2]}, 30720, v{vDX[0]}")
A(f"v_add_u32 v{vDX[3]}, 30720, v{vDX[1]}")
A(f"v_and_b32 v{e}, 15, v{v_lane}")
A(f"v_lshlrev_b32 v{vT[4]}, 2, v{b}")
A(f"v_xor_b32 v{d}, v{e}, v{vT[4]}")
A(f"v_mul_u32_u24 v{vT[4]}, 224, v{b}")
A(f"v_add_lshl_u32 v{vDW[0]}, v{vT[4]}, v{d}, 4")
for i in range(1, 4): A(f"v_add_u32 v{vDW[i]}, {i*(4*3584-1024)}, v{vDW[0]}")
A(f"s_mov_b32 s{sWW+2}, 1835008\ns_mov_b32 s{sWW+3}, s{sX_+3}")
def soffX(j): return f"s_bfe_u32 s{s_t2}, s{s_ord}, {(3 << 16) | (4*j):#x}\ns_lshl_b32 s{s_soX}, s{s_t2}, 7\ns_add_u32 s{s_soX}, s{s_soX}, s{s_xbase}"
def soffW(): return f"s_mul_i32 s{s_soW}, s{s_t2}, 229376\ns_add_u32 s{s_soW}, s{s_soW}, s{s_wbase}"
def dma(vo, srdb, so, i): return f"buffer_load_dwordx4 v{vo}, {srd(srdb)}, s{so} offen offset:{1024*i} lds"
def m0row(r): return f"s_add_u32 m0, s{s_ld}, {r * 16384}" if r else f"s_mov_b32 m0, s{s_ld}"

deferred = lambda ch: ch >= 8 - D
def xslot(ch, mi):
    if not BIG: return 3 + ch % 3, mi
    return (5 + ch // 2, ch & 1) if mi else (3 + (ch % 4) // 2, ch & 1)
def m0x(ch, mi):
    r, hf = xslot(ch, mi)
    return f"s_add_u32 m0, s{s_ld}, {r * 16384 + (hf - mi) * 2048}"
barorder = [f"B{i}" for i in range(8)] + [f"P{i}" for i in range(4)] + ["F"]
if not BIG:
    fr_ = []
    for ch in (5, 6, 7):
        nb_ = f"B{ch+1}" if ch < 7 else ("P0" if D else "F")
        fr_.append((ch % 3, nb_)); fr_.append((3 + ch % 3, "F" if deferred(ch) or ch == 7 else nb_))
    fr_.sort(key=lambda x: barorder.index(x[1]))
    rowinfo = [(6 + i, "") for i in range(4)] + fr_
else:
    fr_ = [(2, "B6"), (3, "B6"), (0, "B7"), (1, "P0"), (4, "P0")]
    for j in range(4):
        k_ = j - (4 - D // 2)
        PS = 4 // args.pbars
        nxtb = (k_ // PS + 1) * PS
        fr_.append((5 + j, f"B{2*j+2}" if k_ < 0 else (f"P{nxtb}" if nxtb < D // 2 else "F")))
    fr_.sort(key=lambda x: barorder.index(x[1]))
    rowinfo = [(9, "")] + fr_
rows = {}; fresh = list(rowinfo); recycled = set(); w2log = []
passed = set([""])
def gaddr(dst, p): return f"s_add_u32 s{dst}, s{s_w2base}, {p * 32768}"
stream = []
for j in range(8):
    rq = f"B{j-2}" if j > 2 else ""
    for i in range(2 if deferred(j) else 4):
        pre = None
        if i == 0: pre = m0x(j, 0) + "\n" + soffX(j)
        if i == 2 and BIG: pre = m0x(j, 1) + "\ns_nop 0"
        rqx = (f"B{j-3}" if j > 3 else "") if BIG and args.xearly else rq
        stream.append((pre, dma(vDX[i], sX_, s_soX, i), f"c{j}", rqx))
    for i in range(4):
        stream.append(((m0row(j % 3) + "\n" + soffW()) if i == 0 else None, dma(vDW[i], sWW, s_soW, i), f"c{j}", rq))
for j in range(8 - D, 8):
    for i in (2, 3):
        stream.append(((m0x(j, 1) + "\n" + soffX(j)) if i == 2 else None, dma(vDX[i], sX_, s_soX, i), f"x{(j - 8 + D) // 2 // PS * PS if BIG else 0}", ""))
assert NE == 0
stream += [("G" if i == 0 else None, dma(vD2[i], sW2, s_soX, i), f"g{p}", "") for p in range(14) for i in range(4)]
early = [(p, i) for p in range(NE) for i in range(4)]
esteps = [args.e0 + (k * (args.e1 - args.e0)) // max(1, len(early) - 1) for k in range(len(early))]
assert len(set(esteps)) == len(esteps)
def pick_row(force=False):
    for r in fresh:
        if r[1] in passed: return ("f", r)
    src = len(recycled)
    if force or (nextp[0] > src and not any(tg == f"q{src}" for _, tg in rq)): return ("r", src)
    return None
def can_issue():
    if not stream: return False
    if stream[0][2][0] == "g" and len(stream) <= args.npoll: return False
    if stream[0][0] == "G": return pick_row() is not None
    return stream[0][3] in passed
def pre_next():
    p, i_, tg, rq_ = stream[0]
    if p == "G":
        g = int(tg[1:]); kind, x = pick_row(force=True)
        if kind == "f": fresh.remove(x); rows[g] = x[0]
        else: need_pos(x); recycled.add(x); rows[g] = rows[x]; w2log.append(("L",))
        p = m0row(rows[g]) + "\n" + gaddr(s_soX, g)
        w2log.append(("S", p))
    if p: A(p); stream[0] = (None, i_, tg, rq_)
def dma_next():
    pre_next()
    p, i_, tg, rq_ = stream.pop(0)
    assert rq_ in passed, (tg, rq_)
    A(i_); vm(tg)
    if tg[0] == "g": w2log.append(("D", i_, tg))
dma_next2 = dma_next

pre_next()
def bias_addr():
    A(f"s_movk_i32 s{sB+2}, 3584\ns_mov_b32 s{sB+3}, s{sX_+3}")
    A(f"v_lshlrev_b32 v{v_bo}, 11, v{v_lane}")
    A(f"v_and_b32 v{v_bo}, 0x10000, v{v_bo}")
    A(f"v_lshl_add_u32 v{v_bo}, v{v_lane}, 1, v{v_bo}")
    A(f"s_lshr_b32 s{s_bo}, s{sW}, 1\ns_lshl1_add_u32 s{s_bo}, s{s_ft}, s{s_bo}\ns_lshl_b32 s{s_bo}, s{s_bo}, 7")
def bias_load():
    for fi in range(2):
        A(f"buffer_load_ushort v{BIAS+4*fi}, v{v_bo}, {srd(sB)}, s{s_bo} offen offset:{64*fi}"); vm("c0")
if args.biasfirst == 1: bias_addr()
A("s_waitcnt lgkmcnt(0)")
stamp("karg")
if args.biasfirst == 1: bias_load()
for i in range(8):
    dma_next()
    if i == 4 and args.biasfirst == 2: bias_addr(); bias_load()
common = [f"v_lshrrev_b32 v{h}, 5, v{v_lane}", f"v_and_b32 v{d}, 1, v{b}", f"v_bfe_u32 v{tq}, v{v_lane}, 2, 2",
          f"v_and_b32 v{vT[4]}, 3, v{v_lane}", f"v_lshlrev_b32 v{vT[4]}, 3, v{vT[4]}", f"v_lshl_add_u32 v{vT[4]}, v{d}, 5, v{vT[4]}",
          f"s_and_b32 s{s_wm}, s{sW}, 1", f"s_lshr_b32 s{s_wf}, s{sW}, 1"]
for x in common: A(x)
A(f"s_lshl_b32 s{s_t0}, s{s_wm}, 13\ns_add_u32 s{s_t0}, s{s_t0}, {XA}")
A(f"v_lshl_add_u32 v{e}, v{e}, 7, s{s_t0}")
A(f"v_lshl_add_u32 v{e}, v{d}, 12, v{e}")
A(f"v_bfe_u32 v{f}, v{v_lane}, 1, 3")
A(f"v_xor_b32 v{f}, v{f}, v{h}")
A(f"v_lshl_add_u32 v{vRX[0]}, v{f}, 4, v{e}")
for s in range(1, 4): A(f"v_xor_b32 v{vRX[s]}, {32*s}, v{vRX[0]}")
A(f"v_lshl_add_u32 v{f}, v{h}, 3, v{tq}")
A(f"v_lshl_add_u32 v{f}, v{f}, 8, v{vT[4]}")
A(f"s_and_b32 s{s_t0}, s{sW}, 2")
A(f"v_xor_b32 v{t}, s{s_t0}, v{tq}")
A(f"v_lshl_add_u32 v{vRW[0]}, v{t}, 6, v{f}")
A(f"v_xor_b32 v{vRW[1]}, 64, v{vRW[0]}")
if not args.biasfirst: bias_addr()
A(f"v_xor_b32 v{BIAS+8}, 1, v{h}")
A(f"v_mul_u32_u24 v{BIAS+8}, 0x3f80, v{BIAS+8}")
for i in (1, 2, 3, 5, 6, 7, 9, 10, 11): A(f"v_mov_b32 v{BIAS+i}, 0")

S2 = f"""s_mov_b32 s{sB+3}, s{sX_+3}
s_mov_b32 s{sW2+2}, 1835008
s_mov_b32 s{sW2+3}, s{sX_+3}
s_mov_b32 s{sA+2}, {WS_SIZE}
s_mov_b32 s{sA+3}, s{sX_+3}
s_mov_b32 s{sL+2}, s{sA+2}
s_mov_b32 s{sL+3}, s{sX_+3}
s_movk_i32 s{sD+2}, 256
s_mov_b32 s{sD+3}, s{sX_+3}
s_and_b32 s{s_xcd}, s2, 7
s_xor_b32 s{s_nt}, s{s_fl}, 4
s_lshl2_add_u32 s{s_m64}, s{s_xcd}, s{s_ml}
v_lshlrev_b32 v{e}, 2, v{d}
v_xor_b32 v{e}, v{c}, v{e}
v_lshlrev_b32 v{e}, 4, v{e}
v_lshl_add_u32 v{vD2[0]}, v{a}, 10, v{e}
v_add_u32 v{vD2[1]}, 7168, v{vD2[0]}
v_add_u32 v{vD2[2]}, 14336, v{vD2[0]}
v_add_u32 v{vD2[3]}, 21504, v{vD2[0]}
v_lshl_add_u32 v{f}, v{h}, 2, v{tq}
v_lshl_add_u32 v{f}, v{f}, 7, v{vT[4]}
v_bfe_u32 v{t}, v{v_lane}, 3, 1
v_lshl_add_u32 v{f}, v{t}, 6, v{f}
v_add_u32 v{vR2[0][0]}, s{s_ld}, v{f}
v_xor_b32 v{vR2[0][1]}, 64, v{vR2[0][0]}
v_add_u32 v{vR2[1][0]}, 65536, v{vR2[0][0]}
v_add_u32 v{vR2[1][1]}, 65536, v{vR2[0][1]}
v_add_u32 v{vR2[2][0]}, 131072, v{vR2[0][0]}
v_add_u32 v{vR2[2][1]}, 131072, v{vR2[0][1]}
v_lshlrev_b32 v{v_l16}, 4, v{v_lane}
v_mov_b32 v{v_one}, 1
v_lshlrev_b32 v{v_l4}, 2, v{v_lane}
s_lshl1_add_u32 s{s_t0}, s{s_mt}, s{s_fg}
s_lshl_b32 s{s_t0}, s{s_t0}, 2
s_and_b32 s{s_t1}, s{s_m64}, 30
s_add_u32 s{s_t1}, s{s_t1}, s{s_wf}
s_lshl_b32 s{s_t1}, s{s_t1}, 2
s_sub_u32 s{s_t1}, s{s_t1}, s{s_t0}
v_mul_lo_u32 v{v_armoff}, v{h}, s{s_t1}
v_add_u32 v{v_armoff}, s{s_t0}, v{v_armoff}
v_and_b32 v{e}, 15, v{v_lane}
v_lshl_add_u32 v{e}, v{e}, 8, s{s_ld}
v_lshl_add_u32 v{e}, v{d}, 14, v{e}
v_xor_b32 v{f}, v{c}, v{h}
v_lshl_add_u32 v{v_redw}, v{f}, 4, v{e}
s_lshl_b32 s{s_t0}, s{s_wf}, 14
s_lshl_b32 s{s_t1}, s{s_wm}, 11
s_add_u32 s{s_t0}, s{s_t0}, s{s_t1}
v_lshl_add_u32 v{e}, v{a}, 8, s{s_t0}
v_lshlrev_b32 v{f}, 1, v{c}
v_xor_b32 v{f}, v{f}, v{a}
v_lshl_add_u32 v{v_redr}, v{f}, 4, v{e}
v_lshlrev_b32 v{e}, 4, v{c}
v_lshl_add_u32 v{v_outo}, v{a}, 10, v{e}
s_mul_i32 s{s_w2base}, s{sW}, 3584
s_add_u32 s{s_w2base}, s{s_w2base}, s{s_nt}
s_lshl_b32 s{s_w2base}, s{s_w2base}, 7""".split("\n")
S2 += f"""s_mul_i32 s{s_t0}, s{s_m64}, {2*M32S}
s_mul_i32 s{s_flagC}, s{sW}, 896
s_add_u32 s{s_flagC}, s{s_flagC}, s{s_t0}
s_add_u32 s{s_flagC}, s{s_flagC}, {FLAGOFF}
s_mul_i32 s{s_actld}, s{sW}, 28672
s_add_u32 s{s_actld}, s{s_actld}, s{s_t0}
s_lshl3_add_u32 s{s_outb}, s{s_m64}, s{sW}
s_lshl_b32 s{s_outb}, s{s_outb}, 6
s_add_u32 s{s_outb}, s{s_outb}, s{s_nt}
s_lshl_b32 s{s_outb}, s{s_outb}, 7
s_mov_b32 s{s_spin}, 0""".split("\n")
S2p = f"""s_lshl1_add_u32 s{s_t0}, s{s_mt}, s{s_wm}
s_mul_i32 s{s_t0}, s{s_t0}, {2*M32S}
s_lshl_b32 s{s_actst}, s{s_bo}, 5
s_add_u32 s{s_actst}, s{s_actst}, s{s_t0}
s_add_u32 s{s_flagP}, s{s_bo}, s{s_t0}
s_add_u32 s{s_flagP}, s{s_flagP}, {FLAGOFF}
s_mov_b32 s{s_cl2e}, 0xbfb8aa3b
s_mov_b32 s{s_cl2e+1}, s{s_cl2e}
s_mov_b32 s{s_half}, 0.5
s_mov_b32 s{s_half+1}, 0.5""".split("\n")
s2q = S2[1:] + S2p
if BIG:
    rx2 = [f"v_add_u32 v{vRX2[s]}, 32768, v{vRX[s]}" for s in range(4)]
    if D == 8: s2q += rx2
    else:
        for x in rx2: A(x)
def emit_s2(k):
    for _ in range(k):
        if s2q: A(s2q.pop(0))
emit_s2(args.s2pre)
stamp("setup")
if not args.biasfirst: bias_load()
while stream[0][2] == "c1": dma_next()
if deferred(0):
    for i in range(args.x2pre): dma_next()

seq = []
for ch in range(8):
    for s in range(4):
        seq.append((ch, 0, s))
        if not deferred(ch): seq.append((ch, 1, s))
nA = len(seq)
for ch in range(8 - D, 8): seq += [(ch, 1, s) for s in range(4)]
assert len(seq) == 64
def xf(n): return XF + 4 * (n % 4)
def rd_x(n):
    ch, mi, s = seq[n]
    r, hf = xslot(ch, mi)
    va, r0 = (vRX2[s], 5) if BIG and mi else (vRX[s], 3)
    lg(f"ds_read_b128 v[{xf(n)}:{xf(n)+3}], v{va} offset:{(r - r0)*16384 + 2048*hf}", f"x{n}")
def rd_w(n, fi):
    ch, mi, s = seq[n]
    if mi: return
    for a_ in range(2):
        r = (ch * 4 + s) * 8 + 4 * fi + 2 * a_
        lg(f"ds_read_b64_tr_b16 a[{r}:{r+1}], v{vRW[fi]} offset:{(ch % 3)*16384+4096*s+1024*a_}", f"w{n}_{fi}")
def mfma1(n, fi):
    ch, mi, s = seq[n]
    Dr = acc(mi, fi); wr = (ch * 4 + s) * 8 + 4 * fi
    C = f"v[{Dr}:{Dr+15}]"
    A(f"v_mfma_f32_32x32x16_bf16 v[{Dr}:{Dr+15}], a[{wr}:{wr+3}], v[{xf(n)}:{xf(n)+3}], {C}"); lastw[(mi, fi)] = len(L) - 1
def mfma_bias(mi, fi):
    Dr = acc(mi, fi)
    A(f"v_mfma_f32_32x32x16_bf16 v[{Dr}:{Dr+15}], v[{BIAS+4*fi}:{BIAS+4*fi+3}], v[{BIAS+8}:{BIAS+11}], 0")
P = lambda r: f"v[{r}:{r+1}]"
def mish_pk(k):
    hb = ACC + 8 * k; ob = OUTB + 4 * k
    U, N, Dd = MT, MT + 8, MT + 16
    o = [f"v_pk_mul_f32 {P(U+2*p)}, {P(hb+2*p)}, s[{s_cl2e}:{s_cl2e+1}]" for p in range(4)]
    o += [f"v_exp_f32 v{U+i}, v{U+i}" for i in range(8)]
    o += [f"v_pk_add_f32 {P(N+2*p)}, {P(U+2*p)}, s[{s_half}:{s_half+1}]" for p in range(4)]
    o += [f"v_pk_fma_f32 {P(Dd+2*p)}, {P(U+2*p)}, {P(U+2*p)}, {P(N+2*p)}" for p in range(4)]
    o += [f"v_rcp_f32 v{Dd+i}, v{Dd+i}" for i in range(8)]
    o += [f"v_pk_mul_f32 {P(N+2*p)}, {P(N+2*p)}, {P(Dd+2*p)} clamp" for p in range(4)]
    o += [f"v_pk_mul_f32 {P(N+2*p)}, {P(N+2*p)}, {P(hb+2*p)}" for p in range(4)]
    o += [f"v_cvt_pk_bf16_f32 v{ob+p}, v{N+2*p}, v{N+2*p+1}" for p in range(4)]
    return o
def st_act(k):
    ob = OUTB + 4 * k
    if k == 4: A(f"s_add_u32 s{s_actst}, s{s_actst}, {M32S}")
    A(f"buffer_store_dwordx4 v[{ob}:{ob+3}], v{v_l16}, {srd(sA)}, s{s_actst} offen offset:{1024*(k & 3)} sc1"); vm(f"st{k >> 2}")
def arm_load(): A(f"buffer_load_dword v{v_arm}, v{v_armoff}, {srd(sD)}, 0 offen sc1")
NH = args.nh if D else 0
mA = []
U, N, Dd = MT, MT + 8, MT + 16
stg = [lambda i: (f"v_mul_f32 v{U+i%8}, s{s_cl2e}, v{ACC+i}", 4), lambda i: (f"v_exp_f32 v{U+i%8}, v{U+i%8}", 8),
       lambda i: (f"v_add_f32 v{N+i%8}, 0.5, v{U+i%8}", 4), lambda i: (f"v_fma_f32 v{Dd+i%8}, v{U+i%8}, v{U+i%8}, v{N+i%8}", 5),
       lambda i: (f"v_rcp_f32 v{Dd+i%8}, v{Dd+i%8}", 8), lambda i: (f"v_mul_f32 v{N+i%8}, v{N+i%8}, v{Dd+i%8} clamp", 5),
       lambda i: (f"v_mul_f32 v{N+i%8}, v{N+i%8}, v{ACC+i}", 4),
       lambda i: (f"v_cvt_pk_bf16_f32 v{OUTB+i//2}, v{N+(i-1)%8}, v{N+i%8}", 5) if i & 1 else None]
for tt in range(8 * NH + 7 if NH else 0):
    for k in (7, 1, 6, 5, 3, 4, 2, 0):
        i = tt - k
        if 0 <= i < 8 * NH and stg[k](i):
            if mA and mA[-1][0].startswith(("v_exp", "v_rcp")) and mA[-1][0].split()[1].rstrip(",") in [z.strip(",") for z in stg[k](i)[0].split()[2:]]:
                mA.append(("s_nop 0", 4))
            mA.append(stg[k](i))
            if k == 7 and i % 8 == 7:
                fr = i // 8
                if args.burstA == 0: mA.append(("ST", fr))
                elif args.burstA == 1 and fr == NH - 1: mA += [("ST", q) for q in range(NH)]
                elif args.burstA == 2 and fr & 1: mA += [("ST", fr - 1), ("ST", fr)]
totA = sum(c_ for i_, c_ in mA if i_ != "ST"); doneA = [0]
g0 = 2 * nA + args.h0 - 1; ngaps = 128 - g0 - args.h1
def mishA_gap(g):
    if g < g0 or not mA: return
    if g == g0: pad_after((0, 0), 12)
    target = totA * (g - g0 + 1) / ngaps
    while mA and (doneA[0] < target - 2 or mA[0][0] == "ST"):
        i_, c_ = mA.pop(0)
        if i_ == "ST": st_act(c_)
        else: A(i_); doneA[0] += c_

def w2_reads(p):
    out = []; r_ = rows[p]
    for i in range(4):
        j = 4 * p + i; ks, a_ = j >> 1, j & 1
        for ni in range(2):
            r = (ks * 2 + ni) * 4 + 2 * a_
            out.append(f"ds_read_b64_tr_b16 a[{r}:{r+1}], v{vR2[r_ >> 2][ni]} offset:{(r_ & 3)*16384+1024*i}")
    return out
maxp = [-1]
nextp = [0]; rq = []
def queue_pos(force=False, age=12):
    p = nextp[0]
    if p >= 14 or p > maxp[0] or vmq.count(f"g{p}") < 4: return False
    last = lastidx(f"g{p}")
    if last >= vm_known[0]:
        if not force and len(vmq) - 1 - last < age: return False
        wait_vm(f"g{p}")
    rq.extend((r, f"q{p}") for r in w2_reads(p)); nextp[0] += 1
    return True
def fill(k, age=12):
    for _ in range(k):
        if not rq and not queue_pos(age=age): return
        r, tg = rq.pop(0); lg(r, tg); w2log.append(("R", r, tg))
def need_pos(p):
    while nextp[0] <= p: assert queue_pos(force=True)
    while any(tg == f"q{p}" for _, tg in rq):
        r, tg = rq.pop(0); lg(r, tg); w2log.append(("R", r, tg))
    wait_lg(f"q{p}")
pre_next()
wait_vm("c0")
stamp("c0_land")
A("s_barrier"); passed.add("B0")
mfma_bias(0, 0)
for n in range(2): rd_x(n); rd_w(n, 0); rd_w(n, 1)
mfma_bias(0, 1); emit_s2(args.s2gap); mfma_bias(1, 0); emit_s2(args.s2gap); mfma_bias(1, 1)
if not deferred(0): dma_next(); dma_next()
nbar = [0]
for n in range(64):
    nx = n + 2
    ch, mi, s = seq[n]
    bar = None
    if nx < nA and seq[nx][1:] == (0, 0): bar = (f"B{seq[nx][0]}", f"c{seq[nx][0]}")
    if nA <= nx < 64 and (nx == nA or (BIG and (nx - nA) % (8 * PS) == 0)): bar = (f"P{(nx-nA)//8}", f"x{(nx-nA)//8}")
    if nx == 64 and args.useF: bar = ("F", None)
    wait_lg(f"x{n}" if mi else f"w{n}_0")
    mfma1(n, 0)
    if bar:
        if bar[1]:
            while any(e_[2] == bar[1] for e_ in stream): dma_next()
            if args.itst: A("s_memtime s[4:5]")
            wait_vm(bar[1])
        if args.itst: A("s_memtime s[6:7]")
        wait_lg0()
        if args.itst: A(f"v_writelane_b32 v60, s4, {nbar[0]}\nv_writelane_b32 v61, s6, {nbar[0]}"); nbar[0] += 1
        A("s_barrier"); passed.add(bar[0])
    def loads(g):
        if not can_issue(): return
        kind = stream[0][2][0]
        if BIG and kind == "x": ok = args.xbper == 2 or g & 1 == 0
        elif n >= nA or (BIG and kind == "g"): ok = g % args.w2gap < args.w2num
        elif deferred(ch): ok = True
        else: ok = g & 1
        if ok: dma_next2()
    if nx < 64: rd_x(nx); rd_w(nx, 0)
    mishA_gap(2 * n)
    emit_s2(args.s2gap)
    if n in esteps:
        assert not s2q
        p, i = early.pop(0)
        A(f"s_mov_b32 s{s_m0s}, m0"); A(m0row(rows[p]))
        A(gaddr(s_so2, p) if i == 0 else "s_nop 0")
        A(dma(vD2[i], sW2, s_so2, i)); vm(f"g{p}")
        A(f"s_mov_b32 m0, s{s_m0s}")
    else: loads(2 * n)
    if can_issue(): pre_next()
    if not mi: wait_lg(f"w{n}_1")
    mfma1(n, 1)
    if nx < 64: rd_w(nx, 1)
    if n == nA - 1: stamp("pAdone")
    if n == args.armn: arm_load(); vm("arm")
    if D == 8 and n >= nA and args.rdB:
        maxp[0] = 2 * ((n + 1 - nA) // 4) - 1
        fill(args.rdB)
    mishA_gap(2 * n + 1)
    emit_s2(args.s2gap)
    loads(2 * n + 1)
assert not early and not mA
stamp("p1done")
if args.jit == 3: jitter("L_j2", "s_memtime s[92:93]\ns_waitcnt lgkmcnt(0)\ns_mul_i32 s90, s92, 0x9e3779b1\ns_lshr_b32 s90, s90, 28")
maxp[0] = 13

def flag(stage):
    if stage == 1: A(f"s_add_u32 s{s_flagP}, s{s_flagP}, {M32S}")
    A("s_mov_b32 exec_hi, 0")
    A(f"buffer_store_dword v{v_one}, v{v_l4}, {srd(sA)}, s{s_flagP} offen sc1")
    A("s_mov_b32 exec_hi, -1")
def poll_issue():
    for i in range(7): A(f"s_buffer_load_dword s{s_pl[i]}, {srd(sL)}, s{s_flagC} offset:{128*i} glc")
cold = []
def spin_check(lbl, reissue, pre=None):
    A(f"{lbl}:")
    if lbl != "L_arm":
        wait_lg0()
        for i in range(1, 7): A(f"s_and_b32 s{s_pl[0]}, s{s_pl[0]}, s{s_pl[i]}")
    else:
        A(f"v_cmp_eq_u32 vcc, 1, v{v_arm}"); A("s_nop 0"); A("s_cmp_eq_u64 vcc, -1")
    A(f"s_cbranch_scc0 {lbl}_slow")
    A(f"{lbl}_ok:")
    cold.append((lbl, reissue, pre))
def pubA():
    wait_vm(max(("arm", "st0"), key=lastidx))
    spin_check("L_arm", arm_load)
    flag(0); vm("flagA")
    stamp("flagA")
if args.armn >= 64: arm_load(); vm("arm")
nfr = 8 - NH
nm = args.nmish
slotset = set(int((k + 0.5) * 40 * nfr / nm) for k in range(nm)) if nm else set()
for k_ in range(NH, 8):
    if k_ == 4 + args.flagApos: pubA()
    if k_ == 4 + args.pollfr:
        assert args.pollfr >= args.flagApos
        poll_issue()
    pad_after((k_ >> 2, (k_ >> 1) & 1), 12)
    for n, ins in enumerate(mish_pk(k_)):
        A(ins)
        if (k_ - NH) * 40 + n in slotset and len(stream) > args.npoll: dma_next2()
        if k_ >= 4 and n % 4 == 1 and (rq or nextp[0] < args.rdmish): fill(1, 16)
    if k_ < 4 or args.burstB == 0: st_act(k_)
    elif args.burstB == 2 and k_ & 1: st_act(k_ - 1); st_act(k_)
    elif args.burstB == 1 and k_ == 7:
        if args.flagApos == 4: pubA(); args.flagApos = -1
        for q in range(4, 8): st_act(q)
    if k_ == 3 and NH < 4: stamp("mish0")
stamp("mish1")
if args.jit == 3: jitter("L_j3", "s_memtime s[92:93]\ns_waitcnt lgkmcnt(0)\ns_mul_i32 s90, s92, 0x9e3779b1\ns_lshr_b32 s90, s90, 28")
if args.flagApos >= 4: pubA()
A("L_enter2:")
lean = list(w2log)
lean_poll = args.pollfr < 4
polled = len(stream) <= args.npoll or lean_poll
if polled and not lean_poll: poll_issue()
k = 0; flagB_done = False
def maybe_flagB():
    global flagB_done
    if not flagB_done and k >= args.nb:
        wait_vm("st1"); flag(1); vm("flagB"); flagB_done = True
        stamp("flagB")
while stream:
    dma_next2(); k += 1; maybe_flagB(); fill(4)
    if len(stream) == args.npoll and not polled: poll_issue(); polled = True
if not flagB_done: A(f"s_mov_b32 s{s_t1}, 0")
stamp("w2iss")
spin_check("L_pollA", poll_issue, pre=None if flagB_done else "B")
stamp("pollA")
DEP = args.depth; NF = 56
assert DEP < NRING
def af(i): return AF + 4 * (i % NRING)
def act_load(i):
    global k
    mi, ks = divmod(i, 28)
    if i == 28:
        spin_check("L_pollB", poll_issue)
    if ks % 4 == 0: A(f"s_add_u32 s{s_so}, s{s_actld}, {mi*M32S + ks*1024}")
    A(f"buffer_load_dwordx4 v[{af(i)}:{af(i)+3}], v{v_l16}, {srd(sL)}, s{s_so} offen offset:{(ks%4)*1024} sc1"); vm(f"a{i}")
    k += 1; maybe_flagB()
for i in range(DEP): act_load(i); fill(6)
PB = 28 - DEP - args.pbk
redw = [(ni, g) for ni in range(2) for g in range(4)]
R = 192
def red_reads(mi, base):
    return [f"ds_read_b128 v[{base+8*src+4*e_}:{base+8*src+4*e_+3}], v{[v_redr, vT[4]][e_]} offset:{src*4096 + 32768*mi}" for src in range(4) for e_ in range(2)]
def out_store(b_): A(f"buffer_store_dwordx4 v[{b_+8}:{b_+11}], v{v_outo}, {srd(sB)}, s{s_outb} offen {args.outsc}")
side = []; TJ = args.tailj
def p2mfma(i, ni):
    mi, ks = divmod(i, 28)
    Dr = acc(mi, ni); wr = (ks * 2 + ni) * 4
    C = "0" if ks == 0 else f"v[{Dr}:{Dr+15}]"
    A(f"v_mfma_f32_32x32x16_bf16 v[{Dr}:{Dr+15}], a[{wr}:{wr+3}], v[{af(i)}:{af(i)+3}], {C}"); lastw[(mi, ni)] = len(L) - 1
def redwr(mi, ni, g):
    pad_after((mi, ni), 12)
    r = acc(mi, ni) + 4 * g
    A(f"ds_write_b128 v{v_redw if g == 0 else vT[g]}, v[{r}:{r+3}] offset:{32768*mi+128*ni}")
for i in range(NF):
    mi, ks = divmod(i, 28)
    wait_vm(f"a{i}")
    if i == 0: stamp("a0")
    if mi == 0 and ks % 2 == 0: need_pos(ks >> 1)
    for ni in range(2 if i < NF - TJ else 1):
        p2mfma(i, ni); fill(2)
        for _ in range(3):
            if side: A(side.pop(0))
    if i == PB:
        A(f"s_add_u32 s{s_flagC}, s{s_flagC}, {M32S}"); poll_issue()
    if i + DEP < NF: act_load(i + DEP)
    if i == 26:
        for gg in range(1, 4): A(f"v_xor_b32 v{vT[gg]}, {32*gg}, v{v_redw}")
        A(f"s_mov_b32 s{sB}, s12\ns_mov_b32 s{sB+1}, s13\ns_mov_b32 s{sB+2}, 2097152")
        A(f"v_xor_b32 v{vT[4]}, 16, v{v_redr}")
    if mi == 1 and 3 <= ks < 11: redwr(0, *redw[ks - 3])
    if i == args.redi:
        A("s_waitcnt lgkmcnt(0)"); A("s_barrier"); side = red_reads(0, R)
    if i == args.redi + 3:
        A("s_waitcnt lgkmcnt(0)")
        side = [f"v_add_f32 v{R+j}, v{R+j}, v{R+8+j}" for j in range(8)] + [f"v_add_f32 v{R+16+j}, v{R+16+j}, v{R+24+j}" for j in range(8)]
        side += [f"v_add_f32 v{R+j}, v{R+j}, v{R+16+j}" for j in range(8)] + [f"v_cvt_pk_bf16_f32 v{R+8+p}, v{R+2*p}, v{R+2*p+1}" for p in range(4)]
    if i == args.redi + 9:
        assert not side and i + DEP >= NF - 1
        out_store(R); vm("o")
        A(f"s_add_u32 s{s_outb}, s{s_outb}, 32768")
assert flagB_done and not stream
wl = list(range(4))
for j, i in enumerate(range(NF - TJ, NF)):
    p2mfma(i, 1)
    if j == 0: A("s_nop 4")
    if j >= 1 and wl and j < TJ - 1: redwr(1, 0, wl.pop(0))
stamp("p2done")
while wl: redwr(1, 0, wl.pop(0))
for g in range(4): redwr(1, 1, g)
A("s_waitcnt lgkmcnt(0)")
A("s_barrier")
b_ = 160
for r in red_reads(1, b_): A(r)
A("s_waitcnt lgkmcnt(4)")
for p in range(4): A(f"v_pk_add_f32 {P(b_+2*p)}, {P(b_+2*p)}, {P(b_+8+2*p)}")
A("s_waitcnt lgkmcnt(0)")
for p in range(4): A(f"v_pk_add_f32 {P(b_+16+2*p)}, {P(b_+16+2*p)}, {P(b_+24+2*p)}")
for p in range(4): A(f"v_pk_add_f32 {P(b_+2*p)}, {P(b_+2*p)}, {P(b_+16+2*p)}")
for p in range(4): A(f"v_cvt_pk_bf16_f32 v{b_+8+p}, v{b_+2*p}, v{b_+2*p+1}")
out_store(b_)
if args.stamps:
    A("s_waitcnt vmcnt(0)")
    stamp("end")
    A("s_memrealtime s[12:13]")
    A("s_waitcnt lgkmcnt(0)")
    n = len(stamp_names)
    A("v_mov_b32 v64, s100\nv_mov_b32 v65, s12")
    for i in range(n): A(f"v_mov_b32 v{66+i}, s{stamp_regs[i]}")
    A(f"v_mov_b32 v{66+n}, s{s_spin}")
    A(f"s_mov_b32 s{sL+2}, 0x10000000")
    A(f"s_lshl_b32 s{s_t0}, s2, 2\ns_add_u32 s{s_t0}, s{s_t0}, s{sW}\ns_lshl_b32 s{s_t0}, s{s_t0}, 7\ns_add_u32 s{s_t0}, s{s_t0}, {STAMP_OFF}")
    if args.itst:
        A("s_mov_b64 exec, 0xfff")
        A(f"s_add_u32 s{s_t1}, s{s_t0}, {1<<20}")
        for q, r in enumerate((60, 61)): A(f"buffer_store_dword v{r}, v{v_l4}, {srd(sL)}, s{s_t1} offen offset:{48*q}")
    A("s_mov_b64 exec, 1")
    for q in range(5): A(f"buffer_store_dwordx4 v[{64+4*q}:{67+4*q}], off, {srd(sL)}, s{s_t0} offset:{16*q}")
if args.pad:
    A("s_waitcnt vmcnt(0)")
    stamp("end")
    A("s_waitcnt lgkmcnt(0)")
    A("s_sub_u32 s84, s82, s80")
    A(f"s_cmp_eq_u32 s{s_fl}, 7\ns_cselect_b32 s84, 0, s84")
    if args.padwg >= 0: A(f"s_cmp_eq_u32 s2, {args.padwg}\ns_cselect_b32 s84, s84, 0")
    A("s_min_u32 s84, s84, 10000\ns_add_u32 s84, s84, 4000")
    if args.padonly >= 0: A(f"s_cmp_lg_u32 s2, {args.padonly}\ns_cbranch_scc1 L_end")
    A("L_pad:\ns_memrealtime s[86:87]\ns_waitcnt lgkmcnt(0)\ns_sub_u32 s85, s86, s80\ns_cmp_lt_u32 s85, s84\ns_cbranch_scc1 L_pad")
A("L_end:")
A("s_endpgm")
for lbl, reissue, pre in cold:
    A(f"{lbl}_slow:")
    if pre:
        A(f"s_cmp_lg_u32 s{s_t1}, 0\ns_cbranch_scc1 {lbl}_s2\ns_mov_b32 s{s_t1}, 1\ns_waitcnt vmcnt(0)")
        A(f"s_add_u32 s{s_t0}, s{s_flagP}, {M32S}")
        A("s_mov_b32 exec_hi, 0")
        A(f"buffer_store_dword v{v_one}, v{v_l4}, {srd(sA)}, s{s_t0} offen sc1")
        A("s_mov_b32 exec_hi, -1")
        A(f"{lbl}_s2:")
    A(f"s_add_u32 s{s_spin}, s{s_spin}, 1")
    A(f"s_cmp_ge_u32 s{s_spin}, 200000")
    A(f"s_cbranch_scc1 {lbl}_ok")
    if args.sleep: A(f"s_sleep {args.sleep}")
    reissue()
    if lbl == "L_arm": A("s_waitcnt vmcnt(0)")
    A(f"s_branch {lbl}")
A("L_spare:")
for x in ids: A(x)
A(f"v_lshlrev_b32 v{vT[18]}, 7, v{v_lane}")
A(f"s_mov_b32 s{sW2+2}, 1835008\ns_mov_b32 s{sW2+3}, s{sX_+3}\ns_and_b32 s{s_xcd}, s2, 7")
A(f"s_mul_i32 s{s_so2}, s{s_ml}, 56\ns_add_u32 s{s_so2}, s{s_so2}, s{sW}\ns_lshl_b32 s{s_so2}, s{s_so2}, 13")
A(f"s_mul_i32 s{s_t2}, s{s_xcd}, 7\ns_lshr_b32 s{s_t2}, s{s_t2}, 2\ns_lshl_b32 s{s_t2}, s{s_t2}, 15\ns_add_u32 s{s_t2}, s{s_t2}, s{s_so2}")
A(f"s_mov_b32 s{sX_+2}, 2097152")
A(f"s_and_b32 s{s_t0}, s{sW}, 2\ns_add_u32 s{s_t0}, s{s_t0}, s{sW}\ns_lshl3_add_u32 s{s_xbase}, s{s_mt}, s{s_t0}\ns_add_u32 s{s_xbase}, s{s_xbase}, 2\ns_lshl_b32 s{s_xbase}, s{s_xbase}, 14")
A("s_waitcnt lgkmcnt(0)")
def spf_op(op):
    if op[0] == "x":
        A(f"s_xor_b32 s{s_t0}, s{s_fg}, {int(op == 'x2')}\ns_lshl_b32 s{s_t0}, s{s_t0}, 13\ns_add_u32 s{s_t0}, s{s_t0}, s{s_xbase}")
        A(f"buffer_load_dword v{vT[24]}, v{vT[18]}, {srd(sX_)}, s{s_t0} offen")
        return
    if op[0] == "p": A(f"s_add_u32 s{s_t0}, s{s_t2}, {32768*int(op[1])}")
    elif op[0] == "g": A(f"s_add_u32 s{s_t0}, s{s_so2}, {32768*int(op[1:])}")
    else: A(f"s_add_u32 s{s_t0}, s{s_so2}, {32768*(12+int(op[1]))}")
    A(f"buffer_load_dword v{vT[24]}, v{vT[18]}, {srd(sW2)}, s{s_t0} offen")
spf = args.spf.split()
if spf: spf_op(spf.pop(0))
for x in common + S2: A(x)
A(f"s_mov_b32 s{s_flagP}, 0")
A(f"s_cmp_lg_u32 s{sW}, 0")
A("s_cbranch_scc1 L_spare2")
A(f"v_and_b32 v{vT[12]}, 15, v{v_lane}")
A(f"v_min_u32 v{vT[12]}, 13, v{vT[12]}")
A(f"v_lshlrev_b32 v{vT[12]}, 7, v{vT[12]}")
A(f"s_mov_b32 s{s_t0}, {M32S}")
A(f"v_mul_lo_u32 v{vT[13]}, v{b}, s{s_t0}")
A(f"v_add_u32 v{vT[12]}, v{vT[12]}, v{vT[13]}")
A(f"s_mul_i32 s{s_t0}, s{s_mt}, {4*M32S}\ns_mul_i32 s{s_t1}, s{s_fg}, 1792\ns_add_u32 s{s_t0}, s{s_t0}, s{s_t1}\ns_add_u32 s{s_t0}, s{s_t0}, {FLAGOFF}")
A(f"v_mov_b32 v{vT[14]}, 0")
A(f"buffer_store_dword v{vT[14]}, v{vT[12]}, {srd(sA)}, s{s_t0} offen sc1")
A("L_spare2:")
armpos = min(args.armpos, len(spf))
for k_, op in enumerate(spf + [None]):
    if k_ == armpos:
        A(f"s_cmp_lg_u32 s{sW}, 0\ns_cbranch_scc1 L_spare3\ns_waitcnt vmcnt({armpos})\ns_mov_b64 exec, 1")
        A(f"buffer_store_dword v{v_one}, v{v_armoff}, {srd(sD)}, 0 offen sc1")
        A("s_mov_b64 exec, -1\nL_spare3:")
    if op: spf_op(op)
A(f"s_mov_b32 s{sA+2}, 0")
issued = []; pend = []; known = -1
def flush_reads(upto=None):
    global known
    while pend and (upto is None or int(pend[0][2][1:]) <= upto):
        _, r, tg = pend.pop(0); p = int(tg[1:])
        if p > known:
            last = max(i for i, t_ in enumerate(issued) if t_ == f"g{p}")
            A(f"s_waitcnt vmcnt({len(issued) - 1 - last})"); known = p
        A(r)
nrec = 0
for e_ in lean:
    if e_[0] == "S": A(e_[1])
    elif e_[0] == "D": A(e_[1]); issued.append(e_[2])
    elif e_[0] == "R": pend.append(e_)
    else: flush_reads(nrec); nrec += 1; A("s_waitcnt lgkmcnt(0)")
arm_load(); issued.append("arm")
flush_reads()
A("s_waitcnt lgkmcnt(0)")
A("L_arm2:")
A("s_waitcnt vmcnt(0)")
A(f"v_cmp_eq_u32 vcc, 1, v{v_arm}")
A(f"s_add_u32 s{s_spin}, s{s_spin}, 1")
A("s_cmp_eq_u64 vcc, -1")
tgt = "L_arm2ok" if lean_poll else "L_enter2"
A(f"s_cbranch_scc1 {tgt}")
A(f"s_cmp_ge_u32 s{s_spin}, 200000")
A(f"s_cbranch_scc1 {tgt}")
arm_load()
A("s_branch L_arm2")
if lean_poll:
    A("L_arm2ok:")
    poll_issue()
    A("s_branch L_enter2")
A("L_codeend:")
tail = f""".section .rodata,"a"
.p2align 6
.amdhsa_kernel {KN}
  .amdhsa_next_free_vgpr 512
  .amdhsa_next_free_sgpr 102
  .amdhsa_accum_offset 256
  .amdhsa_group_segment_fixed_size 0
  .amdhsa_kernarg_size 56
  .amdhsa_user_sgpr_count 2
  .amdhsa_user_sgpr_kernarg_segment_ptr 1
  .amdhsa_system_sgpr_workgroup_id_x 1
.end_amdhsa_kernel"""
print(hdr); print("\n".join(L)); print(tail)
if args.stamps: print("; STAMPS: " + " ".join(stamp_names))
```

```python
import sys, argparse
ap = argparse.ArgumentParser()
I = lambda n, d: ap.add_argument("--" + n, type=int, default=d)
I("stamps", 0); I("rtst", 0); I("itst", 0); I("padwg", -1); I("padonly", -1)
I("rot", 5); I("D", 8); I("nh", 4); I("h0", 5); I("h1", 10); I("xbper", 2); I("burstA", 0); I("burstB", 0); I("st4", 0); I("wearly", 2); I("probe", 0); I("pubn", 99); I("jit", 0); I("pbars", 4); I("useF", 1); I("rdB", 0); I("pollfr", 9); I("pbk", 8); I("armn", 64); I("w2num", 2); I("x2pre", 4); I("xearly", 1)
I("ne", 0); I("e0", 16); I("e1", 44)
I("w2gap", 3); I("nmish", 14); I("rdmish", 4); I("flagApos", 2); I("nb", 6); I("npoll", 8)
I("depth", 9); I("tailj", 6); I("redi", 42); I("armpos", 1); I("sleep", 0); I("biasfirst", 2); I("s2pre", 16); I("s2gap", 7)
ap.add_argument("--spf", default="x1 p0 p1 x2")
ap.add_argument("--order", default="a0 a1 a2 a3 b0 b1 b2 b3 c0 c1 c2 c3 S0 S1")
ap.add_argument("--w2rot", default="none")
ap.add_argument("--outsc", default="nt")
ap.add_argument("--pad", default="")
ap.add_argument("--name", default="standalone__dense_activation_mish__prompt")
args = ap.parse_args()
KN = args.name + "_kernel"
D = args.D; NE = args.ne
BIG = D > 3
assert (D % 2 == 0 and NE <= 1) if BIG else NE <= 4

M32S = 118784; FLAGOFF = 114688; WS_SIZE = 64 * M32S; STAMP_OFF = 16 << 20
L = []
def A(s):
    for ln in s.split("\n"):
        L.append("    " + ln if not ln.endswith(":") else ln)

sW = 3
sX_, sWW, sB, sA, sL, sD, sW2 = 20, 24, 28, 32, 36, 40, 8
def srd(b): return f"s[{b}:{b+3}]"
s_mt, s_ft, s_fg, s_fl, s_m64, s_ml, s_wm, s_wf = 44, 45, 46, 47, 48, 49, 50, 51
s_nt = 19; s_bo = 18
s_ord, s_xbase, s_wbase, s_soX, s_soW, s_ld, s_so2, s_m0s = 52, 54, 55, 56, 57, 58, 59, 60
s_t2, s_t0, s_t1 = 61, 62, 63
s_wb = [64, 65, 66, 52]; s_ab = [48, 49, 50, 51]
s_actst, s_flagP, s_flagC, s_actld, s_spin, s_outb, s_xcd = 67, 68, 69, 70, 71, 72, 73
s_cl2e = 74; s_half = 76; s_so = 78; s_w2base = 79
s_pl = [53, 59, 60, 61, 44, 45, 46]
v_lane = 1
vDX = [2, 3, 4, 5]; vDW = [6, 7, 8, 9]; vD2 = [10, 11, 12, 13]
vRX = [14, 15, 16, 17]; vRX2 = [176, 177, 178, 179]; vRW = [18, 19]; vR2 = [[20, 21], [22, 23], [35, 36]]
v_l16 = 24; v_armoff = 26; v_arm = 27; v_one = 29; v_l4 = 30
v_bo = 31; v_redw = 32; v_redr = 33; v_outo = 34
vT = list(range(38, 64))
ACC = 64
def acc(mi, j): return ACC + 32 * mi + 16 * j
BIAS = 128; XF = 160; MT = 192; OUTB = MT + 24
AF = 128; NRING = 16
NS = 4 if args.st4 else 3
assert D == 8
XA = NS * 16384

stamp_names = []
stamp_regs = list(range(80, 100, 2)) + [4, 6, 16, 54, 56, 14]
def stamp(name):
    if args.pad:
        if name == "start": A("s_memrealtime s[80:81]")
        if name == args.pad: A("s_memrealtime s[82:83]")
        return
    if args.stamps != 1: return
    r = stamp_regs[len(stamp_names)]; stamp_names.append(name)
    A(f"s_mem{'real' if args.rtst else ''}time s[{r}:{r+1}]")
vmq = []; vm_known = [0]
def vm(tag): vmq.append(tag)
def lastidx(tag): return max(i for i, t in enumerate(vmq) if t == tag)
def wait_vm(tag):
    idx = lastidx(tag); n = len(vmq) - 1 - idx
    assert n <= 63, n
    A(f"s_waitcnt vmcnt({n})"); vm_known[0] = max(vm_known[0], idx + 1)
lgq = []; lg_done = [0]
def lg(ins, tag=None): A(ins); lgq.append(tag)
def wait_lg(tag):
    idx = max(i for i, t in enumerate(lgq) if t == tag)
    if idx < lg_done[0]: return
    n = min(len(lgq) - 1 - idx, 12)
    A(f"s_waitcnt lgkmcnt({n})"); lg_done[0] = max(lg_done[0], len(lgq) - n)
def wait_lg0(): A("s_waitcnt lgkmcnt(0)"); lg_done[0] = len(lgq)
lastw = {}
def pad_after(key, need):
    n = 0
    for ln in L[lastw[key] + 1:]:
        t = ln.strip()
        if t.endswith(":") or t.startswith("s_mem"): continue
        n += int(t.split()[1]) + 1 if t.startswith("s_nop") else 1
    if n < need: A(f"s_nop {need - n - 1}")

hdr = f"""; out = mish(x @ w1 + b1) @ w2     x[2048,512] w1[512,1792] b1[1792] w2[1792,512] out[2048,512], all bf16
; @launch grid=(256,1,1) block=(256,1,1) lds=163840
.amdgcn_target "amdgcn-amd-amdhsa--gfx950"
.text
.globl {KN}
.p2align 8
.type {KN},@function
{KN}:"""

for r, o in ((sX_, 0), (sWW, 8), (sB, 16)):
    A(f"s_load_dwordx2 s[{r}:{r+1}], s[0:1], {o}")
A("s_load_dwordx8 s[8:15], s[0:1], 24")
A("s_cmpk_ge_u32 s2, 256")
A("s_cbranch_scc1 L_end")
if args.stamps: A("s_memrealtime s[100:101]")
stamp("start")
a, b, c, d = vT[0], vT[1], vT[2], vT[3]
h = vT[5]; t = vT[6]; tq = vT[7]; e = vT[8]; f = vT[9]
A(f"v_lshrrev_b32 v{a}, 6, v0")
A(f"v_and_b32 v{v_lane}, 63, v0")
A(f"v_readfirstlane_b32 s{sW}, v{a}")
A(f"s_bfe_u32 s{s_fl}, s2, 0x30003")
A(f"s_mov_b32 s{sX_+3}, 0x20000")
def jitter(lbl, expr):
    A(expr); A(f"{lbl}:\ns_sleep 16\ns_sub_u32 s90, s90, 1\ns_cmp_gt_i32 s90, 0\ns_cbranch_scc1 {lbl}")
if args.jit == 1: jitter("L_j1", f"s_cmp_eq_u32 s{s_fl}, 7\ns_cselect_b32 s90, 60, 0")
if args.jit in (2, 3): jitter("L_j1", "s_memtime s[92:93]\ns_waitcnt lgkmcnt(0)\ns_mul_i32 s90, s2, 0x9e3779b1\ns_lshl_b32 s92, s92, 20\ns_add_u32 s90, s90, s92\ns_lshr_b32 s90, s90, 27")
A(f"s_cmp_lg_u32 s{s_fl}, 7")
A("s_cbranch_scc1 L_go")
A("s_getpc_b64 s[4:5]")
A("L_pcref:")
A(f"v_lshlrev_b32 v{vT[10]}, 6, v0")
A(f"v_min_u32 v{vT[10]}, L_codeend-L_pcref-4, v{vT[10]}")
A(f"v_mov_b32 v{vT[11]}, s5")
A(f"v_add_co_u32 v{vT[10]}, vcc, s4, v{vT[10]}")
A("s_nop 1")
A(f"v_addc_co_u32 v{vT[11]}, vcc, 0, v{vT[11]}, vcc")
assert vT[10] % 2 == 0
A(f"global_load_dword v{vT[24]}, v[{vT[10]}:{vT[11]}], off")
A("s_branch L_spare")
A("L_go:")
ids = [f"s_and_b32 s{s_fg}, s2, 1", f"s_lshr_b32 s{s_ml}, s2, 6", f"s_and_b32 s{s_mt}, s2, 6", f"s_lshl1_add_u32 s{s_mt}, s{s_mt}, s{s_ml}",
       f"s_lshl_b32 s{s_ld}, s{sW}, 12", f"v_lshrrev_b32 v{a}, 3, v{v_lane}", f"v_lshrrev_b32 v{b}, 4, v{v_lane}", f"v_and_b32 v{c}, 7, v{v_lane}"]
for x in ids: A(x)
A(f"s_lshl_b32 s{sX_+2}, s{sX_+3}, 4")
A(f"s_and_b32 s{s_t0}, s{sW}, 2\ns_add_u32 s{s_t0}, s{s_t0}, s{sW}\ns_lshl3_add_u32 s{s_xbase}, s{s_mt}, s{s_t0}\ns_lshl_b32 s{s_xbase}, s{s_xbase}, 14")
A(f"s_mul_i32 s{s_ft}, s{s_fg}, 7")
A(f"s_add_u32 s{s_ft}, s{s_ft}, s{s_fl}")
def rotw(): A(f"s_mov_b32 s52, 0x76543210\ns_mov_b32 s53, s52\ns_lshr_b64 s[52:53], s[52:53], s{s_t0}")
if args.rot == 5:
    A(f"s_add_u32 s{s_t0}, s{s_ml}, s{s_fl}\ns_and_b32 s{s_t0}, s{s_t0}, 1")
    A(f"s_lshr_b32 s{s_t1}, s2, 1\ns_xor_b32 s{s_t1}, s{s_t1}, s2\ns_and_b32 s{s_t1}, s{s_t1}, 1")
    A(f"s_lshl1_add_u32 s{s_t0}, s{s_t0}, s{s_t1}\ns_lshl_b32 s{s_t0}, s{s_t0}, 3"); rotw()
elif args.rot == 6:
    A(f"s_add_u32 s{s_t0}, s{s_ml}, s{s_fl}\ns_and_b32 s{s_t0}, s{s_t0}, 3\ns_lshl_b32 s{s_t0}, s{s_t0}, 3"); rotw()
elif args.rot == 2:
    A(f"s_add_u32 s{s_t0}, s{s_ml}, s{s_fl}\ns_and_b32 s{s_t0}, s{s_t0}, 1\ns_lshl_b32 s{s_t0}, s{s_t0}, 4"); rotw()
elif args.rot == 7:
    A(f"s_lshr_b32 s{s_t0}, s2, 1\ns_xor_b32 s{s_t0}, s{s_t0}, s2\ns_and_b32 s{s_t0}, s{s_t0}, 1\ns_lshl_b32 s{s_t0}, s{s_t0}, 4"); rotw()
else:
    A(f"s_mov_b32 s{s_ord}, 0x76543210")
A(f"s_mul_i32 s{s_wbase}, s{sW}, 224\ns_add_u32 s{s_wbase}, s{s_wbase}, s{s_ft}\ns_lshl_b32 s{s_wbase}, s{s_wbase}, 8")
A(f"v_xor_b32 v{d}, v{c}, v{b}")
A(f"v_lshlrev_b32 v{d}, 4, v{d}")
A(f"v_lshl_add_u32 v{vDX[0]}, v{a}, 10, v{d}")
A(f"v_xor_b32 v{d}, 64, v{vDX[0]}")
A(f"v_add_u32 v{vDX[1]}, 7168, v{d}")
dx23 = [f"v_add_u32 v{vDX[2]}, 30720, v{vDX[0]}", f"v_add_u32 v{vDX[3]}, 30720, v{vDX[1]}"]
if D < 8:
    for x in dx23: A(x)
A(f"v_and_b32 v{e}, 15, v{v_lane}")
A(f"v_lshlrev_b32 v{vT[4]}, 2, v{b}")
A(f"v_xor_b32 v{d}, v{e}, v{vT[4]}")
A(f"v_mul_u32_u24 v{vT[4]}, 224, v{b}")
A(f"v_add_lshl_u32 v{vDW[0]}, v{vT[4]}, v{d}, 4")
for i in range(1, 4): A(f"v_add_u32 v{vDW[i]}, {i*(4*3584-1024)}, v{vDW[0]}")
A(f"s_mul_i32 s{sWW+2}, s{sX_+3}, 14\ns_mov_b32 s{sWW+3}, s{sX_+3}")
def soffX(j): return (f"s_bfe_u32 s{s_t2}, s{s_ord}, {(3 << 16) | (4*j):#x}" if j else f"s_and_b32 s{s_t2}, s{s_ord}, 7") + f"\ns_lshl_b32 s{s_soX}, s{s_t2}, 7\ns_add_u32 s{s_soX}, s{s_soX}, s{s_xbase}"
def soffW(): return f"s_mul_i32 s{s_soW}, s{s_t2}, 229376\ns_add_u32 s{s_soW}, s{s_soW}, s{s_wbase}"
def dma(vo, srdb, so, i): return f"buffer_load_dwordx4 v{vo}, {srd(srdb)}, s{so} offen offset:{1024*i} lds"
def m0row(r): return f"s_add_u32 m0, s{s_ld}, {r * 16384}" if r else f"s_mov_b32 m0, s{s_ld}"

deferred = lambda ch: ch >= 8 - D
def xslot(ch, mi):
    if not BIG: return 3 + ch % 3, mi
    return (NS + 2 + ch // 2, ch & 1) if mi else (NS + (ch % 4) // 2, ch & 1)
def m0x(ch, mi):
    r, hf = xslot(ch, mi)
    return f"s_add_u32 m0, s{s_ld}, {r * 16384 + (hf - mi) * 2048}"
barorder = [f"B{i}" for i in range(8)] + [f"P{i}" for i in range(4)] + ["F"]
if not BIG:
    fr_ = []
    for ch in (5, 6, 7):
        nb_ = f"B{ch+1}" if ch < 7 else ("P0" if D else "F")
        fr_.append((ch % 3, nb_)); fr_.append((3 + ch % 3, "F" if deferred(ch) or ch == 7 else nb_))
    fr_.sort(key=lambda x: barorder.index(x[1]))
    rowinfo = [(6 + i, "") for i in range(4)] + fr_
else:
    fr_ = [(2, "B6"), (3, "B6"), (0, "B7"), (1, "P0"), (4, "P0")] if NS == 3 else [(0, "B5"), (1, "B6"), (4, "B6"), (2, "B7"), (3, "P0"), (5, "P0")]
    for j in range(4):
        k_ = j - (4 - D // 2)
        PS = 4 // args.pbars
        nxtb = (k_ // PS + 1) * PS
        fr_.append((NS + 2 + j, f"B{2*j+2}" if k_ < 0 else (f"P{nxtb}" if nxtb < D // 2 else "F")))
    fr_.sort(key=lambda x: barorder.index(x[1]))
    rowinfo = ([(9, "")] if NS == 3 else []) + fr_
rows = {}; fresh = list(rowinfo); recycled = set(); w2log = []
passed = set([""])
def gaddr(dst, p): return f"s_add_u32 s{dst}, s{s_w2base}, {p * 32768}"
stream = []
for j in range(8):
    rq = f"B{j-2}" if j > 2 else ""
    for i in range(2 if deferred(j) else 4):
        pre = None
        if i == 0: pre = m0x(j, 0) + "\n" + soffX(j)
        if i == 2 and BIG: pre = m0x(j, 1) + "\ns_nop 0"
        rqx = (f"B{j-3}" if j > 3 else "") if BIG and args.xearly else rq
        stream.append((pre, dma(vDX[i], sX_, s_soX, i), f"c{j}", rqx))
    for i in range(4):
        rqw = (f"B{j-3}" if j > 3 else "") if NS == 4 and i < args.wearly else rq
        stream.append(((m0row(j % NS) + "\n" + soffW()) if i == 0 else None, dma(vDW[i], sWW, s_soW, i), f"c{j}", rqw))
for j in range(8 - D, 8):
    for i in (2, 3):
        stream.append(((m0x(j, 1) + "\n" + soffX(j)) if i == 2 else None, dma(vDX[i], sX_, s_soX, i), f"x{(j - 8 + D) // 2 // PS * PS if BIG else 0}", ""))
assert NE == 0
stream += [("G" if i == 0 else None, dma(vD2[i], sW2, s_soX, i), f"g{p}", "") for p in range(14) for i in range(4)]
early = [(p, i) for p in range(NE) for i in range(4)]
esteps = [args.e0 + (k * (args.e1 - args.e0)) // max(1, len(early) - 1) for k in range(len(early))]
assert len(set(esteps)) == len(esteps)
def pick_row(force=False):
    for r in fresh:
        if r[1] in passed: return ("f", r)
    src = len(recycled)
    if force or (nextp[0] > src and not any(tg == f"q{src}" for _, tg in rq)): return ("r", src)
    return None
def can_issue():
    if not stream: return False
    if stream[0][2][0] == "g" and len(stream) <= args.npoll: return False
    if stream[0][0] == "G": return pick_row() is not None
    return stream[0][3] in passed
def pre_next():
    p, i_, tg, rq_ = stream[0]
    if p == "G":
        g = int(tg[1:]); kind, x = pick_row(force=True)
        if kind == "f": fresh.remove(x); rows[g] = x[0]
        else: need_pos(x); recycled.add(x); rows[g] = rows[x]; w2log.append(("L",))
        p = m0row(rows[g]) + "\n" + gaddr(s_soX, g)
        w2log.append(("S", p))
    if p: A(p); stream[0] = (None, i_, tg, rq_)
def dma_next():
    pre_next()
    p, i_, tg, rq_ = stream.pop(0)
    assert rq_ in passed, (tg, rq_)
    A(i_); vm(tg)
    if tg[0] == "g": w2log.append(("D", i_, tg))
dma_next2 = dma_next

pre_next()
def bias_addr():
    A(f"s_movk_i32 s{sB+2}, 3584\ns_mov_b32 s{sB+3}, s{sX_+3}")
    A(f"v_lshlrev_b32 v{v_bo}, 1, v{v_lane}")
    A(f"s_lshr_b32 s{s_bo}, s{sW}, 1\ns_lshl1_add_u32 s{s_bo}, s{s_ft}, s{s_bo}\ns_lshl_b32 s{s_bo}, s{s_bo}, 7")
def bias_load():
    A(f"buffer_load_ushort v{BIAS}, v{v_bo}, {srd(sB)}, s{s_bo} offen"); vm("c0")
if args.biasfirst == 1: bias_addr()
A("s_waitcnt lgkmcnt(0)")
if args.biasfirst == 1: bias_load()
for i in range(8):
    dma_next()
    if i == 4 and args.biasfirst == 2: bias_addr(); bias_load()
if args.probe:
    stamp("iss")
    A("s_waitcnt vmcnt(8)"); stamp("x0")
    A("s_waitcnt vmcnt(2)"); stamp("c0")
common = [f"v_lshrrev_b32 v{h}, 5, v{v_lane}", f"v_and_b32 v{d}, 1, v{b}", f"v_bfe_u32 v{tq}, v{v_lane}, 2, 2",
          f"v_and_b32 v{vT[4]}, 3, v{v_lane}", f"v_lshlrev_b32 v{vT[4]}, 3, v{vT[4]}", f"v_lshl_add_u32 v{vT[4]}, v{d}, 5, v{vT[4]}",
          f"s_and_b32 s{s_wm}, s{sW}, 1", f"s_lshr_b32 s{s_wf}, s{sW}, 1"]
for x in common: A(x)
A(f"s_lshl_b32 s{s_t0}, s{s_wm}, 13\ns_add_u32 s{s_t0}, s{s_t0}, {XA}")
A(f"v_lshl_add_u32 v{e}, v{e}, 7, s{s_t0}")
A(f"v_lshl_add_u32 v{e}, v{d}, 12, v{e}")
A(f"v_bfe_u32 v{f}, v{v_lane}, 1, 3")
A(f"v_xor_b32 v{f}, v{f}, v{h}")
A(f"v_lshl_add_u32 v{vRX[0]}, v{f}, 4, v{e}")
for s in range(1, 4): A(f"v_xor_b32 v{vRX[s]}, {32*s}, v{vRX[0]}")
A(f"v_lshl_add_u32 v{f}, v{h}, 3, v{tq}")
A(f"v_lshl_add_u32 v{f}, v{f}, 8, v{vT[4]}")
A(f"s_and_b32 s{s_t0}, s{sW}, 2")
A(f"v_xor_b32 v{t}, s{s_t0}, v{tq}")
A(f"v_lshl_add_u32 v{vRW[0]}, v{t}, 6, v{f}")
A(f"v_xor_b32 v{vRW[1]}, 64, v{vRW[0]}")
if not args.biasfirst: bias_addr()
A(f"v_mul_u32_u24 v{BIAS+8}, 0x3f80, v{h}")
A(f"v_xor_b32 v{BIAS+4}, 0x3f80, v{BIAS+8}")
for i in (1, 2, 3, 5, 6, 7, 9, 10, 11): A(f"v_mov_b32 v{BIAS+i}, 0")

W2SRD = ["s_mov_b64 s[64:65], s[10:11]", f"s_mov_b32 s{sW2+2}, 1835008", f"s_mov_b32 s{sW2+3}, s{sX_+3}"]
S2 = f"""s_mov_b32 s{sB+3}, s{sX_+3}
s_mov_b64 s[{sD}:{sD+1}], s[12:13]
s_mov_b64 s[{sA}:{sA+1}], s[14:15]
s_mov_b64 s[{sL}:{sL+1}], s[14:15]
s_mov_b32 s{sA+2}, {WS_SIZE}
s_mov_b32 s{sA+3}, s{sX_+3}
s_mov_b32 s{sL+2}, s{sA+2}
s_mov_b32 s{sL+3}, s{sX_+3}
s_movk_i32 s{sD+2}, 256
s_mov_b32 s{sD+3}, s{sX_+3}
s_and_b32 s{s_xcd}, s2, 7
s_xor_b32 s{s_nt}, s{s_fl}, 4
s_lshl2_add_u32 s{s_m64}, s{s_xcd}, s{s_ml}
v_lshlrev_b32 v{e}, 2, v{d}
v_xor_b32 v{e}, v{c}, v{e}
v_lshlrev_b32 v{e}, 4, v{e}
v_lshl_add_u32 v{vD2[0]}, v{a}, 10, v{e}
v_add_u32 v{vD2[1]}, 7168, v{vD2[0]}
v_add_u32 v{vD2[2]}, 14336, v{vD2[0]}
v_add_u32 v{vD2[3]}, 21504, v{vD2[0]}
v_lshl_add_u32 v{f}, v{h}, 2, v{tq}
v_lshl_add_u32 v{f}, v{f}, 7, v{vT[4]}
v_bfe_u32 v{t}, v{v_lane}, 3, 1
v_lshl_add_u32 v{f}, v{t}, 6, v{f}
v_add_u32 v{vR2[0][0]}, s{s_ld}, v{f}
v_xor_b32 v{vR2[0][1]}, 64, v{vR2[0][0]}
v_add_u32 v{vR2[1][0]}, 65536, v{vR2[0][0]}
v_add_u32 v{vR2[1][1]}, 65536, v{vR2[0][1]}
v_add_u32 v{vR2[2][0]}, 131072, v{vR2[0][0]}
v_add_u32 v{vR2[2][1]}, 131072, v{vR2[0][1]}
v_lshlrev_b32 v{v_l16}, 4, v{v_lane}
v_mov_b32 v{v_one}, 1
v_lshlrev_b32 v{v_l4}, 2, v{v_lane}
s_lshl1_add_u32 s{s_t0}, s{s_mt}, s{s_fg}
s_lshl_b32 s{s_t0}, s{s_t0}, 2
s_and_b32 s{s_t1}, s{s_m64}, 30
s_add_u32 s{s_t1}, s{s_t1}, s{s_wf}
s_lshl_b32 s{s_t1}, s{s_t1}, 2
s_sub_u32 s{s_t1}, s{s_t1}, s{s_t0}
v_mul_lo_u32 v{v_armoff}, v{h}, s{s_t1}
v_add_u32 v{v_armoff}, s{s_t0}, v{v_armoff}
v_and_b32 v{e}, 15, v{v_lane}
v_lshl_add_u32 v{e}, v{e}, 8, s{s_ld}
v_lshl_add_u32 v{e}, v{d}, 14, v{e}
v_xor_b32 v{f}, v{c}, v{h}
v_lshl_add_u32 v{v_redw}, v{f}, 4, v{e}
s_lshl_b32 s{s_t0}, s{s_wf}, 14
s_lshl_b32 s{s_t1}, s{s_wm}, 11
s_add_u32 s{s_t0}, s{s_t0}, s{s_t1}
v_lshl_add_u32 v{e}, v{a}, 8, s{s_t0}
v_lshlrev_b32 v{f}, 1, v{c}
v_xor_b32 v{f}, v{f}, v{a}
v_lshl_add_u32 v{v_redr}, v{f}, 4, v{e}
v_lshlrev_b32 v{e}, 4, v{c}
v_lshl_add_u32 v{v_outo}, v{a}, 10, v{e}
s_mul_i32 s{s_w2base}, s{sW}, 3584
s_add_u32 s{s_w2base}, s{s_w2base}, s{s_nt}
s_lshl_b32 s{s_w2base}, s{s_w2base}, 7""".split("\n")
S2 += f"""s_mul_i32 s{s_t0}, s{s_m64}, {2*M32S}
s_mul_i32 s{s_flagC}, s{sW}, 896
s_add_u32 s{s_flagC}, s{s_flagC}, s{s_t0}
s_add_u32 s{s_flagC}, s{s_flagC}, {FLAGOFF}
s_mul_i32 s{s_actld}, s{sW}, 28672
s_add_u32 s{s_actld}, s{s_actld}, s{s_t0}
s_lshl3_add_u32 s{s_outb}, s{s_m64}, s{sW}
s_lshl_b32 s{s_outb}, s{s_outb}, 6
s_add_u32 s{s_outb}, s{s_outb}, s{s_nt}
s_lshl_b32 s{s_outb}, s{s_outb}, 7
s_mov_b32 s{s_spin}, 0""".split("\n")
S2p = f"""s_lshl1_add_u32 s{s_t0}, s{s_mt}, s{s_wm}
s_mul_i32 s{s_t0}, s{s_t0}, {2*M32S}
s_lshl_b32 s{s_actst}, s{s_bo}, 5
s_add_u32 s{s_actst}, s{s_actst}, s{s_t0}
s_add_u32 s{s_flagP}, s{s_bo}, s{s_t0}
s_add_u32 s{s_flagP}, s{s_flagP}, {FLAGOFF}
s_mov_b32 s{s_cl2e}, 0xbfb8aa3b
s_mov_b32 s{s_cl2e+1}, s{s_cl2e}
s_mov_b32 s{s_half}, 0.5
s_mov_b32 s{s_half+1}, 0.5""".split("\n")
s2q = W2SRD + S2[1:] + S2p + (dx23 if D == 8 else [])
if BIG:
    rx2 = [f"v_add_u32 v{vRX2[s]}, 32768, v{vRX[s]}" for s in range(4)]
    if D == 8: s2q += rx2
    else:
        for x in rx2: A(x)
def emit_s2(k):
    for _ in range(k):
        if s2q: A(s2q.pop(0))
emit_s2(args.s2pre)
stamp("setup")
if not args.biasfirst: bias_load()
while stream[0][2] == "c1": dma_next()
if deferred(0):
    for i in range(args.x2pre): dma_next()

seq = []
for ch in range(8):
    for s in range(4):
        seq.append((ch, 0, s))
        if not deferred(ch): seq.append((ch, 1, s))
nA = len(seq)
for ch in range(8 - D, 8): seq += [(ch, 1, s) for s in range(4)]
assert len(seq) == 64
def xf(n): return XF + 4 * (n % 4)
def rd_x(n):
    ch, mi, s = seq[n]
    r, hf = xslot(ch, mi)
    va, r0 = (vRX2[s], NS + 2) if BIG and mi else (vRX[s], NS)
    lg(f"ds_read_b128 v[{xf(n)}:{xf(n)+3}], v{va} offset:{(r - r0)*16384 + 2048*hf}", f"x{n}")
def rd_w(n, fi):
    ch, mi, s = seq[n]
    if mi: return
    for a_ in range(2):
        r = (ch * 4 + s) * 8 + 4 * fi + 2 * a_
        lg(f"ds_read_b64_tr_b16 a[{r}:{r+1}], v{vRW[fi]} offset:{(ch % NS)*16384+4096*s+1024*a_}", f"w{n}_{fi}")
def mfma1(n, fi):
    ch, mi, s = seq[n]
    Dr = acc(mi, fi); wr = (ch * 4 + s) * 8 + 4 * fi
    C = f"v[{Dr}:{Dr+15}]"
    A(f"v_mfma_f32_32x32x16_bf16 v[{Dr}:{Dr+15}], a[{wr}:{wr+3}], v[{xf(n)}:{xf(n)+3}], {C}"); lastw[(mi, fi)] = len(L) - 1
def mfma_bias(mi, fi):
    Dr = acc(mi, fi)
    A(f"v_mfma_f32_32x32x16_bf16 v[{Dr}:{Dr+15}], v[{BIAS}:{BIAS+3}], v[{BIAS+4+4*fi}:{BIAS+7+4*fi}], 0")
P = lambda r: f"v[{r}:{r+1}]"
def mish_pk(k):
    hb = ACC + 8 * k; ob = OUTB + 4 * k
    U, N, Dd = MT, MT + 8, MT + 16
    o = [f"v_pk_mul_f32 {P(U+2*p)}, {P(hb+2*p)}, s[{s_cl2e}:{s_cl2e+1}]" for p in range(4)]
    o += [f"v_exp_f32 v{U+i}, v{U+i}" for i in range(8)]
    o += [f"v_pk_add_f32 {P(N+2*p)}, {P(U+2*p)}, s[{s_half}:{s_half+1}]" for p in range(4)]
    o += [f"v_pk_fma_f32 {P(Dd+2*p)}, {P(U+2*p)}, {P(U+2*p)}, {P(N+2*p)}" for p in range(4)]
    o += [f"v_rcp_f32 v{Dd+i}, v{Dd+i}" for i in range(8)]
    o += [f"v_pk_mul_f32 {P(N+2*p)}, {P(N+2*p)}, {P(Dd+2*p)} clamp" for p in range(4)]
    o += [f"v_pk_mul_f32 {P(N+2*p)}, {P(N+2*p)}, {P(hb+2*p)}" for p in range(4)]
    o += [f"v_cvt_pk_bf16_f32 v{ob+p}, v{N+2*p}, v{N+2*p+1}" for p in range(4)]
    return o
def st_act(k):
    ob = OUTB + 4 * k
    if k == 4: A(f"s_add_u32 s{s_actst}, s{s_actst}, {M32S}")
    A(f"buffer_store_dwordx4 v[{ob}:{ob+3}], v{v_l16}, {srd(sA)}, s{s_actst} offen offset:{1024*(k & 3)} sc1"); vm(f"st{k >> 2}")
def arm_load(): A(f"buffer_load_dword v{v_arm}, v{v_armoff}, {srd(sD)}, 0 offen sc1")
NH = args.nh if D else 0
mA = []
U, N, Dd = MT, MT + 8, MT + 16
stg = [lambda i: (f"v_mul_f32 v{U+i%8}, s{s_cl2e}, v{ACC+i}", 4), lambda i: (f"v_exp_f32 v{U+i%8}, v{U+i%8}", 8),
       lambda i: (f"v_add_f32 v{N+i%8}, 0.5, v{U+i%8}", 4), lambda i: (f"v_fma_f32 v{Dd+i%8}, v{U+i%8}, v{U+i%8}, v{N+i%8}", 5),
       lambda i: (f"v_rcp_f32 v{Dd+i%8}, v{Dd+i%8}", 8), lambda i: (f"v_mul_f32 v{N+i%8}, v{N+i%8}, v{Dd+i%8} clamp", 5),
       lambda i: (f"v_mul_f32 v{N+i%8}, v{N+i%8}, v{ACC+i}", 4),
       lambda i: (f"v_cvt_pk_bf16_f32 v{OUTB+i//2}, v{N+(i-1)%8}, v{N+i%8}", 5) if i & 1 else None]
for tt in range(8 * NH + 7 if NH else 0):
    for k in (7, 1, 6, 5, 3, 4, 2, 0):
        i = tt - k
        if 0 <= i < 8 * NH and stg[k](i):
            if mA and mA[-1][0].startswith(("v_exp", "v_rcp")) and mA[-1][0].split()[1].rstrip(",") in [z.strip(",") for z in stg[k](i)[0].split()[2:]]:
                mA.append(("s_nop 0", 4))
            mA.append(stg[k](i))
            if k == 7 and i % 8 == 7:
                fr = i // 8
                if args.burstA == 0: mA.append(("ST", fr))
                elif args.burstA == 1 and fr == NH - 1: mA += [("ST", q) for q in range(NH)]
                elif args.burstA == 2 and fr & 1: mA += [("ST", fr - 1), ("ST", fr)]
totA = sum(c_ for i_, c_ in mA if i_ != "ST"); doneA = [0]
g0 = 2 * nA + args.h0 - 1; ngaps = 128 - g0 - args.h1
def mishA_gap(g):
    if g < g0 or not mA: return
    if g == g0: pad_after((0, 0), 12)
    target = totA * (g - g0 + 1) / ngaps
    while mA and (doneA[0] < target - 2 or mA[0][0] == "ST"):
        i_, c_ = mA.pop(0)
        if i_ == "ST": st_act(c_)
        else: A(i_); doneA[0] += c_

def w2_reads(p):
    out = []; r_ = rows[p]
    for i in range(4):
        j = 4 * p + i; ks, a_ = j >> 1, j & 1
        for ni in range(2):
            r = (ks * 2 + ni) * 4 + 2 * a_
            out.append(f"ds_read_b64_tr_b16 a[{r}:{r+1}], v{vR2[r_ >> 2][ni]} offset:{(r_ & 3)*16384+1024*i}")
    return out
maxp = [-1]
nextp = [0]; rq = []
def queue_pos(force=False, age=12):
    p = nextp[0]
    if p >= 14 or p > maxp[0] or vmq.count(f"g{p}") < 4: return False
    last = lastidx(f"g{p}")
    if last >= vm_known[0]:
        if not force and len(vmq) - 1 - last < age: return False
        wait_vm(f"g{p}")
    rq.extend((r, f"q{p}") for r in w2_reads(p)); nextp[0] += 1
    return True
def fill(k, age=12):
    for _ in range(k):
        if not rq and not queue_pos(age=age): return
        r, tg = rq.pop(0); lg(r, tg); w2log.append(("R", r, tg))
def need_pos(p):
    while nextp[0] <= p: assert queue_pos(force=True)
    while any(tg == f"q{p}" for _, tg in rq):
        r, tg = rq.pop(0); lg(r, tg); w2log.append(("R", r, tg))
    wait_lg(f"q{p}")
def flag(stage):
    if stage == 1: A(f"s_add_u32 s{s_flagP}, s{s_flagP}, {M32S}")
    A("s_mov_b32 exec_hi, 0")
    A(f"buffer_store_dword v{v_one}, v{v_l4}, {srd(sA)}, s{s_flagP} offen sc1")
    A("s_mov_b32 exec_hi, -1")
def poll_issue():
    for i in range(7): A(f"s_buffer_load_dword s{s_pl[i]}, {srd(sL)}, s{s_flagC} offset:{128*i} glc")
cold = []
def spin_check(lbl, reissue, pre=None):
    A(f"{lbl}:")
    if lbl != "L_arm":
        wait_lg0()
        for i in range(1, 7): A(f"s_and_b32 s{s_pl[0]}, s{s_pl[0]}, s{s_pl[i]}")
    else:
        A(f"v_cmp_eq_u32 vcc, 1, v{v_arm}"); A("s_nop 0"); A("s_cmp_eq_u64 vcc, -1")
    A(f"s_cbranch_scc0 {lbl}_slow")
    A(f"{lbl}_ok:")
    cold.append((lbl, reissue, pre))
def pubA():
    wait_vm(max(("arm", "st0"), key=lastidx))
    spin_check("L_arm", arm_load)
    flag(0); vm("flagA")
    stamp("flagA")
pre_next()
wait_vm("c0")
stamp("c0_land")
A("s_barrier"); passed.add("B0")
mfma_bias(0, 0)
for n in range(2): rd_x(n); rd_w(n, 0); rd_w(n, 1)
mfma_bias(0, 1); emit_s2(args.s2gap); mfma_bias(1, 0); emit_s2(args.s2gap); mfma_bias(1, 1)
if not deferred(0): dma_next(); dma_next()
nbar = [0]
for n in range(64):
    nx = n + 2
    ch, mi, s = seq[n]
    bar = None
    if nx < nA and seq[nx][1:] == (0, 0): bar = (f"B{seq[nx][0]}", f"c{seq[nx][0]}")
    if nA <= nx < 64 and (nx == nA or (BIG and (nx - nA) % (8 * PS) == 0)): bar = (f"P{(nx-nA)//8}", f"x{(nx-nA)//8}")
    if nx == 64 and args.useF: bar = ("F", None)
    wait_lg(f"x{n}" if mi else f"w{n}_0")
    mfma1(n, 0)
    if bar:
        if bar[1]:
            while any(e_[2] == bar[1] for e_ in stream): dma_next()
            if args.itst: A("s_memtime s[4:5]")
            wait_vm(bar[1])
        if args.itst: A("s_memtime s[6:7]")
        wait_lg0()
        if args.itst: A(f"v_writelane_b32 v60, s4, {nbar[0]}\nv_writelane_b32 v61, s6, {nbar[0]}"); nbar[0] += 1
        A("s_barrier"); passed.add(bar[0])
    def loads(g):
        if not can_issue(): return
        kind = stream[0][2][0]
        if BIG and kind == "x": ok = args.xbper == 2 or g & 1 == 0
        elif n >= nA or (BIG and kind == "g"): ok = g % args.w2gap < args.w2num
        elif deferred(ch): ok = True
        else: ok = g & 1
        if ok: dma_next2()
    if nx < 64: rd_x(nx); rd_w(nx, 0)
    mishA_gap(2 * n)
    emit_s2(args.s2gap)
    if n in esteps:
        assert not s2q
        p, i = early.pop(0)
        A(f"s_mov_b32 s{s_m0s}, m0"); A(m0row(rows[p]))
        A(gaddr(s_so2, p) if i == 0 else "s_nop 0")
        A(dma(vD2[i], sW2, s_so2, i)); vm(f"g{p}")
        A(f"s_mov_b32 m0, s{s_m0s}")
    else: loads(2 * n)
    if can_issue(): pre_next()
    if not mi: wait_lg(f"w{n}_1")
    mfma1(n, 1)
    if nx < 64: rd_w(nx, 1)
    if n == nA - 1: stamp("pAdone")
    if n == args.armn: arm_load(); vm("arm")
    if n == args.pubn:
        assert vmq.count("st0") == 4
        pubA(); args.flagApos = -9
    if D == 8 and n >= nA and args.rdB:
        maxp[0] = 2 * ((n + 1 - nA) // 4) - 1
        fill(args.rdB)
    mishA_gap(2 * n + 1)
    emit_s2(args.s2gap)
    loads(2 * n + 1)
assert not early and not mA
stamp("p1done")
if args.jit == 3: jitter("L_j2", "s_memtime s[92:93]\ns_waitcnt lgkmcnt(0)\ns_mul_i32 s90, s92, 0x9e3779b1\ns_lshr_b32 s90, s90, 28")
maxp[0] = 13

if args.armn >= 64: arm_load(); vm("arm")
nfr = 8 - NH
nm = args.nmish
slotset = set(int((k + 0.5) * 40 * nfr / nm) for k in range(nm)) if nm else set()
for k_ in range(NH, 8):
    if k_ == 4 + args.flagApos: pubA()
    if k_ == 4 + args.pollfr:
        assert args.pollfr >= args.flagApos
        poll_issue()
    pad_after((k_ >> 2, (k_ >> 1) & 1), 12)
    for n, ins in enumerate(mish_pk(k_)):
        A(ins)
        if (k_ - NH) * 40 + n in slotset and len(stream) > args.npoll: dma_next2()
        if k_ >= 4 and n % 4 == 1 and (rq or nextp[0] < args.rdmish): fill(1, 16)
    if k_ < 4 or args.burstB == 0: st_act(k_)
    elif args.burstB == 2 and k_ & 1: st_act(k_ - 1); st_act(k_)
    elif args.burstB == 1 and k_ == 7:
        if args.flagApos == 4: pubA(); args.flagApos = -1
        for q in range(4, 8): st_act(q)
    if k_ == 3 and NH < 4: stamp("mish0")
stamp("mish1")
if args.jit == 3: jitter("L_j3", "s_memtime s[92:93]\ns_waitcnt lgkmcnt(0)\ns_mul_i32 s90, s92, 0x9e3779b1\ns_lshr_b32 s90, s90, 28")
if args.flagApos >= 4: pubA()
A("L_enter2:")
lean = list(w2log)
lean_poll = args.pollfr < 4
polled = len(stream) <= args.npoll or lean_poll
if polled and not lean_poll: poll_issue()
k = 0; flagB_done = False
def maybe_flagB():
    global flagB_done
    if not flagB_done and k >= args.nb:
        wait_vm("st1"); flag(1); vm("flagB"); flagB_done = True
        stamp("flagB")
while stream:
    dma_next2(); k += 1; maybe_flagB(); fill(4)
    if len(stream) == args.npoll and not polled: poll_issue(); polled = True
if not flagB_done: A(f"s_mov_b32 s{s_t1}, 0")
stamp("w2iss")
spin_check("L_pollA", poll_issue, pre=None if flagB_done else "B")
stamp("pollA")
DEP = args.depth; NF = 56
assert DEP < NRING
def af(i): return AF + 4 * (i % NRING)
def act_load(i):
    global k
    mi, ks = divmod(i, 28)
    if i == 28:
        spin_check("L_pollB", poll_issue)
    if ks % 4 == 0: A(f"s_add_u32 s{s_so}, s{s_actld}, {mi*M32S + ks*1024}")
    A(f"buffer_load_dwordx4 v[{af(i)}:{af(i)+3}], v{v_l16}, {srd(sL)}, s{s_so} offen offset:{(ks%4)*1024} sc1"); vm(f"a{i}")
    k += 1; maybe_flagB()
for i in range(DEP): act_load(i); fill(6)
PB = 28 - DEP - args.pbk
redw = [(ni, g) for ni in range(2) for g in range(4)]
R = 192
def red_reads(mi, base):
    return [f"ds_read_b128 v[{base+8*src+4*e_}:{base+8*src+4*e_+3}], v{[v_redr, vT[4]][e_]} offset:{src*4096 + 32768*mi}" for src in range(4) for e_ in range(2)]
def out_store(b_): A(f"buffer_store_dwordx4 v[{b_+8}:{b_+11}], v{v_outo}, {srd(sB)}, s{s_outb} offen {args.outsc}")
side = []; TJ = args.tailj
def p2mfma(i, ni):
    mi, ks = divmod(i, 28)
    Dr = acc(mi, ni); wr = (ks * 2 + ni) * 4
    C = "0" if ks == 0 else f"v[{Dr}:{Dr+15}]"
    A(f"v_mfma_f32_32x32x16_bf16 v[{Dr}:{Dr+15}], a[{wr}:{wr+3}], v[{af(i)}:{af(i)+3}], {C}"); lastw[(mi, ni)] = len(L) - 1
def redwr(mi, ni, g):
    pad_after((mi, ni), 12)
    r = acc(mi, ni) + 4 * g
    A(f"ds_write_b128 v{v_redw if g == 0 else vT[g]}, v[{r}:{r+3}] offset:{32768*mi+128*ni}")
for i in range(NF):
    mi, ks = divmod(i, 28)
    wait_vm(f"a{i}")
    if i == 0: stamp("a0")
    if mi == 0 and ks % 2 == 0: need_pos(ks >> 1)
    for ni in range(2 if i < NF - TJ else 1):
        p2mfma(i, ni); fill(2)
        for _ in range(3):
            if side: A(side.pop(0))
    if i == PB:
        A(f"s_add_u32 s{s_flagC}, s{s_flagC}, {M32S}"); poll_issue()
    if i + DEP < NF: act_load(i + DEP)
    if i == 26:
        for gg in range(1, 4): A(f"v_xor_b32 v{vT[gg]}, {32*gg}, v{v_redw}")
        A(f"s_mov_b64 s[{sB}:{sB+1}], s[64:65]\ns_mov_b32 s{sB+2}, 2097152")
        A(f"v_xor_b32 v{vT[4]}, 16, v{v_redr}")
    if mi == 1 and 3 <= ks < 11: redwr(0, *redw[ks - 3])
    if i == args.redi:
        A("s_waitcnt lgkmcnt(0)"); A("s_barrier"); side = red_reads(0, R)
    if i == args.redi + 3:
        A("s_waitcnt lgkmcnt(0)")
        side = [f"v_add_f32 v{R+j}, v{R+j}, v{R+8+j}" for j in range(8)] + [f"v_add_f32 v{R+16+j}, v{R+16+j}, v{R+24+j}" for j in range(8)]
        side += [f"v_add_f32 v{R+j}, v{R+j}, v{R+16+j}" for j in range(8)] + [f"v_cvt_pk_bf16_f32 v{R+8+p}, v{R+2*p}, v{R+2*p+1}" for p in range(4)]
    if i == args.redi + 9:
        assert not side and i + DEP >= NF - 1
        out_store(R); vm("o")
        A(f"s_add_u32 s{s_outb}, s{s_outb}, 32768")
assert flagB_done and not stream
wl = list(range(4))
for j, i in enumerate(range(NF - TJ, NF)):
    p2mfma(i, 1)
    if j == 0: A("s_nop 4")
    if j >= 1 and wl and j < TJ - 1: redwr(1, 0, wl.pop(0))
stamp("p2done")
while wl: redwr(1, 0, wl.pop(0))
for g in range(4): redwr(1, 1, g)
A("s_waitcnt lgkmcnt(0)")
A("s_barrier")
b_ = 160
for r in red_reads(1, b_): A(r)
A("s_waitcnt lgkmcnt(4)")
for p in range(4): A(f"v_pk_add_f32 {P(b_+2*p)}, {P(b_+2*p)}, {P(b_+8+2*p)}")
A("s_waitcnt lgkmcnt(0)")
for p in range(4): A(f"v_pk_add_f32 {P(b_+16+2*p)}, {P(b_+16+2*p)}, {P(b_+24+2*p)}")
for p in range(4): A(f"v_pk_add_f32 {P(b_+2*p)}, {P(b_+2*p)}, {P(b_+16+2*p)}")
for p in range(4): A(f"v_cvt_pk_bf16_f32 v{b_+8+p}, v{b_+2*p}, v{b_+2*p+1}")
out_store(b_)
if args.stamps:
    A("s_waitcnt vmcnt(0)")
    stamp("end")
    A("s_memrealtime s[12:13]")
    A("s_waitcnt lgkmcnt(0)")
    n = len(stamp_names)
    A("v_mov_b32 v64, s100\nv_mov_b32 v65, s12")
    for i in range(n): A(f"v_mov_b32 v{66+i}, s{stamp_regs[i]}")
    A(f"v_mov_b32 v{66+n}, s{s_spin}")
    A(f"s_mov_b32 s{sL+2}, 0x10000000")
    A(f"s_lshl_b32 s{s_t0}, s2, 2\ns_add_u32 s{s_t0}, s{s_t0}, s{sW}\ns_lshl_b32 s{s_t0}, s{s_t0}, 7\ns_add_u32 s{s_t0}, s{s_t0}, {STAMP_OFF}")
    if args.itst:
        A("s_mov_b64 exec, 0xfff")
        A(f"s_add_u32 s{s_t1}, s{s_t0}, {1<<20}")
        for q, r in enumerate((60, 61)): A(f"buffer_store_dword v{r}, v{v_l4}, {srd(sL)}, s{s_t1} offen offset:{48*q}")
    A("s_mov_b64 exec, 1")
    for q in range(5): A(f"buffer_store_dwordx4 v[{64+4*q}:{67+4*q}], off, {srd(sL)}, s{s_t0} offset:{16*q}")
if args.pad:
    A("s_waitcnt vmcnt(0)")
    stamp("end")
    A("s_waitcnt lgkmcnt(0)")
    A("s_sub_u32 s84, s82, s80")
    A(f"s_cmp_eq_u32 s{s_fl}, 7\ns_cselect_b32 s84, 0, s84")
    if args.padwg >= 0: A(f"s_cmp_eq_u32 s2, {args.padwg}\ns_cselect_b32 s84, s84, 0")
    A("s_min_u32 s84, s84, 10000\ns_add_u32 s84, s84, 4000")
    if args.padonly >= 0: A(f"s_cmp_lg_u32 s2, {args.padonly}\ns_cbranch_scc1 L_end")
    A("L_pad:\ns_memrealtime s[86:87]\ns_waitcnt lgkmcnt(0)\ns_sub_u32 s85, s86, s80\ns_cmp_lt_u32 s85, s84\ns_cbranch_scc1 L_pad")
A("L_end:")
A("s_endpgm")
for lbl, reissue, pre in cold:
    A(f"{lbl}_slow:")
    if pre:
        A(f"s_cmp_lg_u32 s{s_t1}, 0\ns_cbranch_scc1 {lbl}_s2\ns_mov_b32 s{s_t1}, 1\ns_waitcnt vmcnt(0)")
        A(f"s_add_u32 s{s_t0}, s{s_flagP}, {M32S}")
        A("s_mov_b32 exec_hi, 0")
        A(f"buffer_store_dword v{v_one}, v{v_l4}, {srd(sA)}, s{s_t0} offen sc1")
        A("s_mov_b32 exec_hi, -1")
        A(f"{lbl}_s2:")
    A(f"s_add_u32 s{s_spin}, s{s_spin}, 1")
    A(f"s_cmp_ge_u32 s{s_spin}, 200000")
    A(f"s_cbranch_scc1 {lbl}_ok")
    if args.sleep: A(f"s_sleep {args.sleep}")
    reissue()
    if lbl == "L_arm": A("s_waitcnt vmcnt(0)")
    A(f"s_branch {lbl}")
A("L_spare:")
for x in ids: A(x)
A(f"v_lshlrev_b32 v{vT[18]}, 7, v{v_lane}")
A(f"s_and_b32 s{s_xcd}, s2, 7")
A(f"s_mul_i32 s{s_so2}, s{s_ml}, 56\ns_add_u32 s{s_so2}, s{s_so2}, s{sW}\ns_lshl_b32 s{s_so2}, s{s_so2}, 13")
A(f"s_mul_i32 s{s_t2}, s{s_xcd}, 7\ns_lshr_b32 s{s_t2}, s{s_t2}, 2\ns_lshl_b32 s{s_t2}, s{s_t2}, 15\ns_add_u32 s{s_t2}, s{s_t2}, s{s_so2}")
A(f"s_mov_b32 s{sX_+2}, 2097152")
A(f"s_and_b32 s{s_t0}, s{sW}, 2\ns_add_u32 s{s_t0}, s{s_t0}, s{sW}\ns_lshl3_add_u32 s{s_xbase}, s{s_mt}, s{s_t0}\ns_add_u32 s{s_xbase}, s{s_xbase}, 2\ns_lshl_b32 s{s_xbase}, s{s_xbase}, 14")
A("s_waitcnt lgkmcnt(0)")
for x in W2SRD: A(x)
def spf_op(op):
    if op[0] == "x":
        A(f"s_xor_b32 s{s_t0}, s{s_fg}, {int(op == 'x2')}\ns_lshl_b32 s{s_t0}, s{s_t0}, 13\ns_add_u32 s{s_t0}, s{s_t0}, s{s_xbase}")
        A(f"buffer_load_dword v{vT[24]}, v{vT[18]}, {srd(sX_)}, s{s_t0} offen")
        return
    if op[0] == "p": A(f"s_add_u32 s{s_t0}, s{s_t2}, {32768*int(op[1])}")
    elif op[0] == "g": A(f"s_add_u32 s{s_t0}, s{s_so2}, {32768*int(op[1:])}")
    else: A(f"s_add_u32 s{s_t0}, s{s_so2}, {32768*(12+int(op[1]))}")
    A(f"buffer_load_dword v{vT[24]}, v{vT[18]}, {srd(sW2)}, s{s_t0} offen")
spf = args.spf.split()
if spf: spf_op(spf.pop(0))
for x in common + S2: A(x)
A(f"s_mov_b32 s{s_flagP}, 0")
A(f"s_cmp_lg_u32 s{sW}, 0")
A("s_cbranch_scc1 L_spare2")
A(f"v_and_b32 v{vT[12]}, 15, v{v_lane}")
A(f"v_min_u32 v{vT[12]}, 13, v{vT[12]}")
A(f"v_lshlrev_b32 v{vT[12]}, 7, v{vT[12]}")
A(f"s_mov_b32 s{s_t0}, {M32S}")
A(f"v_mul_lo_u32 v{vT[13]}, v{b}, s{s_t0}")
A(f"v_add_u32 v{vT[12]}, v{vT[12]}, v{vT[13]}")
A(f"s_mul_i32 s{s_t0}, s{s_mt}, {4*M32S}\ns_mul_i32 s{s_t1}, s{s_fg}, 1792\ns_add_u32 s{s_t0}, s{s_t0}, s{s_t1}\ns_add_u32 s{s_t0}, s{s_t0}, {FLAGOFF}")
A(f"v_mov_b32 v{vT[14]}, 0")
A(f"buffer_store_dword v{vT[14]}, v{vT[12]}, {srd(sA)}, s{s_t0} offen sc1")
A("L_spare2:")
armpos = min(args.armpos, len(spf))
for k_, op in enumerate(spf + [None]):
    if k_ == armpos:
        A(f"s_cmp_lg_u32 s{sW}, 0\ns_cbranch_scc1 L_spare3\ns_waitcnt vmcnt({armpos})\ns_mov_b64 exec, 1")
        A(f"buffer_store_dword v{v_one}, v{v_armoff}, {srd(sD)}, 0 offen sc1")
        A("s_mov_b64 exec, -1\nL_spare3:")
    if op: spf_op(op)
A(f"s_mov_b32 s{sA+2}, 0")
issued = []; pend = []; known = -1
def flush_reads(upto=None):
    global known
    while pend and (upto is None or int(pend[0][2][1:]) <= upto):
        _, r, tg = pend.pop(0); p = int(tg[1:])
        if p > known:
            last = max(i for i, t_ in enumerate(issued) if t_ == f"g{p}")
            A(f"s_waitcnt vmcnt({len(issued) - 1 - last})"); known = p
        A(r)
nrec = 0
for e_ in lean:
    if e_[0] == "S": A(e_[1])
    elif e_[0] == "D": A(e_[1]); issued.append(e_[2])
    elif e_[0] == "R": pend.append(e_)
    else: flush_reads(nrec); nrec += 1; A("s_waitcnt lgkmcnt(0)")
arm_load(); issued.append("arm")
flush_reads()
A("s_waitcnt lgkmcnt(0)")
A("L_arm2:")
A("s_waitcnt vmcnt(0)")
A(f"v_cmp_eq_u32 vcc, 1, v{v_arm}")
A(f"s_add_u32 s{s_spin}, s{s_spin}, 1")
A("s_cmp_eq_u64 vcc, -1")
tgt = "L_arm2ok" if lean_poll else "L_enter2"
A(f"s_cbranch_scc1 {tgt}")
A(f"s_cmp_ge_u32 s{s_spin}, 200000")
A(f"s_cbranch_scc1 {tgt}")
arm_load()
A("s_branch L_arm2")
if lean_poll:
    A("L_arm2ok:")
    poll_issue()
    A("s_branch L_enter2")
A("L_codeend:")
tail = f""".section .rodata,"a"
.p2align 6
.amdhsa_kernel {KN}
  .amdhsa_next_free_vgpr 512
  .amdhsa_next_free_sgpr 102
  .amdhsa_accum_offset 256
  .amdhsa_group_segment_fixed_size 0
  .amdhsa_kernarg_size 56
  .amdhsa_user_sgpr_count 2
  .amdhsa_user_sgpr_kernarg_segment_ptr 1
  .amdhsa_system_sgpr_workgroup_id_x 1
.end_amdhsa_kernel"""
print(hdr); print("\n".join(L)); print(tail)
if args.stamps: print("; STAMPS: " + " ".join(stamp_names))
```

```python
import sys, argparse
ap = argparse.ArgumentParser()
I = lambda n, d: ap.add_argument("--" + n, type=int, default=d)
I("stamps", 0); I("rtst", 0); I("itst", 0); I("padwg", -1); I("padonly", -1)
I("rot", 5); I("D", 8); I("nh", 4); I("h0", 5); I("h1", 10); I("xbper", 2); I("burstA", 0); I("burstB", 0); I("w1pre", 4); I("st4", 0); I("wearly", 2); I("probe", 0); I("pubn", 99); I("jit", 0); I("pbars", 4); I("useF", 1); I("rdB", 0); I("pollfr", 9); I("pbk", 8); I("armn", 64); I("w2num", 2); I("x2pre", 4); I("xearly", 1)
I("ne", 0); I("e0", 16); I("e1", 44)
I("w2gap", 3); I("nmish", 14); I("rdmish", 4); I("flagApos", 2); I("nb", 6); I("npoll", 8)
I("depth", 9); I("tailj", 6); I("redi", 42); I("armpos", 1); I("sleep", 0); I("biasfirst", 2); I("s2pre", 16); I("s2gap", 7)
ap.add_argument("--spf", default="x1 p0 p1 x2")
ap.add_argument("--order", default="a0 a1 a2 a3 b0 b1 b2 b3 c0 c1 c2 c3 S0 S1")
ap.add_argument("--w2rot", default="none")
ap.add_argument("--outsc", default="nt")
ap.add_argument("--pad", default="")
ap.add_argument("--name", default="standalone__dense_activation_mish__prompt")
args = ap.parse_args()
KN = args.name + "_kernel"
D = args.D; NE = args.ne
BIG = D > 3
assert (D % 2 == 0 and NE <= 1) if BIG else NE <= 4

M32S = 118784; FLAGOFF = 114688; WS_SIZE = 64 * M32S; STAMP_OFF = 16 << 20
L = []
def A(s):
    for ln in s.split("\n"):
        L.append("    " + ln if not ln.endswith(":") else ln)

sW = 3
sX_, sWW, sB, sA, sL, sD, sW2 = 20, 24, 28, 32, 36, 40, 8
def srd(b): return f"s[{b}:{b+3}]"
s_mt, s_ft, s_fg, s_fl, s_m64, s_ml, s_wm, s_wf = 44, 45, 46, 47, 48, 49, 50, 51
s_nt = 19; s_bo = 18
s_ord, s_xbase, s_wbase, s_soX, s_soW, s_ld, s_so2, s_m0s = 52, 54, 55, 56, 57, 58, 59, 60
s_t2, s_t0, s_t1 = 61, 62, 63
s_wb = [64, 65, 66, 52]; s_ab = [48, 49, 50, 51]
s_actst, s_flagP, s_flagC, s_actld, s_spin, s_outb, s_xcd = 67, 68, 69, 70, 71, 72, 73
s_cl2e = 74; s_half = 76; s_so = 78; s_w2base = 79
s_pl = [53, 59, 60, 61, 44, 45, 46]
v_lane = 1
vDX = [2, 3, 4, 5]; vDW = [6, 7, 8, 9]; vD2 = [10, 11, 12, 13]
vRX = [14, 15, 16, 17]; vRX2 = [176, 177, 178, 179]; vRW = [18, 19]; vR2 = [[20, 21], [22, 23], [35, 36]]
v_l16 = 24; v_armoff = 26; v_arm = 27; v_one = 29; v_l4 = 30
v_bo = 31; v_redw = 32; v_redr = 33; v_outo = 34
vT = list(range(38, 64))
ACC = 64
def acc(mi, j): return ACC + 32 * mi + 16 * j
BIAS = 128; XF = 160; MT = 192; OUTB = MT + 24
AF = 128; NRING = 16
NS = 4 if args.st4 else 3
assert D == 8
XA = NS * 16384

stamp_names = []
stamp_regs = list(range(80, 100, 2)) + [4, 6, 16, 54, 56, 14]
def stamp(name):
    if args.pad:
        if name == "start": A("s_memrealtime s[80:81]")
        if name == args.pad: A("s_memrealtime s[82:83]")
        return
    if args.stamps != 1: return
    r = stamp_regs[len(stamp_names)]; stamp_names.append(name)
    A(f"s_mem{'real' if args.rtst else ''}time s[{r}:{r+1}]")
vmq = []; vm_known = [0]
def vm(tag): vmq.append(tag)
def lastidx(tag): return max(i for i, t in enumerate(vmq) if t == tag)
def wait_vm(tag):
    idx = lastidx(tag); n = len(vmq) - 1 - idx
    assert n <= 63, n
    A(f"s_waitcnt vmcnt({n})"); vm_known[0] = max(vm_known[0], idx + 1)
lgq = []; lg_done = [0]
def lg(ins, tag=None): A(ins); lgq.append(tag)
def wait_lg(tag):
    idx = max(i for i, t in enumerate(lgq) if t == tag)
    if idx < lg_done[0]: return
    n = min(len(lgq) - 1 - idx, 12)
    A(f"s_waitcnt lgkmcnt({n})"); lg_done[0] = max(lg_done[0], len(lgq) - n)
def wait_lg0(): A("s_waitcnt lgkmcnt(0)"); lg_done[0] = len(lgq)
lastw = {}
def pad_after(key, need):
    n = 0
    for ln in L[lastw[key] + 1:]:
        t = ln.strip()
        if t.endswith(":") or t.startswith("s_mem"): continue
        n += int(t.split()[1]) + 1 if t.startswith("s_nop") else 1
    if n < need: A(f"s_nop {need - n - 1}")

hdr = f"""; out = mish(x @ w1 + b1) @ w2     x[2048,512] w1[512,1792] b1[1792] w2[1792,512] out[2048,512], all bf16
; @launch grid=(256,1,1) block=(256,1,1) lds=163840
.amdgcn_target "amdgcn-amd-amdhsa--gfx950"
.text
.globl {KN}
.p2align 8
.type {KN},@function
{KN}:"""

for r, o in ((sX_, 0), (sWW, 8), (sB, 16)):
    A(f"s_load_dwordx2 s[{r}:{r+1}], s[0:1], {o}")
A("s_load_dwordx8 s[8:15], s[0:1], 24")
A("s_cmpk_ge_u32 s2, 256")
A("s_cbranch_scc1 L_end")
if args.stamps: A("s_memrealtime s[100:101]")
stamp("start")
a, b, c, d = vT[0], vT[1], vT[2], vT[3]
h = vT[5]; t = vT[6]; tq = vT[7]; e = vT[8]; f = vT[9]
A(f"v_lshrrev_b32 v{a}, 6, v0")
A(f"v_and_b32 v{v_lane}, 63, v0")
A(f"v_readfirstlane_b32 s{sW}, v{a}")
A(f"s_bfe_u32 s{s_fl}, s2, 0x30003")
A(f"s_mov_b32 s{sX_+3}, 0x20000")
def jitter(lbl, expr):
    A(expr); A(f"{lbl}:\ns_sleep 16\ns_sub_u32 s90, s90, 1\ns_cmp_gt_i32 s90, 0\ns_cbranch_scc1 {lbl}")
if args.jit == 1: jitter("L_j1", f"s_cmp_eq_u32 s{s_fl}, 7\ns_cselect_b32 s90, 60, 0")
if args.jit in (2, 3): jitter("L_j1", "s_memtime s[92:93]\ns_waitcnt lgkmcnt(0)\ns_mul_i32 s90, s2, 0x9e3779b1\ns_lshl_b32 s92, s92, 20\ns_add_u32 s90, s90, s92\ns_lshr_b32 s90, s90, 27")
A(f"s_cmp_lg_u32 s{s_fl}, 7")
A("s_cbranch_scc1 L_go")
A("s_getpc_b64 s[4:5]")
A("L_pcref:")
A(f"v_lshlrev_b32 v{vT[10]}, 6, v0")
A(f"v_add_co_u32 v{vT[10]}, vcc, s4, v{vT[10]}")
A(f"v_mov_b32 v{vT[11]}, s5")
A("s_nop 0")
A(f"v_addc_co_u32 v{vT[11]}, vcc, 0, v{vT[11]}, vcc")
assert vT[10] % 2 == 0
A(f"global_load_dword v{vT[24]}, v[{vT[10]}:{vT[11]}], off")
A("s_branch L_spare")
A("L_go:")
ids = [f"s_and_b32 s{s_fg}, s2, 1", f"s_lshr_b32 s{s_ml}, s2, 6", f"s_and_b32 s{s_mt}, s2, 6", f"s_lshl1_add_u32 s{s_mt}, s{s_mt}, s{s_ml}",
       f"s_lshl_b32 s{s_ld}, s{sW}, 12", f"v_lshrrev_b32 v{a}, 3, v{v_lane}", f"v_lshrrev_b32 v{b}, 4, v{v_lane}", f"v_and_b32 v{c}, 7, v{v_lane}"]
for x in ids: A(x)
A(f"s_lshl_b32 s{sX_+2}, s{sX_+3}, 4")
A(f"s_and_b32 s{s_t0}, s{sW}, 2\ns_add_u32 s{s_t0}, s{s_t0}, s{sW}\ns_lshl3_add_u32 s{s_xbase}, s{s_mt}, s{s_t0}\ns_lshl_b32 s{s_xbase}, s{s_xbase}, 14")
A(f"s_mul_i32 s{s_ft}, s{s_fg}, 7")
A(f"s_add_u32 s{s_ft}, s{s_ft}, s{s_fl}")
A(f"s_add_u32 s{s_t0}, s{s_ml}, s{s_fl}\ns_and_b32 s{s_t0}, s{s_t0}, 1")
A(f"s_lshr_b32 s{s_t1}, s2, 1\ns_xor_b32 s{s_t1}, s{s_t1}, s2\ns_and_b32 s{s_t1}, s{s_t1}, 1")
A(f"s_lshl1_add_u32 s{s_t0}, s{s_t0}, s{s_t1}\ns_lshl_b32 s{s_t2}, s{s_t0}, 1")
A(f"s_mul_i32 s{s_wbase}, s{sW}, 224\ns_add_u32 s{s_wbase}, s{s_wbase}, s{s_ft}\ns_lshl_b32 s{s_wbase}, s{s_wbase}, 8")
A(f"v_xor_b32 v{d}, v{c}, v{b}")
A(f"v_lshlrev_b32 v{d}, 4, v{d}")
A(f"v_lshl_add_u32 v{vDX[0]}, v{a}, 10, v{d}")
A(f"v_xor_b32 v{d}, 64, v{vDX[0]}")
A(f"v_add_u32 v{vDX[1]}, 7168, v{d}")
dx23 = [f"v_add_u32 v{vDX[2]}, 30720, v{vDX[0]}", f"v_add_u32 v{vDX[3]}, 30720, v{vDX[1]}"]
if D < 8:
    for x in dx23: A(x)
A(f"v_and_b32 v{e}, 15, v{v_lane}")
A(f"v_lshlrev_b32 v{vT[4]}, 2, v{b}")
A(f"v_xor_b32 v{d}, v{e}, v{vT[4]}")
A(f"v_mul_u32_u24 v{vT[4]}, 224, v{b}")
A(f"v_add_lshl_u32 v{vDW[0]}, v{vT[4]}, v{d}, 4")
for i in range(1, 4): A(f"v_add_u32 v{vDW[i]}, {i*(4*3584-1024)}, v{vDW[0]}")
A(f"s_mul_i32 s{sWW+2}, s{sX_+3}, 14\ns_mov_b32 s{sWW+3}, s{sX_+3}")
kcur = [0]
def soffX(j):
    x = kcur[0] ^ j; kcur[0] = j
    return (f"s_xor_b32 s{s_t2}, s{s_t2}, {x}\n" if x else "") + f"s_lshl_b32 s{s_soX}, s{s_t2}, 7\ns_add_u32 s{s_soX}, s{s_soX}, s{s_xbase}"
def soffW(): return f"s_mul_i32 s{s_soW}, s{s_t2}, 229376\ns_add_u32 s{s_soW}, s{s_soW}, s{s_wbase}"
def dma(vo, srdb, so, i): return f"buffer_load_dwordx4 v{vo}, {srd(srdb)}, s{so} offen offset:{1024*i} lds"
def m0row(r): return f"s_add_u32 m0, s{s_ld}, {r * 16384}" if r else f"s_mov_b32 m0, s{s_ld}"

deferred = lambda ch: ch >= 8 - D
def xslot(ch, mi):
    if not BIG: return 3 + ch % 3, mi
    return (NS + 2 + ch // 2, ch & 1) if mi else (NS + (ch % 4) // 2, ch & 1)
def m0x(ch, mi):
    r, hf = xslot(ch, mi)
    return f"s_add_u32 m0, s{s_ld}, {r * 16384 + (hf - mi) * 2048}"
barorder = [f"B{i}" for i in range(8)] + [f"P{i}" for i in range(4)] + ["F"]
if not BIG:
    fr_ = []
    for ch in (5, 6, 7):
        nb_ = f"B{ch+1}" if ch < 7 else ("P0" if D else "F")
        fr_.append((ch % 3, nb_)); fr_.append((3 + ch % 3, "F" if deferred(ch) or ch == 7 else nb_))
    fr_.sort(key=lambda x: barorder.index(x[1]))
    rowinfo = [(6 + i, "") for i in range(4)] + fr_
else:
    fr_ = [(2, "B6"), (3, "B6"), (0, "B7"), (1, "P0"), (4, "P0")] if NS == 3 else [(0, "B5"), (1, "B6"), (4, "B6"), (2, "B7"), (3, "P0"), (5, "P0")]
    for j in range(4):
        k_ = j - (4 - D // 2)
        PS = 4 // args.pbars
        nxtb = (k_ // PS + 1) * PS
        fr_.append((NS + 2 + j, f"B{2*j+2}" if k_ < 0 else (f"P{nxtb}" if nxtb < D // 2 else "F")))
    fr_.sort(key=lambda x: barorder.index(x[1]))
    rowinfo = ([(9, "")] if NS == 3 else []) + fr_
rows = {}; fresh = list(rowinfo); recycled = set(); w2log = []
passed = set([""])
def gaddr(dst, p): return f"s_add_u32 s{dst}, s{s_w2base}, {p * 32768}"
stream = []
for j in range(8):
    rq = f"B{j-2}" if j > 2 else ""
    for i in range(2 if deferred(j) else 4):
        pre = None
        if i == 0: pre = m0x(j, 0) + "\n" + soffX(j)
        if i == 2 and BIG: pre = m0x(j, 1) + "\ns_nop 0"
        rqx = (f"B{j-3}" if j > 3 else "") if BIG and args.xearly else rq
        stream.append((pre, dma(vDX[i], sX_, s_soX, i), f"c{j}", rqx))
    for i in range(4):
        rqw = (f"B{j-3}" if j > 3 else "") if NS == 4 and i < args.wearly else rq
        stream.append(((m0row(j % NS) + "\n" + soffW()) if i == 0 else None, dma(vDW[i], sWW, s_soW, i), f"c{j}", rqw))
for j in range(8 - D, 8):
    for i in (2, 3):
        stream.append(((m0x(j, 1) + "\n" + soffX(j)) if i == 2 else None, dma(vDX[i], sX_, s_soX, i), f"x{(j - 8 + D) // 2 // PS * PS if BIG else 0}", ""))
assert NE == 0
stream += [("G" if i == 0 else None, dma(vD2[i], sW2, s_soX, i), f"g{p}", "") for p in range(14) for i in range(4)]
early = [(p, i) for p in range(NE) for i in range(4)]
esteps = [args.e0 + (k * (args.e1 - args.e0)) // max(1, len(early) - 1) for k in range(len(early))]
assert len(set(esteps)) == len(esteps)
def pick_row(force=False):
    for r in fresh:
        if r[1] in passed: return ("f", r)
    src = len(recycled)
    if force or (nextp[0] > src and not any(tg == f"q{src}" for _, tg in rq)): return ("r", src)
    return None
def can_issue():
    if not stream: return False
    if stream[0][2][0] == "g" and len(stream) <= args.npoll: return False
    if stream[0][0] == "G": return pick_row() is not None
    return stream[0][3] in passed
def pre_next():
    p, i_, tg, rq_ = stream[0]
    if p == "G":
        g = int(tg[1:]); kind, x = pick_row(force=True)
        if kind == "f": fresh.remove(x); rows[g] = x[0]
        else: need_pos(x); recycled.add(x); rows[g] = rows[x]; w2log.append(("L",))
        p = m0row(rows[g]) + "\n" + gaddr(s_soX, g)
        w2log.append(("S", p))
    if p: A(p); stream[0] = (None, i_, tg, rq_)
def dma_next():
    pre_next()
    p, i_, tg, rq_ = stream.pop(0)
    assert rq_ in passed, (tg, rq_)
    A(i_); vm(tg)
    if tg[0] == "g": w2log.append(("D", i_, tg))
dma_next2 = dma_next

pre_next()
def bias_addr():
    A(f"s_movk_i32 s{sB+2}, 3584\ns_mov_b32 s{sB+3}, s{sX_+3}")
    A(f"v_lshlrev_b32 v{v_bo}, 1, v{v_lane}")
    A(f"s_lshr_b32 s{s_bo}, s{sW}, 1\ns_lshl1_add_u32 s{s_bo}, s{s_ft}, s{s_bo}\ns_lshl_b32 s{s_bo}, s{s_bo}, 7")
def bias_load():
    A(f"buffer_load_ushort v{BIAS}, v{v_bo}, {srd(sB)}, s{s_bo} offen"); vm("c0")
if args.biasfirst == 1: bias_addr()
A("s_waitcnt lgkmcnt(0)")
if args.biasfirst == 1: bias_load()
for i in range(8 + args.w1pre):
    dma_next()
    if i == 4 and args.biasfirst == 2: bias_addr(); bias_load()
if args.probe:
    stamp("iss")
    A("s_waitcnt vmcnt(8)"); stamp("x0")
    A("s_waitcnt vmcnt(2)"); stamp("c0")
common = [f"v_lshrrev_b32 v{h}, 5, v{v_lane}", f"v_and_b32 v{d}, 1, v{b}", f"v_bfe_u32 v{tq}, v{v_lane}, 2, 2",
          f"v_and_b32 v{vT[4]}, 3, v{v_lane}", f"v_lshlrev_b32 v{vT[4]}, 3, v{vT[4]}", f"v_lshl_add_u32 v{vT[4]}, v{d}, 5, v{vT[4]}",
          f"s_and_b32 s{s_wm}, s{sW}, 1", f"s_lshr_b32 s{s_wf}, s{sW}, 1"]
for x in common: A(x)
A(f"s_lshl_b32 s{s_t0}, s{s_wm}, 13\ns_add_u32 s{s_t0}, s{s_t0}, {XA}")
A(f"v_lshl_add_u32 v{e}, v{e}, 7, s{s_t0}")
A(f"v_lshl_add_u32 v{e}, v{d}, 12, v{e}")
A(f"v_bfe_u32 v{f}, v{v_lane}, 1, 3")
A(f"v_xor_b32 v{f}, v{f}, v{h}")
A(f"v_lshl_add_u32 v{vRX[0]}, v{f}, 4, v{e}")
for s in range(1, 4): A(f"v_xor_b32 v{vRX[s]}, {32*s}, v{vRX[0]}")
A(f"v_lshl_add_u32 v{f}, v{h}, 3, v{tq}")
A(f"v_lshl_add_u32 v{f}, v{f}, 8, v{vT[4]}")
A(f"s_and_b32 s{s_t0}, s{sW}, 2")
A(f"v_xor_b32 v{t}, s{s_t0}, v{tq}")
A(f"v_lshl_add_u32 v{vRW[0]}, v{t}, 6, v{f}")
A(f"v_xor_b32 v{vRW[1]}, 64, v{vRW[0]}")
if not args.biasfirst: bias_addr()
A(f"v_mul_u32_u24 v{BIAS+8}, 0x3f80, v{h}")
A(f"v_xor_b32 v{BIAS+4}, 0x3f80, v{BIAS+8}")
for i in (1, 2, 3, 5, 6, 7, 9, 10, 11): A(f"v_mov_b32 v{BIAS+i}, 0")

W2SRD = ["s_mov_b64 s[64:65], s[10:11]", f"s_mov_b32 s{sW2+2}, 1835008", f"s_mov_b32 s{sW2+3}, s{sX_+3}"]
S2 = f"""s_mov_b32 s{sB+3}, s{sX_+3}
s_mov_b64 s[{sD}:{sD+1}], s[12:13]
s_mov_b64 s[{sA}:{sA+1}], s[14:15]
s_mov_b64 s[{sL}:{sL+1}], s[14:15]
s_mov_b32 s{sA+2}, {WS_SIZE}
s_mov_b32 s{sA+3}, s{sX_+3}
s_mov_b32 s{sL+2}, s{sA+2}
s_mov_b32 s{sL+3}, s{sX_+3}
s_movk_i32 s{sD+2}, 256
s_mov_b32 s{sD+3}, s{sX_+3}
s_and_b32 s{s_xcd}, s2, 7
s_xor_b32 s{s_nt}, s{s_fl}, 4
s_lshl2_add_u32 s{s_m64}, s{s_xcd}, s{s_ml}
v_lshlrev_b32 v{e}, 2, v{d}
v_xor_b32 v{e}, v{c}, v{e}
v_lshlrev_b32 v{e}, 4, v{e}
v_lshl_add_u32 v{vD2[0]}, v{a}, 10, v{e}
v_add_u32 v{vD2[1]}, 7168, v{vD2[0]}
v_add_u32 v{vD2[2]}, 14336, v{vD2[0]}
v_add_u32 v{vD2[3]}, 21504, v{vD2[0]}
v_lshl_add_u32 v{f}, v{h}, 2, v{tq}
v_lshl_add_u32 v{f}, v{f}, 7, v{vT[4]}
v_bfe_u32 v{t}, v{v_lane}, 3, 1
v_lshl_add_u32 v{f}, v{t}, 6, v{f}
v_add_u32 v{vR2[0][0]}, s{s_ld}, v{f}
v_xor_b32 v{vR2[0][1]}, 64, v{vR2[0][0]}
v_add_u32 v{vR2[1][0]}, 65536, v{vR2[0][0]}
v_add_u32 v{vR2[1][1]}, 65536, v{vR2[0][1]}
v_add_u32 v{vR2[2][0]}, 131072, v{vR2[0][0]}
v_add_u32 v{vR2[2][1]}, 131072, v{vR2[0][1]}
v_lshlrev_b32 v{v_l16}, 4, v{v_lane}
v_mov_b32 v{v_one}, 1
v_lshlrev_b32 v{v_l4}, 2, v{v_lane}
s_lshl1_add_u32 s{s_t0}, s{s_mt}, s{s_fg}
s_lshl_b32 s{s_t0}, s{s_t0}, 2
s_and_b32 s{s_t1}, s{s_m64}, 30
s_add_u32 s{s_t1}, s{s_t1}, s{s_wf}
s_lshl_b32 s{s_t1}, s{s_t1}, 2
s_sub_u32 s{s_t1}, s{s_t1}, s{s_t0}
v_mul_lo_u32 v{v_armoff}, v{h}, s{s_t1}
v_add_u32 v{v_armoff}, s{s_t0}, v{v_armoff}
v_and_b32 v{e}, 15, v{v_lane}
v_lshl_add_u32 v{e}, v{e}, 8, s{s_ld}
v_lshl_add_u32 v{e}, v{d}, 14, v{e}
v_xor_b32 v{f}, v{c}, v{h}
v_lshl_add_u32 v{v_redw}, v{f}, 4, v{e}
s_lshl_b32 s{s_t0}, s{s_wf}, 14
s_lshl_b32 s{s_t1}, s{s_wm}, 11
s_add_u32 s{s_t0}, s{s_t0}, s{s_t1}
v_lshl_add_u32 v{e}, v{a}, 8, s{s_t0}
v_lshlrev_b32 v{f}, 1, v{c}
v_xor_b32 v{f}, v{f}, v{a}
v_lshl_add_u32 v{v_redr}, v{f}, 4, v{e}
v_lshlrev_b32 v{e}, 4, v{c}
v_lshl_add_u32 v{v_outo}, v{a}, 10, v{e}
s_mul_i32 s{s_w2base}, s{sW}, 3584
s_add_u32 s{s_w2base}, s{s_w2base}, s{s_nt}
s_lshl_b32 s{s_w2base}, s{s_w2base}, 7""".split("\n")
S2 += f"""s_mul_i32 s{s_t0}, s{s_m64}, {2*M32S}
s_mul_i32 s{s_flagC}, s{sW}, 896
s_add_u32 s{s_flagC}, s{s_flagC}, s{s_t0}
s_add_u32 s{s_flagC}, s{s_flagC}, {FLAGOFF}
s_mul_i32 s{s_actld}, s{sW}, 28672
s_add_u32 s{s_actld}, s{s_actld}, s{s_t0}
s_lshl3_add_u32 s{s_outb}, s{s_m64}, s{sW}
s_lshl_b32 s{s_outb}, s{s_outb}, 6
s_add_u32 s{s_outb}, s{s_outb}, s{s_nt}
s_lshl_b32 s{s_outb}, s{s_outb}, 7
s_mov_b32 s{s_spin}, 0""".split("\n")
S2p = f"""s_lshl1_add_u32 s{s_t0}, s{s_mt}, s{s_wm}
s_mul_i32 s{s_t0}, s{s_t0}, {2*M32S}
s_lshl_b32 s{s_actst}, s{s_bo}, 5
s_add_u32 s{s_actst}, s{s_actst}, s{s_t0}
s_add_u32 s{s_flagP}, s{s_bo}, s{s_t0}
s_add_u32 s{s_flagP}, s{s_flagP}, {FLAGOFF}
s_mov_b32 s{s_cl2e}, 0xbfb8aa3b
s_mov_b32 s{s_cl2e+1}, s{s_cl2e}
s_mov_b32 s{s_half}, 0.5
s_mov_b32 s{s_half+1}, 0.5""".split("\n")
s2q = W2SRD + S2[1:] + S2p + (dx23 if D == 8 else [])
if BIG:
    rx2 = [f"v_add_u32 v{vRX2[s]}, 32768, v{vRX[s]}" for s in range(4)]
    if D == 8: s2q += rx2
    else:
        for x in rx2: A(x)
def emit_s2(k):
    for _ in range(k):
        if s2q: A(s2q.pop(0))
emit_s2(args.s2pre)
stamp("setup")
if not args.biasfirst: bias_load()
while stream[0][2] == "c1": dma_next()
if deferred(0):
    for i in range(args.x2pre): dma_next()

seq = []
for ch in range(8):
    for s in range(4):
        seq.append((ch, 0, s))
        if not deferred(ch): seq.append((ch, 1, s))
nA = len(seq)
for ch in range(8 - D, 8): seq += [(ch, 1, s) for s in range(4)]
assert len(seq) == 64
def xf(n): return XF + 4 * (n % 4)
def rd_x(n):
    ch, mi, s = seq[n]
    r, hf = xslot(ch, mi)
    va, r0 = (vRX2[s], NS + 2) if BIG and mi else (vRX[s], NS)
    lg(f"ds_read_b128 v[{xf(n)}:{xf(n)+3}], v{va} offset:{(r - r0)*16384 + 2048*hf}", f"x{n}")
def rd_w(n, fi):
    ch, mi, s = seq[n]
    if mi: return
    for a_ in range(2):
        r = (ch * 4 + s) * 8 + 4 * fi + 2 * a_
        lg(f"ds_read_b64_tr_b16 a[{r}:{r+1}], v{vRW[fi]} offset:{(ch % NS)*16384+4096*s+1024*a_}", f"w{n}_{fi}")
def mfma1(n, fi):
    ch, mi, s = seq[n]
    Dr = acc(mi, fi); wr = (ch * 4 + s) * 8 + 4 * fi
    C = f"v[{Dr}:{Dr+15}]"
    A(f"v_mfma_f32_32x32x16_bf16 v[{Dr}:{Dr+15}], a[{wr}:{wr+3}], v[{xf(n)}:{xf(n)+3}], {C}"); lastw[(mi, fi)] = len(L) - 1
def mfma_bias(mi, fi):
    Dr = acc(mi, fi)
    A(f"v_mfma_f32_32x32x16_bf16 v[{Dr}:{Dr+15}], v[{BIAS}:{BIAS+3}], v[{BIAS+4+4*fi}:{BIAS+7+4*fi}], 0")
P = lambda r: f"v[{r}:{r+1}]"
def mish_pk(k):
    hb = ACC + 8 * k; ob = OUTB + 4 * k
    U, N, Dd = MT, MT + 8, MT + 16
    o = [f"v_pk_mul_f32 {P(U+2*p)}, {P(hb+2*p)}, s[{s_cl2e}:{s_cl2e+1}]" for p in range(4)]
    o += [f"v_exp_f32 v{U+i}, v{U+i}" for i in range(8)]
    o += [f"v_pk_add_f32 {P(N+2*p)}, {P(U+2*p)}, s[{s_half}:{s_half+1}]" for p in range(4)]
    o += [f"v_pk_fma_f32 {P(Dd+2*p)}, {P(U+2*p)}, {P(U+2*p)}, {P(N+2*p)}" for p in range(4)]
    o += [f"v_rcp_f32 v{Dd+i}, v{Dd+i}" for i in range(8)]
    o += [f"v_pk_mul_f32 {P(N+2*p)}, {P(N+2*p)}, {P(Dd+2*p)} clamp" for p in range(4)]
    o += [f"v_pk_mul_f32 {P(N+2*p)}, {P(N+2*p)}, {P(hb+2*p)}" for p in range(4)]
    o += [f"v_cvt_pk_bf16_f32 v{ob+p}, v{N+2*p}, v{N+2*p+1}" for p in range(4)]
    return o
def st_act(k):
    ob = OUTB + 4 * k
    if k == 4: A(f"s_add_u32 s{s_actst}, s{s_actst}, {M32S}")
    A(f"buffer_store_dwordx4 v[{ob}:{ob+3}], v{v_l16}, {srd(sA)}, s{s_actst} offen offset:{1024*(k & 3)} sc1"); vm(f"st{k >> 2}")
def arm_load(): A(f"buffer_load_dword v{v_arm}, v{v_armoff}, {srd(sD)}, 0 offen sc1")
NH = args.nh if D else 0
mA = []
U, N, Dd = MT, MT + 8, MT + 16
stg = [lambda i: (f"v_mul_f32 v{U+i%8}, s{s_cl2e}, v{ACC+i}", 4), lambda i: (f"v_exp_f32 v{U+i%8}, v{U+i%8}", 8),
       lambda i: (f"v_add_f32 v{N+i%8}, 0.5, v{U+i%8}", 4), lambda i: (f"v_fma_f32 v{Dd+i%8}, v{U+i%8}, v{U+i%8}, v{N+i%8}", 5),
       lambda i: (f"v_rcp_f32 v{Dd+i%8}, v{Dd+i%8}", 8), lambda i: (f"v_mul_f32 v{N+i%8}, v{N+i%8}, v{Dd+i%8} clamp", 5),
       lambda i: (f"v_mul_f32 v{N+i%8}, v{N+i%8}, v{ACC+i}", 4),
       lambda i: (f"v_cvt_pk_bf16_f32 v{OUTB+i//2}, v{N+(i-1)%8}, v{N+i%8}", 5) if i & 1 else None]
for tt in range(8 * NH + 7 if NH else 0):
    for k in (7, 1, 6, 5, 3, 4, 2, 0):
        i = tt - k
        if 0 <= i < 8 * NH and stg[k](i):
            if mA and mA[-1][0].startswith(("v_exp", "v_rcp")) and mA[-1][0].split()[1].rstrip(",") in [z.strip(",") for z in stg[k](i)[0].split()[2:]]:
                mA.append(("s_nop 0", 4))
            mA.append(stg[k](i))
            if k == 7 and i % 8 == 7:
                fr = i // 8
                if args.burstA == 0: mA.append(("ST", fr))
                elif args.burstA == 1 and fr == NH - 1: mA += [("ST", q) for q in range(NH)]
                elif args.burstA == 2 and fr & 1: mA += [("ST", fr - 1), ("ST", fr)]
totA = sum(c_ for i_, c_ in mA if i_ != "ST"); doneA = [0]
g0 = 2 * nA + args.h0 - 1; ngaps = 128 - g0 - args.h1
def mishA_gap(g):
    if g < g0 or not mA: return
    if g == g0: pad_after((0, 0), 12)
    target = totA * (g - g0 + 1) / ngaps
    while mA and (doneA[0] < target - 2 or mA[0][0] == "ST"):
        i_, c_ = mA.pop(0)
        if i_ == "ST": st_act(c_)
        else: A(i_); doneA[0] += c_

def w2_reads(p):
    out = []; r_ = rows[p]
    for i in range(4):
        j = 4 * p + i; ks, a_ = j >> 1, j & 1
        for ni in range(2):
            r = (ks * 2 + ni) * 4 + 2 * a_
            out.append(f"ds_read_b64_tr_b16 a[{r}:{r+1}], v{vR2[r_ >> 2][ni]} offset:{(r_ & 3)*16384+1024*i}")
    return out
maxp = [-1]
nextp = [0]; rq = []
def queue_pos(force=False, age=12):
    p = nextp[0]
    if p >= 14 or p > maxp[0] or vmq.count(f"g{p}") < 4: return False
    last = lastidx(f"g{p}")
    if last >= vm_known[0]:
        if not force and len(vmq) - 1 - last < age: return False
        wait_vm(f"g{p}")
    rq.extend((r, f"q{p}") for r in w2_reads(p)); nextp[0] += 1
    return True
def fill(k, age=12):
    for _ in range(k):
        if not rq and not queue_pos(age=age): return
        r, tg = rq.pop(0); lg(r, tg); w2log.append(("R", r, tg))
def need_pos(p):
    while nextp[0] <= p: assert queue_pos(force=True)
    while any(tg == f"q{p}" for _, tg in rq):
        r, tg = rq.pop(0); lg(r, tg); w2log.append(("R", r, tg))
    wait_lg(f"q{p}")
def flag(stage):
    if stage == 1: A(f"s_add_u32 s{s_flagP}, s{s_flagP}, {M32S}")
    A("s_mov_b32 exec_hi, 0")
    A(f"buffer_store_dword v{v_one}, v{v_l4}, {srd(sA)}, s{s_flagP} offen sc1")
    A("s_mov_b32 exec_hi, -1")
def poll_issue():
    for i in range(7): A(f"s_buffer_load_dword s{s_pl[i]}, {srd(sL)}, s{s_flagC} offset:{128*i} glc")
cold = []
def spin_check(lbl, reissue, pre=None):
    A(f"{lbl}:")
    if lbl != "L_arm":
        wait_lg0()
        for i in range(1, 7): A(f"s_and_b32 s{s_pl[0]}, s{s_pl[0]}, s{s_pl[i]}")
    else:
        A(f"v_cmp_eq_u32 vcc, 1, v{v_arm}"); A("s_nop 0"); A("s_cmp_eq_u64 vcc, -1")
    A(f"s_cbranch_scc0 {lbl}_slow")
    A(f"{lbl}_ok:")
    cold.append((lbl, reissue, pre))
def pubA():
    wait_vm(max(("arm", "st0"), key=lastidx))
    spin_check("L_arm", arm_load)
    flag(0); vm("flagA")
    stamp("flagA")
pre_next()
wait_vm("c0")
stamp("c0_land")
A("s_barrier"); passed.add("B0")
mfma_bias(0, 0)
for n in range(2): rd_x(n); rd_w(n, 0); rd_w(n, 1)
mfma_bias(0, 1); emit_s2(args.s2gap); mfma_bias(1, 0); emit_s2(args.s2gap); mfma_bias(1, 1)
if not deferred(0): dma_next(); dma_next()
nbar = [0]
for n in range(64):
    nx = n + 2
    ch, mi, s = seq[n]
    bar = None
    if nx < nA and seq[nx][1:] == (0, 0): bar = (f"B{seq[nx][0]}", f"c{seq[nx][0]}")
    if nA <= nx < 64 and (nx == nA or (BIG and (nx - nA) % (8 * PS) == 0)): bar = (f"P{(nx-nA)//8}", f"x{(nx-nA)//8}")
    if nx == 64 and args.useF: bar = ("F", None)
    wait_lg(f"x{n}" if mi else f"w{n}_0")
    mfma1(n, 0)
    if bar:
        if bar[1]:
            while any(e_[2] == bar[1] for e_ in stream): dma_next()
            if args.itst: A("s_memtime s[4:5]")
            wait_vm(bar[1])
        if args.itst: A("s_memtime s[6:7]")
        wait_lg0()
        if args.itst: A(f"v_writelane_b32 v60, s4, {nbar[0]}\nv_writelane_b32 v61, s6, {nbar[0]}"); nbar[0] += 1
        A("s_barrier"); passed.add(bar[0])
    def loads(g):
        if not can_issue(): return
        kind = stream[0][2][0]
        if BIG and kind == "x": ok = args.xbper == 2 or g & 1 == 0
        elif n >= nA or (BIG and kind == "g"): ok = g % args.w2gap < args.w2num
        elif deferred(ch): ok = True
        else: ok = g & 1
        if ok: dma_next2()
    if nx < 64: rd_x(nx); rd_w(nx, 0)
    mishA_gap(2 * n)
    emit_s2(args.s2gap)
    if n in esteps:
        assert not s2q
        p, i = early.pop(0)
        A(f"s_mov_b32 s{s_m0s}, m0"); A(m0row(rows[p]))
        A(gaddr(s_so2, p) if i == 0 else "s_nop 0")
        A(dma(vD2[i], sW2, s_so2, i)); vm(f"g{p}")
        A(f"s_mov_b32 m0, s{s_m0s}")
    else: loads(2 * n)
    if can_issue(): pre_next()
    if not mi: wait_lg(f"w{n}_1")
    mfma1(n, 1)
    if nx < 64: rd_w(nx, 1)
    if n == nA - 1: stamp("pAdone")
    if n == args.armn: arm_load(); vm("arm")
    if n == args.pubn:
        assert vmq.count("st0") == 4
        pubA(); args.flagApos = -9
    if D == 8 and n >= nA and args.rdB:
        maxp[0] = 2 * ((n + 1 - nA) // 4) - 1
        fill(args.rdB)
    mishA_gap(2 * n + 1)
    emit_s2(args.s2gap)
    loads(2 * n + 1)
assert not early and not mA
stamp("p1done")
if args.jit == 3: jitter("L_j2", "s_memtime s[92:93]\ns_waitcnt lgkmcnt(0)\ns_mul_i32 s90, s92, 0x9e3779b1\ns_lshr_b32 s90, s90, 28")
maxp[0] = 13

if args.armn >= 64: arm_load(); vm("arm")
nfr = 8 - NH
nm = args.nmish
slotset = set(int((k + 0.5) * 40 * nfr / nm) for k in range(nm)) if nm else set()
for k_ in range(NH, 8):
    if k_ == 4 + args.flagApos: pubA()
    if k_ == 4 + args.pollfr:
        assert args.pollfr >= args.flagApos
        poll_issue()
    pad_after((k_ >> 2, (k_ >> 1) & 1), 12)
    for n, ins in enumerate(mish_pk(k_)):
        A(ins)
        if (k_ - NH) * 40 + n in slotset and len(stream) > args.npoll: dma_next2()
        if k_ >= 4 and n % 4 == 1 and (rq or nextp[0] < args.rdmish): fill(1, 16)
    if k_ < 4 or args.burstB == 0: st_act(k_)
    elif args.burstB == 2 and k_ & 1: st_act(k_ - 1); st_act(k_)
    elif args.burstB == 1 and k_ == 7:
        if args.flagApos == 4: pubA(); args.flagApos = -1
        for q in range(4, 8): st_act(q)
    if k_ == 3 and NH < 4: stamp("mish0")
stamp("mish1")
if args.jit == 3: jitter("L_j3", "s_memtime s[92:93]\ns_waitcnt lgkmcnt(0)\ns_mul_i32 s90, s92, 0x9e3779b1\ns_lshr_b32 s90, s90, 28")
if args.flagApos >= 4: pubA()
A("L_enter2:")
lean = list(w2log)
lean_poll = args.pollfr < 4
polled = len(stream) <= args.npoll or lean_poll
if polled and not lean_poll: poll_issue()
k = 0; flagB_done = False
def maybe_flagB():
    global flagB_done
    if not flagB_done and k >= args.nb:
        wait_vm("st1"); flag(1); vm("flagB"); flagB_done = True
        stamp("flagB")
while stream:
    dma_next2(); k += 1; maybe_flagB(); fill(4)
    if len(stream) == args.npoll and not polled: poll_issue(); polled = True
if not flagB_done: A(f"s_mov_b32 s{s_t1}, 0")
stamp("w2iss")
spin_check("L_pollA", poll_issue, pre=None if flagB_done else "B")
stamp("pollA")
DEP = args.depth; NF = 56
assert DEP < NRING
def af(i): return AF + 4 * (i % NRING)
def act_load(i):
    global k
    mi, ks = divmod(i, 28)
    if i == 28:
        spin_check("L_pollB", poll_issue)
    if ks % 4 == 0: A(f"s_add_u32 s{s_so}, s{s_actld}, {mi*M32S + ks*1024}")
    A(f"buffer_load_dwordx4 v[{af(i)}:{af(i)+3}], v{v_l16}, {srd(sL)}, s{s_so} offen offset:{(ks%4)*1024} sc1"); vm(f"a{i}")
    k += 1; maybe_flagB()
for i in range(DEP): act_load(i); fill(6)
PB = 28 - DEP - args.pbk
redw = [(ni, g) for ni in range(2) for g in range(4)]
R = 192
def red_reads(mi, base):
    return [f"ds_read_b128 v[{base+8*src+4*e_}:{base+8*src+4*e_+3}], v{[v_redr, vT[4]][e_]} offset:{src*4096 + 32768*mi}" for src in range(4) for e_ in range(2)]
def out_store(b_): A(f"buffer_store_dwordx4 v[{b_+8}:{b_+11}], v{v_outo}, {srd(sB)}, s{s_outb} offen {args.outsc}")
side = []; TJ = args.tailj
def p2mfma(i, ni):
    mi, ks = divmod(i, 28)
    Dr = acc(mi, ni); wr = (ks * 2 + ni) * 4
    C = "0" if ks == 0 else f"v[{Dr}:{Dr+15}]"
    A(f"v_mfma_f32_32x32x16_bf16 v[{Dr}:{Dr+15}], a[{wr}:{wr+3}], v[{af(i)}:{af(i)+3}], {C}"); lastw[(mi, ni)] = len(L) - 1
def redwr(mi, ni, g):
    pad_after((mi, ni), 12)
    r = acc(mi, ni) + 4 * g
    A(f"ds_write_b128 v{v_redw if g == 0 else vT[g]}, v[{r}:{r+3}] offset:{32768*mi+128*ni}")
for i in range(NF):
    mi, ks = divmod(i, 28)
    wait_vm(f"a{i}")
    if i == 0: stamp("a0")
    if mi == 0 and ks % 2 == 0: need_pos(ks >> 1)
    for ni in range(2 if i < NF - TJ else 1):
        p2mfma(i, ni); fill(2)
        for _ in range(3):
            if side: A(side.pop(0))
    if i == PB:
        A(f"s_add_u32 s{s_flagC}, s{s_flagC}, {M32S}"); poll_issue()
    if i + DEP < NF: act_load(i + DEP)
    if i == 26:
        for gg in range(1, 4): A(f"v_xor_b32 v{vT[gg]}, {32*gg}, v{v_redw}")
        A(f"s_mov_b64 s[{sB}:{sB+1}], s[64:65]\ns_mov_b32 s{sB+2}, 2097152")
        A(f"v_xor_b32 v{vT[4]}, 16, v{v_redr}")
    if mi == 1 and 3 <= ks < 11: redwr(0, *redw[ks - 3])
    if i == args.redi:
        A("s_waitcnt lgkmcnt(0)"); A("s_barrier"); side = red_reads(0, R)
    if i == args.redi + 3:
        A("s_waitcnt lgkmcnt(0)")
        side = [f"v_add_f32 v{R+j}, v{R+j}, v{R+8+j}" for j in range(8)] + [f"v_add_f32 v{R+16+j}, v{R+16+j}, v{R+24+j}" for j in range(8)]
        side += [f"v_add_f32 v{R+j}, v{R+j}, v{R+16+j}" for j in range(8)] + [f"v_cvt_pk_bf16_f32 v{R+8+p}, v{R+2*p}, v{R+2*p+1}" for p in range(4)]
    if i == args.redi + 9:
        assert not side and i + DEP >= NF - 1
        out_store(R); vm("o")
        A(f"s_add_u32 s{s_outb}, s{s_outb}, 32768")
assert flagB_done and not stream
wl = list(range(4))
for j, i in enumerate(range(NF - TJ, NF)):
    p2mfma(i, 1)
    if j == 0: A("s_nop 4")
    if j >= 1 and wl and j < TJ - 1: redwr(1, 0, wl.pop(0))
stamp("p2done")
while wl: redwr(1, 0, wl.pop(0))
for g in range(4): redwr(1, 1, g)
A("s_waitcnt lgkmcnt(0)")
A("s_barrier")
b_ = 160
for r in red_reads(1, b_): A(r)
A("s_waitcnt lgkmcnt(4)")
for p in range(4): A(f"v_pk_add_f32 {P(b_+2*p)}, {P(b_+2*p)}, {P(b_+8+2*p)}")
A("s_waitcnt lgkmcnt(0)")
for p in range(4): A(f"v_pk_add_f32 {P(b_+16+2*p)}, {P(b_+16+2*p)}, {P(b_+24+2*p)}")
for p in range(4): A(f"v_pk_add_f32 {P(b_+2*p)}, {P(b_+2*p)}, {P(b_+16+2*p)}")
for p in range(4): A(f"v_cvt_pk_bf16_f32 v{b_+8+p}, v{b_+2*p}, v{b_+2*p+1}")
out_store(b_)
if args.stamps:
    A("s_waitcnt vmcnt(0)")
    stamp("end")
    A("s_memrealtime s[12:13]")
    A("s_waitcnt lgkmcnt(0)")
    n = len(stamp_names)
    A("v_mov_b32 v64, s100\nv_mov_b32 v65, s12")
    for i in range(n): A(f"v_mov_b32 v{66+i}, s{stamp_regs[i]}")
    A(f"v_mov_b32 v{66+n}, s{s_spin}")
    A(f"s_mov_b32 s{sL+2}, 0x10000000")
    A(f"s_lshl_b32 s{s_t0}, s2, 2\ns_add_u32 s{s_t0}, s{s_t0}, s{sW}\ns_lshl_b32 s{s_t0}, s{s_t0}, 7\ns_add_u32 s{s_t0}, s{s_t0}, {STAMP_OFF}")
    if args.itst:
        A("s_mov_b64 exec, 0xfff")
        A(f"s_add_u32 s{s_t1}, s{s_t0}, {1<<20}")
        for q, r in enumerate((60, 61)): A(f"buffer_store_dword v{r}, v{v_l4}, {srd(sL)}, s{s_t1} offen offset:{48*q}")
    A("s_mov_b64 exec, 1")
    for q in range(5): A(f"buffer_store_dwordx4 v[{64+4*q}:{67+4*q}], off, {srd(sL)}, s{s_t0} offset:{16*q}")
if args.pad:
    A("s_waitcnt vmcnt(0)")
    stamp("end")
    A("s_waitcnt lgkmcnt(0)")
    A("s_sub_u32 s84, s82, s80")
    A(f"s_cmp_eq_u32 s{s_fl}, 7\ns_cselect_b32 s84, 0, s84")
    if args.padwg >= 0: A(f"s_cmp_eq_u32 s2, {args.padwg}\ns_cselect_b32 s84, s84, 0")
    A("s_min_u32 s84, s84, 10000\ns_add_u32 s84, s84, 4000")
    if args.padonly >= 0: A(f"s_cmp_lg_u32 s2, {args.padonly}\ns_cbranch_scc1 L_end")
    A("L_pad:\ns_memrealtime s[86:87]\ns_waitcnt lgkmcnt(0)\ns_sub_u32 s85, s86, s80\ns_cmp_lt_u32 s85, s84\ns_cbranch_scc1 L_pad")
A("L_end:")
A("s_endpgm")
for lbl, reissue, pre in cold:
    A(f"{lbl}_slow:")
    if pre:
        A(f"s_cmp_lg_u32 s{s_t1}, 0\ns_cbranch_scc1 {lbl}_s2\ns_mov_b32 s{s_t1}, 1\ns_waitcnt vmcnt(0)")
        A(f"s_add_u32 s{s_t0}, s{s_flagP}, {M32S}")
        A("s_mov_b32 exec_hi, 0")
        A(f"buffer_store_dword v{v_one}, v{v_l4}, {srd(sA)}, s{s_t0} offen sc1")
        A("s_mov_b32 exec_hi, -1")
        A(f"{lbl}_s2:")
    A(f"s_add_u32 s{s_spin}, s{s_spin}, 1")
    A(f"s_cmp_ge_u32 s{s_spin}, 200000")
    A(f"s_cbranch_scc1 {lbl}_ok")
    if args.sleep: A(f"s_sleep {args.sleep}")
    reissue()
    if lbl == "L_arm": A("s_waitcnt vmcnt(0)")
    A(f"s_branch {lbl}")
A("L_spare:")
for x in ids: A(x)
A(f"v_lshlrev_b32 v{vT[18]}, 7, v{v_lane}")
A(f"s_and_b32 s{s_xcd}, s2, 7")
A(f"s_mul_i32 s{s_so2}, s{s_ml}, 56\ns_add_u32 s{s_so2}, s{s_so2}, s{sW}\ns_lshl_b32 s{s_so2}, s{s_so2}, 13")
A(f"s_mul_i32 s{s_t2}, s{s_xcd}, 7\ns_lshr_b32 s{s_t2}, s{s_t2}, 2\ns_lshl_b32 s{s_t2}, s{s_t2}, 15\ns_add_u32 s{s_t2}, s{s_t2}, s{s_so2}")
A(f"s_mov_b32 s{sX_+2}, 2097152")
A(f"s_and_b32 s{s_t0}, s{sW}, 2\ns_add_u32 s{s_t0}, s{s_t0}, s{sW}\ns_lshl3_add_u32 s{s_xbase}, s{s_mt}, s{s_t0}\ns_add_u32 s{s_xbase}, s{s_xbase}, 2\ns_lshl_b32 s{s_xbase}, s{s_xbase}, 14")
A("s_waitcnt lgkmcnt(0)")
for x in W2SRD: A(x)
def spf_op(op):
    if op[0] == "x":
        A(f"s_xor_b32 s{s_t0}, s{s_fg}, {int(op == 'x2')}\ns_lshl_b32 s{s_t0}, s{s_t0}, 13\ns_add_u32 s{s_t0}, s{s_t0}, s{s_xbase}")
        A(f"buffer_load_dword v{vT[24]}, v{vT[18]}, {srd(sX_)}, s{s_t0} offen")
        return
    if op[0] == "p": A(f"s_add_u32 s{s_t0}, s{s_t2}, {32768*int(op[1])}")
    elif op[0] == "g": A(f"s_add_u32 s{s_t0}, s{s_so2}, {32768*int(op[1:])}")
    else: A(f"s_add_u32 s{s_t0}, s{s_so2}, {32768*(12+int(op[1]))}")
    A(f"buffer_load_dword v{vT[24]}, v{vT[18]}, {srd(sW2)}, s{s_t0} offen")
spf = args.spf.split()
if spf: spf_op(spf.pop(0))
for x in common + S2: A(x)
A(f"s_mov_b32 s{s_flagP}, 0")
A(f"s_cmp_lg_u32 s{sW}, 0")
A("s_cbranch_scc1 L_spare2")
A(f"v_and_b32 v{vT[12]}, 15, v{v_lane}")
A(f"v_min_u32 v{vT[12]}, 13, v{vT[12]}")
A(f"v_lshlrev_b32 v{vT[12]}, 7, v{vT[12]}")
A(f"s_mov_b32 s{s_t0}, {M32S}")
A(f"v_mul_lo_u32 v{vT[13]}, v{b}, s{s_t0}")
A(f"v_add_u32 v{vT[12]}, v{vT[12]}, v{vT[13]}")
A(f"s_mul_i32 s{s_t0}, s{s_mt}, {4*M32S}\ns_mul_i32 s{s_t1}, s{s_fg}, 1792\ns_add_u32 s{s_t0}, s{s_t0}, s{s_t1}\ns_add_u32 s{s_t0}, s{s_t0}, {FLAGOFF}")
A(f"v_mov_b32 v{vT[14]}, 0")
A(f"buffer_store_dword v{vT[14]}, v{vT[12]}, {srd(sA)}, s{s_t0} offen sc1")
A("L_spare2:")
armpos = min(args.armpos, len(spf))
for k_, op in enumerate(spf + [None]):
    if k_ == armpos:
        A(f"s_cmp_lg_u32 s{sW}, 0\ns_cbranch_scc1 L_spare3\ns_waitcnt vmcnt({armpos})\ns_mov_b64 exec, 1")
        A(f"buffer_store_dword v{v_one}, v{v_armoff}, {srd(sD)}, 0 offen sc1")
        A("s_mov_b64 exec, -1\nL_spare3:")
    if op: spf_op(op)
A(f"s_mov_b32 s{sA+2}, 0")
issued = []; pend = []; known = -1
def flush_reads(upto=None):
    global known
    while pend and (upto is None or int(pend[0][2][1:]) <= upto):
        _, r, tg = pend.pop(0); p = int(tg[1:])
        if p > known:
            last = max(i for i, t_ in enumerate(issued) if t_ == f"g{p}")
            A(f"s_waitcnt vmcnt({len(issued) - 1 - last})"); known = p
        A(r)
nrec = 0
for e_ in lean:
    if e_[0] == "S": A(e_[1])
    elif e_[0] == "D": A(e_[1]); issued.append(e_[2])
    elif e_[0] == "R": pend.append(e_)
    else: flush_reads(nrec); nrec += 1; A("s_waitcnt lgkmcnt(0)")
arm_load(); issued.append("arm")
flush_reads()
A("s_waitcnt lgkmcnt(0)")
A("L_arm2:")
A("s_waitcnt vmcnt(0)")
A(f"v_cmp_eq_u32 vcc, 1, v{v_arm}")
A(f"s_add_u32 s{s_spin}, s{s_spin}, 1")
A("s_cmp_eq_u64 vcc, -1")
tgt = "L_arm2ok" if lean_poll else "L_enter2"
A(f"s_cbranch_scc1 {tgt}")
A(f"s_cmp_ge_u32 s{s_spin}, 200000")
A(f"s_cbranch_scc1 {tgt}")
arm_load()
A("s_branch L_arm2")
if lean_poll:
    A("L_arm2ok:")
    poll_issue()
    A("s_branch L_enter2")
A("L_codeend:")
A(".fill (16384-(L_codeend-L_pcref))/4, 4, 0xbf810000")
tail = f""".section .rodata,"a"
.p2align 6
.amdhsa_kernel {KN}
  .amdhsa_next_free_vgpr 512
  .amdhsa_next_free_sgpr 102
  .amdhsa_accum_offset 256
  .amdhsa_group_segment_fixed_size 0
  .amdhsa_kernarg_size 56
  .amdhsa_user_sgpr_count 2
  .amdhsa_user_sgpr_kernarg_segment_ptr 1
  .amdhsa_system_sgpr_workgroup_id_x 1
.end_amdhsa_kernel"""
print(hdr); print("\n".join(L)); print(tail)
if args.stamps: print("; STAMPS: " + " ".join(stamp_names))
```

```python
import sys, argparse
ap = argparse.ArgumentParser()
I = lambda n, d: ap.add_argument("--" + n, type=int, default=d)
I("stamps", 0); I("rtst", 0); I("itst", 0); I("padwg", -1); I("padonly", -1)
I("rot", 5); I("D", 8); I("nh", 4); I("h0", 5); I("h1", 10); I("xbper", 2); I("burstA", 0); I("burstB", 0); I("m32s", 118784); I("flagw", 32); I("wsoff", 0); I("align", 0); I("w1pre", 8); I("st4", 0); I("wearly", 2); I("probe", 0); I("pubn", 99); I("jit", 0); I("pbars", 4); I("useF", 1); I("rdB", 0); I("pollfr", 9); I("pbk", 8); I("armn", 64); I("w2num", 2); I("x2pre", 2); I("xearly", 1)
I("ne", 0); I("e0", 16); I("e1", 44)
I("w2gap", 3); I("nmish", 14); I("rdmish", 4); I("flagApos", 2); I("nb", 6); I("npoll", 8)
I("depth", 9); I("tailj", 6); I("redi", 42); I("armpos", 1); I("sleep", 0); I("biasfirst", 2); I("s2pre", 16); I("s2gap", 7)
ap.add_argument("--spf", default="x1 p0 p1 x2")
ap.add_argument("--order", default="a0 a1 a2 a3 b0 b1 b2 b3 c0 c1 c2 c3 S0 S1")
ap.add_argument("--w2rot", default="none")
ap.add_argument("--outsc", default="nt")
ap.add_argument("--pad", default="")
ap.add_argument("--name", default="standalone__dense_activation_mish__prompt")
args = ap.parse_args()
KN = args.name + "_kernel"
D = args.D; NE = args.ne
BIG = D > 3
assert (D % 2 == 0 and NE <= 1) if BIG else NE <= 4

M32S = args.m32s; FLAGOFF = 114688; WS_SIZE = 64 * M32S; STAMP_OFF = 16 << 20
L = []
def A(s):
    for ln in s.split("\n"):
        L.append("    " + ln if not ln.endswith(":") else ln)

sW = 3
sX_, sWW, sB, sA, sL, sD, sW2 = 20, 24, 28, 32, 36, 40, 8
def srd(b): return f"s[{b}:{b+3}]"
s_mt, s_ft, s_fg, s_fl, s_m64, s_ml, s_wm, s_wf = 44, 45, 46, 47, 48, 49, 50, 51
s_nt = 19; s_bo = 18
s_ord, s_xbase, s_wbase, s_soX, s_soW, s_ld, s_so2, s_m0s = 52, 54, 55, 56, 57, 58, 59, 60
s_t2, s_t0, s_t1 = 61, 62, 63
s_wb = [64, 65, 66, 52]; s_ab = [48, 49, 50, 51]
s_actst, s_flagP, s_flagC, s_actld, s_spin, s_outb, s_xcd = 67, 68, 69, 70, 71, 72, 73
s_cl2e = 74; s_half = 76; s_so = 78; s_w2base = 79
s_pl = [53, 59, 60, 61, 44, 45, 46]
v_lane = 1
vDX = [2, 3, 4, 5]; vDW = [6, 7, 8, 9]; vD2 = [10, 11, 12, 13]
vRX = [14, 15, 16, 17]; vRX2 = [176, 177, 178, 179]; vRW = [18, 19]; vR2 = [[20, 21], [22, 23], [35, 36]]
v_l16 = 24; v_armoff = 26; v_arm = 27; v_one = 29; v_l4 = 30
v_bo = 31; v_redw = 32; v_redr = 33; v_outo = 34
vT = list(range(38, 64))
ACC = 64
def acc(mi, j): return ACC + 32 * mi + 16 * j
BIAS = 128; XF = 160; MT = 192; OUTB = MT + 24
AF = 128; NRING = 16
NS = 4 if args.st4 else 3
assert D == 8
XA = NS * 16384

stamp_names = []
stamp_regs = list(range(80, 100, 2)) + [4, 6, 16, 54, 56, 14]
def stamp(name):
    if args.pad:
        if name == "start": A("s_memrealtime s[80:81]")
        if name == args.pad: A("s_memrealtime s[82:83]")
        return
    if args.stamps != 1: return
    r = stamp_regs[len(stamp_names)]; stamp_names.append(name)
    A(f"s_mem{'real' if args.rtst else ''}time s[{r}:{r+1}]")
vmq = []; vm_known = [0]
def vm(tag): vmq.append(tag)
def lastidx(tag): return max(i for i, t in enumerate(vmq) if t == tag)
def wait_vm(tag):
    idx = lastidx(tag); n = len(vmq) - 1 - idx
    assert n <= 63, n
    A(f"s_waitcnt vmcnt({n})"); vm_known[0] = max(vm_known[0], idx + 1)
lgq = []; lg_done = [0]
def lg(ins, tag=None): A(ins); lgq.append(tag)
def wait_lg(tag):
    idx = max(i for i, t in enumerate(lgq) if t == tag)
    if idx < lg_done[0]: return
    n = min(len(lgq) - 1 - idx, 12)
    A(f"s_waitcnt lgkmcnt({n})"); lg_done[0] = max(lg_done[0], len(lgq) - n)
def wait_lg0(): A("s_waitcnt lgkmcnt(0)"); lg_done[0] = len(lgq)
lastw = {}
def pad_after(key, need):
    n = 0
    for ln in L[lastw[key] + 1:]:
        t = ln.strip()
        if t.endswith(":") or t.startswith("s_mem"): continue
        n += int(t.split()[1]) + 1 if t.startswith("s_nop") else 1
    if n < need: A(f"s_nop {need - n - 1}")

hdr = f"""; out = mish(x @ w1 + b1) @ w2     x[2048,512] w1[512,1792] b1[1792] w2[1792,512] out[2048,512], all bf16
; @launch grid=(256,1,1) block=(256,1,1) lds=163840
.amdgcn_target "amdgcn-amd-amdhsa--gfx950"
.text
.globl {KN}
.p2align 8
.type {KN},@function
{KN}:"""

for r, o in ((sX_, 0), (sWW, 8), (sB, 16)):
    A(f"s_load_dwordx2 s[{r}:{r+1}], s[0:1], {o}")
A("s_load_dwordx8 s[8:15], s[0:1], 24")
A("s_cmpk_ge_u32 s2, 256")
A("s_cbranch_scc1 L_end")
if args.stamps: A("s_memrealtime s[100:101]")
stamp("start")
a, b, c, d = vT[0], vT[1], vT[2], vT[3]
h = vT[5]; t = vT[6]; tq = vT[7]; e = vT[8]; f = vT[9]
A(f"v_lshrrev_b32 v{a}, 6, v0")
A(f"v_and_b32 v{v_lane}, 63, v0")
A(f"v_readfirstlane_b32 s{sW}, v{a}")
A(f"s_bfe_u32 s{s_fl}, s2, 0x30003")
A(f"s_mov_b32 s{sX_+3}, 0x20000")
def jitter(lbl, expr):
    A(expr); A(f"{lbl}:\ns_sleep 16\ns_sub_u32 s90, s90, 1\ns_cmp_gt_i32 s90, 0\ns_cbranch_scc1 {lbl}")
if args.jit == 1: jitter("L_j1", f"s_cmp_eq_u32 s{s_fl}, 7\ns_cselect_b32 s90, 60, 0")
if args.jit in (2, 3): jitter("L_j1", "s_memtime s[92:93]\ns_waitcnt lgkmcnt(0)\ns_mul_i32 s90, s2, 0x9e3779b1\ns_lshl_b32 s92, s92, 20\ns_add_u32 s90, s90, s92\ns_lshr_b32 s90, s90, 27")
A(f"s_cmp_lg_u32 s{s_fl}, 7")
A("s_cbranch_scc1 L_go")
A("s_getpc_b64 s[4:5]")
A("L_pcref:")
A(f"v_lshlrev_b32 v{vT[10]}, 6, v0")
A(f"v_add_co_u32 v{vT[10]}, vcc, s4, v{vT[10]}")
A(f"v_mov_b32 v{vT[11]}, s5")
A("s_nop 0")
A(f"v_addc_co_u32 v{vT[11]}, vcc, 0, v{vT[11]}, vcc")
assert vT[10] % 2 == 0
A(f"global_load_dword v{vT[24]}, v[{vT[10]}:{vT[11]}], off")
A("s_branch L_spare")
A("L_go:")
ids = [f"s_and_b32 s{s_fg}, s2, 1", f"s_lshr_b32 s{s_ml}, s2, 6", f"s_and_b32 s{s_mt}, s2, 6", f"s_lshl1_add_u32 s{s_mt}, s{s_mt}, s{s_ml}",
       f"s_lshl_b32 s{s_ld}, s{sW}, 12", f"v_lshrrev_b32 v{a}, 3, v{v_lane}", f"v_lshrrev_b32 v{b}, 4, v{v_lane}", f"v_and_b32 v{c}, 7, v{v_lane}"]
for x in ids: A(x)
A(f"s_lshl_b32 s{sX_+2}, s{sX_+3}, 4")
A(f"s_and_b32 s{s_t0}, s{sW}, 2\ns_add_u32 s{s_t0}, s{s_t0}, s{sW}\ns_lshl3_add_u32 s{s_xbase}, s{s_mt}, s{s_t0}\ns_lshl_b32 s{s_xbase}, s{s_xbase}, 14")
A(f"s_mul_i32 s{s_ft}, s{s_fg}, 7")
A(f"s_add_u32 s{s_ft}, s{s_ft}, s{s_fl}")
A(f"s_add_u32 s{s_t0}, s{s_ml}, s{s_fl}\ns_and_b32 s{s_t0}, s{s_t0}, 1")
A(f"s_lshr_b32 s{s_t1}, s2, 1\ns_xor_b32 s{s_t1}, s{s_t1}, s2\ns_and_b32 s{s_t1}, s{s_t1}, 1")
A(f"s_lshl1_add_u32 s{s_t0}, s{s_t0}, s{s_t1}\ns_lshl_b32 s{s_t2}, s{s_t0}, 1")
A(f"s_mul_i32 s{s_wbase}, s{sW}, 224\ns_add_u32 s{s_wbase}, s{s_wbase}, s{s_ft}\ns_lshl_b32 s{s_wbase}, s{s_wbase}, 8")
A(f"v_xor_b32 v{d}, v{c}, v{b}")
A(f"v_lshlrev_b32 v{d}, 4, v{d}")
A(f"v_lshl_add_u32 v{vDX[0]}, v{a}, 10, v{d}")
A(f"v_xor_b32 v{d}, 64, v{vDX[0]}")
A(f"v_add_u32 v{vDX[1]}, 7168, v{d}")
dx23 = [f"v_add_u32 v{vDX[2]}, 30720, v{vDX[0]}", f"v_add_u32 v{vDX[3]}, 30720, v{vDX[1]}"]
if D < 8:
    for x in dx23: A(x)
A(f"v_and_b32 v{e}, 15, v{v_lane}")
A(f"v_lshlrev_b32 v{vT[4]}, 2, v{b}")
A(f"v_xor_b32 v{d}, v{e}, v{vT[4]}")
A(f"v_mul_u32_u24 v{vT[4]}, 224, v{b}")
A(f"v_add_lshl_u32 v{vDW[0]}, v{vT[4]}, v{d}, 4")
for i in range(1, 4): A(f"v_add_u32 v{vDW[i]}, {i*(4*3584-1024)}, v{vDW[0]}")
A(f"s_mul_i32 s{sWW+2}, s{sX_+3}, 14\ns_mov_b32 s{sWW+3}, s{sX_+3}")
kcur = [0]
def soffX(j):
    x = kcur[0] ^ j; kcur[0] = j
    return (f"s_xor_b32 s{s_t2}, s{s_t2}, {x}\n" if x else "") + f"s_lshl_b32 s{s_soX}, s{s_t2}, 7\ns_add_u32 s{s_soX}, s{s_soX}, s{s_xbase}"
def soffW(): return f"s_mul_i32 s{s_soW}, s{s_t2}, 229376\ns_add_u32 s{s_soW}, s{s_soW}, s{s_wbase}"
def dma(vo, srdb, so, i): return f"buffer_load_dwordx4 v{vo}, {srd(srdb)}, s{so} offen offset:{1024*i} lds"
def m0row(r): return f"s_add_u32 m0, s{s_ld}, {r * 16384}" if r else f"s_mov_b32 m0, s{s_ld}"

deferred = lambda ch: ch >= 8 - D
def xslot(ch, mi):
    if not BIG: return 3 + ch % 3, mi
    return (NS + 2 + ch // 2, ch & 1) if mi else (NS + (ch % 4) // 2, ch & 1)
def m0x(ch, mi):
    r, hf = xslot(ch, mi)
    return f"s_add_u32 m0, s{s_ld}, {r * 16384 + (hf - mi) * 2048}"
barorder = [f"B{i}" for i in range(8)] + [f"P{i}" for i in range(4)] + ["F"]
if not BIG:
    fr_ = []
    for ch in (5, 6, 7):
        nb_ = f"B{ch+1}" if ch < 7 else ("P0" if D else "F")
        fr_.append((ch % 3, nb_)); fr_.append((3 + ch % 3, "F" if deferred(ch) or ch == 7 else nb_))
    fr_.sort(key=lambda x: barorder.index(x[1]))
    rowinfo = [(6 + i, "") for i in range(4)] + fr_
else:
    fr_ = [(2, "B6"), (3, "B6"), (0, "B7"), (1, "P0"), (4, "P0")] if NS == 3 else [(0, "B5"), (1, "B6"), (4, "B6"), (2, "B7"), (3, "P0"), (5, "P0")]
    for j in range(4):
        k_ = j - (4 - D // 2)
        PS = 4 // args.pbars
        nxtb = (k_ // PS + 1) * PS
        fr_.append((NS + 2 + j, f"B{2*j+2}" if k_ < 0 else (f"P{nxtb}" if nxtb < D // 2 else "F")))
    fr_.sort(key=lambda x: barorder.index(x[1]))
    rowinfo = ([(9, "")] if NS == 3 else []) + fr_
rows = {}; fresh = list(rowinfo); recycled = set(); w2log = []
passed = set([""])
def gaddr(dst, p): return f"s_add_u32 s{dst}, s{s_w2base}, {p * 32768}"
stream = []
for j in range(8):
    rq = f"B{j-2}" if j > 2 else ""
    for i in range(2 if deferred(j) else 4):
        pre = None
        if i == 0: pre = m0x(j, 0) + "\n" + soffX(j)
        if i == 2 and BIG: pre = m0x(j, 1) + "\ns_nop 0"
        rqx = (f"B{j-3}" if j > 3 else "") if BIG and args.xearly else rq
        stream.append((pre, dma(vDX[i], sX_, s_soX, i), f"c{j}", rqx))
    for i in range(4):
        rqw = (f"B{j-3}" if j > 3 else "") if NS == 4 and i < args.wearly else rq
        stream.append(((m0row(j % NS) + "\n" + soffW()) if i == 0 else None, dma(vDW[i], sWW, s_soW, i), f"c{j}", rqw))
for j in range(8 - D, 8):
    for i in (2, 3):
        stream.append(((m0x(j, 1) + "\n" + soffX(j)) if i == 2 else None, dma(vDX[i], sX_, s_soX, i), f"x{(j - 8 + D) // 2 // PS * PS if BIG else 0}", ""))
assert NE == 0
stream += [("G" if i == 0 else None, dma(vD2[i], sW2, s_soX, i), f"g{p}", "") for p in range(14) for i in range(4)]
early = [(p, i) for p in range(NE) for i in range(4)]
esteps = [args.e0 + (k * (args.e1 - args.e0)) // max(1, len(early) - 1) for k in range(len(early))]
assert len(set(esteps)) == len(esteps)
def pick_row(force=False):
    for r in fresh:
        if r[1] in passed: return ("f", r)
    src = len(recycled)
    if force or (nextp[0] > src and not any(tg == f"q{src}" for _, tg in rq)): return ("r", src)
    return None
def can_issue():
    if not stream: return False
    if stream[0][2][0] == "g" and len(stream) <= args.npoll: return False
    if stream[0][0] == "G": return pick_row() is not None
    return stream[0][3] in passed
def pre_next():
    p, i_, tg, rq_ = stream[0]
    if p == "G":
        g = int(tg[1:]); kind, x = pick_row(force=True)
        if kind == "f": fresh.remove(x); rows[g] = x[0]
        else: need_pos(x); recycled.add(x); rows[g] = rows[x]; w2log.append(("L",))
        p = m0row(rows[g]) + "\n" + gaddr(s_soX, g)
        w2log.append(("S", p))
    if p: A(p); stream[0] = (None, i_, tg, rq_)
def dma_next():
    pre_next()
    p, i_, tg, rq_ = stream.pop(0)
    assert rq_ in passed, (tg, rq_)
    A(i_); vm(tg)
    if tg[0] == "g": w2log.append(("D", i_, tg))
dma_next2 = dma_next

pre_next()
def bias_addr():
    A(f"s_movk_i32 s{sB+2}, 3584\ns_mov_b32 s{sB+3}, s{sX_+3}")
    A(f"v_lshlrev_b32 v{v_bo}, 1, v{v_lane}")
    A(f"s_lshr_b32 s{s_bo}, s{sW}, 1\ns_lshl1_add_u32 s{s_bo}, s{s_ft}, s{s_bo}\ns_lshl_b32 s{s_bo}, s{s_bo}, 7")
def bias_load():
    A(f"buffer_load_ushort v{BIAS}, v{v_bo}, {srd(sB)}, s{s_bo} offen"); vm("c0")
if args.biasfirst == 1: bias_addr()
A("s_waitcnt lgkmcnt(0)")
if args.biasfirst == 1: bias_load()
for i in range(8 + args.w1pre):
    dma_next()
    if i == 4 and args.biasfirst == 2: bias_addr(); bias_load()
if args.probe:
    stamp("iss")
    A("s_waitcnt vmcnt(8)"); stamp("x0")
    A("s_waitcnt vmcnt(2)"); stamp("c0")
common = [f"v_lshrrev_b32 v{h}, 5, v{v_lane}", f"v_and_b32 v{d}, 1, v{b}", f"v_bfe_u32 v{tq}, v{v_lane}, 2, 2",
          f"v_and_b32 v{vT[4]}, 3, v{v_lane}", f"v_lshlrev_b32 v{vT[4]}, 3, v{vT[4]}", f"v_lshl_add_u32 v{vT[4]}, v{d}, 5, v{vT[4]}",
          f"s_and_b32 s{s_wm}, s{sW}, 1", f"s_lshr_b32 s{s_wf}, s{sW}, 1"]
for x in common: A(x)
A(f"s_lshl_b32 s{s_t0}, s{s_wm}, 13\ns_add_u32 s{s_t0}, s{s_t0}, {XA}")
A(f"v_lshl_add_u32 v{e}, v{e}, 7, s{s_t0}")
A(f"v_lshl_add_u32 v{e}, v{d}, 12, v{e}")
A(f"v_bfe_u32 v{f}, v{v_lane}, 1, 3")
A(f"v_xor_b32 v{f}, v{f}, v{h}")
A(f"v_lshl_add_u32 v{vRX[0]}, v{f}, 4, v{e}")
for s in range(1, 4): A(f"v_xor_b32 v{vRX[s]}, {32*s}, v{vRX[0]}")
A(f"v_lshl_add_u32 v{f}, v{h}, 3, v{tq}")
A(f"v_lshl_add_u32 v{f}, v{f}, 8, v{vT[4]}")
A(f"s_and_b32 s{s_t0}, s{sW}, 2")
A(f"v_xor_b32 v{t}, s{s_t0}, v{tq}")
A(f"v_lshl_add_u32 v{vRW[0]}, v{t}, 6, v{f}")
A(f"v_xor_b32 v{vRW[1]}, 64, v{vRW[0]}")
if not args.biasfirst: bias_addr()
A(f"v_mul_u32_u24 v{BIAS+8}, 0x3f80, v{h}")
A(f"v_xor_b32 v{BIAS+4}, 0x3f80, v{BIAS+8}")
for i in (1, 2, 3, 5, 6, 7, 9, 10, 11): A(f"v_mov_b32 v{BIAS+i}, 0")

W2SRD = ["s_mov_b64 s[64:65], s[10:11]", f"s_mov_b32 s{sW2+2}, 1835008", f"s_mov_b32 s{sW2+3}, s{sX_+3}"]
S2 = f"""s_mov_b32 s{sB+3}, s{sX_+3}
s_mov_b64 s[{sD}:{sD+1}], s[12:13]
s_mov_b64 s[{sA}:{sA+1}], s[14:15]
s_mov_b64 s[{sL}:{sL+1}], s[14:15]
s_mov_b32 s{sA+2}, {WS_SIZE}
s_mov_b32 s{sA+3}, s{sX_+3}
s_mov_b32 s{sL+2}, s{sA+2}
s_mov_b32 s{sL+3}, s{sX_+3}
s_movk_i32 s{sD+2}, 256
s_mov_b32 s{sD+3}, s{sX_+3}
s_and_b32 s{s_xcd}, s2, 7
s_xor_b32 s{s_nt}, s{s_fl}, 4
s_lshl2_add_u32 s{s_m64}, s{s_xcd}, s{s_ml}
v_lshlrev_b32 v{e}, 2, v{d}
v_xor_b32 v{e}, v{c}, v{e}
v_lshlrev_b32 v{e}, 4, v{e}
v_lshl_add_u32 v{vD2[0]}, v{a}, 10, v{e}
v_add_u32 v{vD2[1]}, 7168, v{vD2[0]}
v_add_u32 v{vD2[2]}, 14336, v{vD2[0]}
v_add_u32 v{vD2[3]}, 21504, v{vD2[0]}
v_lshl_add_u32 v{f}, v{h}, 2, v{tq}
v_lshl_add_u32 v{f}, v{f}, 7, v{vT[4]}
v_bfe_u32 v{t}, v{v_lane}, 3, 1
v_lshl_add_u32 v{f}, v{t}, 6, v{f}
v_add_u32 v{vR2[0][0]}, s{s_ld}, v{f}
v_xor_b32 v{vR2[0][1]}, 64, v{vR2[0][0]}
v_add_u32 v{vR2[1][0]}, 65536, v{vR2[0][0]}
v_add_u32 v{vR2[1][1]}, 65536, v{vR2[0][1]}
v_add_u32 v{vR2[2][0]}, 131072, v{vR2[0][0]}
v_add_u32 v{vR2[2][1]}, 131072, v{vR2[0][1]}
v_lshlrev_b32 v{v_l16}, 4, v{v_lane}
v_mov_b32 v{v_one}, 1
v_lshlrev_b32 v{v_l4}, 2, v{v_lane}
s_lshl1_add_u32 s{s_t0}, s{s_mt}, s{s_fg}
s_lshl_b32 s{s_t0}, s{s_t0}, 2
s_and_b32 s{s_t1}, s{s_m64}, 30
s_add_u32 s{s_t1}, s{s_t1}, s{s_wf}
s_lshl_b32 s{s_t1}, s{s_t1}, 2
s_sub_u32 s{s_t1}, s{s_t1}, s{s_t0}
v_mul_lo_u32 v{v_armoff}, v{h}, s{s_t1}
v_add_u32 v{v_armoff}, s{s_t0}, v{v_armoff}
v_and_b32 v{e}, 15, v{v_lane}
v_lshl_add_u32 v{e}, v{e}, 8, s{s_ld}
v_lshl_add_u32 v{e}, v{d}, 14, v{e}
v_xor_b32 v{f}, v{c}, v{h}
v_lshl_add_u32 v{v_redw}, v{f}, 4, v{e}
s_lshl_b32 s{s_t0}, s{s_wf}, 14
s_lshl_b32 s{s_t1}, s{s_wm}, 11
s_add_u32 s{s_t0}, s{s_t0}, s{s_t1}
v_lshl_add_u32 v{e}, v{a}, 8, s{s_t0}
v_lshlrev_b32 v{f}, 1, v{c}
v_xor_b32 v{f}, v{f}, v{a}
v_lshl_add_u32 v{v_redr}, v{f}, 4, v{e}
v_lshlrev_b32 v{e}, 4, v{c}
v_lshl_add_u32 v{v_outo}, v{a}, 10, v{e}
s_mul_i32 s{s_w2base}, s{sW}, 3584
s_add_u32 s{s_w2base}, s{s_w2base}, s{s_nt}
s_lshl_b32 s{s_w2base}, s{s_w2base}, 7""".split("\n")
S2 += f"""s_mul_i32 s{s_t0}, s{s_m64}, {2*M32S}
s_mul_i32 s{s_flagC}, s{sW}, 896
s_add_u32 s{s_flagC}, s{s_flagC}, s{s_t0}
s_add_u32 s{s_flagC}, s{s_flagC}, {FLAGOFF}
s_mul_i32 s{s_actld}, s{sW}, 28672
s_add_u32 s{s_actld}, s{s_actld}, s{s_t0}
s_lshl3_add_u32 s{s_outb}, s{s_m64}, s{sW}
s_lshl_b32 s{s_outb}, s{s_outb}, 6
s_add_u32 s{s_outb}, s{s_outb}, s{s_nt}
s_lshl_b32 s{s_outb}, s{s_outb}, 7
s_mov_b32 s{s_spin}, 0""".split("\n")
S2p = f"""s_lshl1_add_u32 s{s_t0}, s{s_mt}, s{s_wm}
s_mul_i32 s{s_t0}, s{s_t0}, {2*M32S}
s_lshl_b32 s{s_actst}, s{s_bo}, 5
s_add_u32 s{s_actst}, s{s_actst}, s{s_t0}
s_add_u32 s{s_flagP}, s{s_bo}, s{s_t0}
s_add_u32 s{s_flagP}, s{s_flagP}, {FLAGOFF}
s_mov_b32 s{s_cl2e}, 0xbfb8aa3b
s_mov_b32 s{s_cl2e+1}, s{s_cl2e}
s_mov_b32 s{s_half}, 0.5
s_mov_b32 s{s_half+1}, 0.5""".split("\n")
s2q = W2SRD + S2[1:] + S2p + (dx23 if D == 8 else [])
if BIG:
    rx2 = [f"v_add_u32 v{vRX2[s]}, 32768, v{vRX[s]}" for s in range(4)]
    if D == 8: s2q += rx2
    else:
        for x in rx2: A(x)
def emit_s2(k):
    for _ in range(k):
        if s2q: A(s2q.pop(0))
emit_s2(args.s2pre)
stamp("setup")
if not args.biasfirst: bias_load()
while stream[0][2] == "c1": dma_next()
if deferred(0):
    for i in range(args.x2pre): dma_next()

seq = []
for ch in range(8):
    for s in range(4):
        seq.append((ch, 0, s))
        if not deferred(ch): seq.append((ch, 1, s))
nA = len(seq)
for ch in range(8 - D, 8): seq += [(ch, 1, s) for s in range(4)]
assert len(seq) == 64
def xf(n): return XF + 4 * (n % 4)
def rd_x(n):
    ch, mi, s = seq[n]
    r, hf = xslot(ch, mi)
    va, r0 = (vRX2[s], NS + 2) if BIG and mi else (vRX[s], NS)
    lg(f"ds_read_b128 v[{xf(n)}:{xf(n)+3}], v{va} offset:{(r - r0)*16384 + 2048*hf}", f"x{n}")
def rd_w(n, fi):
    ch, mi, s = seq[n]
    if mi: return
    for a_ in range(2):
        r = (ch * 4 + s) * 8 + 4 * fi + 2 * a_
        lg(f"ds_read_b64_tr_b16 a[{r}:{r+1}], v{vRW[fi]} offset:{(ch % NS)*16384+4096*s+1024*a_}", f"w{n}_{fi}")
def mfma1(n, fi):
    ch, mi, s = seq[n]
    Dr = acc(mi, fi); wr = (ch * 4 + s) * 8 + 4 * fi
    C = f"v[{Dr}:{Dr+15}]"
    A(f"v_mfma_f32_32x32x16_bf16 v[{Dr}:{Dr+15}], a[{wr}:{wr+3}], v[{xf(n)}:{xf(n)+3}], {C}"); lastw[(mi, fi)] = len(L) - 1
def mfma_bias(mi, fi):
    Dr = acc(mi, fi)
    A(f"v_mfma_f32_32x32x16_bf16 v[{Dr}:{Dr+15}], v[{BIAS}:{BIAS+3}], v[{BIAS+4+4*fi}:{BIAS+7+4*fi}], 0")
P = lambda r: f"v[{r}:{r+1}]"
def mish_pk(k):
    hb = ACC + 8 * k; ob = OUTB + 4 * k
    U, N, Dd = MT, MT + 8, MT + 16
    o = [f"v_pk_mul_f32 {P(U+2*p)}, {P(hb+2*p)}, s[{s_cl2e}:{s_cl2e+1}]" for p in range(4)]
    o += [f"v_exp_f32 v{U+i}, v{U+i}" for i in range(8)]
    o += [f"v_pk_add_f32 {P(N+2*p)}, {P(U+2*p)}, s[{s_half}:{s_half+1}]" for p in range(4)]
    o += [f"v_pk_fma_f32 {P(Dd+2*p)}, {P(U+2*p)}, {P(U+2*p)}, {P(N+2*p)}" for p in range(4)]
    o += [f"v_rcp_f32 v{Dd+i}, v{Dd+i}" for i in range(8)]
    o += [f"v_pk_mul_f32 {P(N+2*p)}, {P(N+2*p)}, {P(Dd+2*p)} clamp" for p in range(4)]
    o += [f"v_pk_mul_f32 {P(N+2*p)}, {P(N+2*p)}, {P(hb+2*p)}" for p in range(4)]
    o += [f"v_cvt_pk_bf16_f32 v{ob+p}, v{N+2*p}, v{N+2*p+1}" for p in range(4)]
    return o
def st_act(k):
    ob = OUTB + 4 * k
    if k == 4: A(f"s_add_u32 s{s_actst}, s{s_actst}, {M32S}")
    A(f"buffer_store_dwordx4 v[{ob}:{ob+3}], v{v_l16}, {srd(sA)}, s{s_actst} offen offset:{1024*(k & 3)} sc1"); vm(f"st{k >> 2}")
def arm_load(): A(f"buffer_load_dword v{v_arm}, v{v_armoff}, {srd(sD)}, 0 offen sc1")
NH = args.nh if D else 0
mA = []
U, N, Dd = MT, MT + 8, MT + 16
stg = [lambda i: (f"v_mul_f32 v{U+i%8}, s{s_cl2e}, v{ACC+i}", 4), lambda i: (f"v_exp_f32 v{U+i%8}, v{U+i%8}", 8),
       lambda i: (f"v_add_f32 v{N+i%8}, 0.5, v{U+i%8}", 4), lambda i: (f"v_fma_f32 v{Dd+i%8}, v{U+i%8}, v{U+i%8}, v{N+i%8}", 5),
       lambda i: (f"v_rcp_f32 v{Dd+i%8}, v{Dd+i%8}", 8), lambda i: (f"v_mul_f32 v{N+i%8}, v{N+i%8}, v{Dd+i%8} clamp", 5),
       lambda i: (f"v_mul_f32 v{N+i%8}, v{N+i%8}, v{ACC+i}", 4),
       lambda i: (f"v_cvt_pk_bf16_f32 v{OUTB+i//2}, v{N+(i-1)%8}, v{N+i%8}", 5) if i & 1 else None]
for tt in range(8 * NH + 7 if NH else 0):
    for k in (7, 1, 6, 5, 3, 4, 2, 0):
        i = tt - k
        if 0 <= i < 8 * NH and stg[k](i):
            if mA and mA[-1][0].startswith(("v_exp", "v_rcp")) and mA[-1][0].split()[1].rstrip(",") in [z.strip(",") for z in stg[k](i)[0].split()[2:]]:
                mA.append(("s_nop 0", 4))
            mA.append(stg[k](i))
            if k == 7 and i % 8 == 7:
                fr = i // 8
                if args.burstA == 0: mA.append(("ST", fr))
                elif args.burstA == 1 and fr == NH - 1: mA += [("ST", q) for q in range(NH)]
                elif args.burstA == 2 and fr & 1: mA += [("ST", fr - 1), ("ST", fr)]
totA = sum(c_ for i_, c_ in mA if i_ != "ST"); doneA = [0]
g0 = 2 * nA + args.h0 - 1; ngaps = 128 - g0 - args.h1
def mishA_gap(g):
    if g < g0 or not mA: return
    if g == g0: pad_after((0, 0), 12)
    target = totA * (g - g0 + 1) / ngaps
    while mA and (doneA[0] < target - 2 or mA[0][0] == "ST"):
        i_, c_ = mA.pop(0)
        if i_ == "ST": st_act(c_)
        else: A(i_); doneA[0] += c_

def w2_reads(p):
    out = []; r_ = rows[p]
    for i in range(4):
        j = 4 * p + i; ks, a_ = j >> 1, j & 1
        for ni in range(2):
            r = (ks * 2 + ni) * 4 + 2 * a_
            out.append(f"ds_read_b64_tr_b16 a[{r}:{r+1}], v{vR2[r_ >> 2][ni]} offset:{(r_ & 3)*16384+1024*i}")
    return out
maxp = [-1]
nextp = [0]; rq = []
def queue_pos(force=False, age=12):
    p = nextp[0]
    if p >= 14 or p > maxp[0] or vmq.count(f"g{p}") < 4: return False
    last = lastidx(f"g{p}")
    if last >= vm_known[0]:
        if not force and len(vmq) - 1 - last < age: return False
        wait_vm(f"g{p}")
    rq.extend((r, f"q{p}") for r in w2_reads(p)); nextp[0] += 1
    return True
def fill(k, age=12):
    for _ in range(k):
        if not rq and not queue_pos(age=age): return
        r, tg = rq.pop(0); lg(r, tg); w2log.append(("R", r, tg))
def need_pos(p):
    while nextp[0] <= p: assert queue_pos(force=True)
    while any(tg == f"q{p}" for _, tg in rq):
        r, tg = rq.pop(0); lg(r, tg); w2log.append(("R", r, tg))
    wait_lg(f"q{p}")
def flag(stage):
    if stage == 1: A(f"s_add_u32 s{s_flagP}, s{s_flagP}, {M32S}")
    A("s_mov_b32 exec_hi, 0" if args.flagw == 32 else f"s_mov_b64 exec, {(1 << args.flagw) - 1}")
    A(f"buffer_store_dword v{v_one}, v{v_l4}, {srd(sA)}, s{s_flagP} offen sc1")
    A("s_mov_b32 exec_hi, -1" if args.flagw == 32 else "s_mov_b64 exec, -1")
def poll_issue():
    for i in range(7): A(f"s_buffer_load_dword s{s_pl[i]}, {srd(sL)}, s{s_flagC} offset:{128*i} glc")
cold = []
def spin_check(lbl, reissue, pre=None):
    A(f"{lbl}:")
    if lbl != "L_arm":
        wait_lg0()
        for i in range(1, 7): A(f"s_and_b32 s{s_pl[0]}, s{s_pl[0]}, s{s_pl[i]}")
    else:
        A(f"v_cmp_eq_u32 vcc, 1, v{v_arm}"); A("s_nop 0"); A("s_cmp_eq_u64 vcc, -1")
    A(f"s_cbranch_scc0 {lbl}_slow")
    A(f"{lbl}_ok:")
    cold.append((lbl, reissue, pre))
def pubA():
    wait_vm(max(("arm", "st0"), key=lastidx))
    spin_check("L_arm", arm_load)
    flag(0); vm("flagA")
    stamp("flagA")
pre_next()
wait_vm("c0")
stamp("c0_land")
A("s_barrier"); passed.add("B0")
mfma_bias(0, 0)
for n in range(2): rd_x(n); rd_w(n, 0); rd_w(n, 1)
mfma_bias(0, 1); emit_s2(args.s2gap); mfma_bias(1, 0); emit_s2(args.s2gap); mfma_bias(1, 1)
if not deferred(0): dma_next(); dma_next()
nbar = [0]
for n in range(64):
    nx = n + 2
    ch, mi, s = seq[n]
    bar = None
    if nx < nA and seq[nx][1:] == (0, 0): bar = (f"B{seq[nx][0]}", f"c{seq[nx][0]}")
    if nA <= nx < 64 and (nx == nA or (BIG and (nx - nA) % (8 * PS) == 0)): bar = (f"P{(nx-nA)//8}", f"x{(nx-nA)//8}")
    if nx == 64 and args.useF: bar = ("F", None)
    wait_lg(f"x{n}" if mi else f"w{n}_0")
    mfma1(n, 0)
    if bar:
        if bar[1]:
            while any(e_[2] == bar[1] for e_ in stream): dma_next()
            if args.itst: A("s_memtime s[4:5]")
            wait_vm(bar[1])
        if args.itst: A("s_memtime s[6:7]")
        wait_lg0()
        if args.itst: A(f"v_writelane_b32 v60, s4, {nbar[0]}\nv_writelane_b32 v61, s6, {nbar[0]}"); nbar[0] += 1
        A("s_barrier"); passed.add(bar[0])
    def loads(g):
        if not can_issue(): return
        kind = stream[0][2][0]
        if BIG and kind == "x": ok = args.xbper == 2 or g & 1 == 0
        elif n >= nA or (BIG and kind == "g"): ok = g % args.w2gap < args.w2num
        elif deferred(ch): ok = True
        else: ok = g & 1
        if ok: dma_next2()
    if nx < 64: rd_x(nx); rd_w(nx, 0)
    mishA_gap(2 * n)
    emit_s2(args.s2gap)
    if n in esteps:
        assert not s2q
        p, i = early.pop(0)
        A(f"s_mov_b32 s{s_m0s}, m0"); A(m0row(rows[p]))
        A(gaddr(s_so2, p) if i == 0 else "s_nop 0")
        A(dma(vD2[i], sW2, s_so2, i)); vm(f"g{p}")
        A(f"s_mov_b32 m0, s{s_m0s}")
    else: loads(2 * n)
    if can_issue(): pre_next()
    if not mi: wait_lg(f"w{n}_1")
    mfma1(n, 1)
    if nx < 64: rd_w(nx, 1)
    if n == nA - 1: stamp("pAdone")
    if n == args.armn: arm_load(); vm("arm")
    if n == args.pubn:
        assert vmq.count("st0") == 4
        pubA(); args.flagApos = -9
    if D == 8 and n >= nA and args.rdB:
        maxp[0] = 2 * ((n + 1 - nA) // 4) - 1
        fill(args.rdB)
    mishA_gap(2 * n + 1)
    emit_s2(args.s2gap)
    loads(2 * n + 1)
assert not early and not mA
stamp("p1done")
if args.jit == 3: jitter("L_j2", "s_memtime s[92:93]\ns_waitcnt lgkmcnt(0)\ns_mul_i32 s90, s92, 0x9e3779b1\ns_lshr_b32 s90, s90, 28")
maxp[0] = 13

if args.armn >= 64: arm_load(); vm("arm")
nfr = 8 - NH
nm = args.nmish
slotset = set(int((k + 0.5) * 40 * nfr / nm) for k in range(nm)) if nm else set()
for k_ in range(NH, 8):
    if k_ == 4 + args.flagApos: pubA()
    if k_ == 4 + args.pollfr:
        assert args.pollfr >= args.flagApos
        poll_issue()
    pad_after((k_ >> 2, (k_ >> 1) & 1), 12)
    for n, ins in enumerate(mish_pk(k_)):
        A(ins)
        if (k_ - NH) * 40 + n in slotset and len(stream) > args.npoll: dma_next2()
        if k_ >= 4 and n % 4 == 1 and (rq or nextp[0] < args.rdmish): fill(1, 16)
    if k_ < 4 or args.burstB == 0: st_act(k_)
    elif args.burstB == 2 and k_ & 1: st_act(k_ - 1); st_act(k_)
    elif args.burstB == 1 and k_ == 7:
        if args.flagApos == 4: pubA(); args.flagApos = -1
        for q in range(4, 8): st_act(q)
    if k_ == 3 and NH < 4: stamp("mish0")
stamp("mish1")
if args.jit == 3: jitter("L_j3", "s_memtime s[92:93]\ns_waitcnt lgkmcnt(0)\ns_mul_i32 s90, s92, 0x9e3779b1\ns_lshr_b32 s90, s90, 28")
if args.flagApos >= 4: pubA()
A("L_enter2:")
lean = list(w2log)
lean_poll = args.pollfr < 4
polled = len(stream) <= args.npoll or lean_poll
if polled and not lean_poll: poll_issue()
k = 0; flagB_done = False
def maybe_flagB():
    global flagB_done
    if not flagB_done and k >= args.nb:
        wait_vm("st1"); flag(1); vm("flagB"); flagB_done = True
        stamp("flagB")
while stream:
    dma_next2(); k += 1; maybe_flagB(); fill(4)
    if len(stream) == args.npoll and not polled: poll_issue(); polled = True
if not flagB_done: A(f"s_mov_b32 s{s_t1}, 0")
stamp("w2iss")
spin_check("L_pollA", poll_issue, pre=None if flagB_done else "B")
stamp("pollA")
DEP = args.depth; NF = 56
assert DEP < NRING
def af(i): return AF + 4 * (i % NRING)
def act_load(i):
    global k
    mi, ks = divmod(i, 28)
    if i == 28:
        spin_check("L_pollB", poll_issue)
    if ks % 4 == 0: A(f"s_add_u32 s{s_so}, s{s_actld}, {mi*M32S + ks*1024}")
    A(f"buffer_load_dwordx4 v[{af(i)}:{af(i)+3}], v{v_l16}, {srd(sL)}, s{s_so} offen offset:{(ks%4)*1024} sc1"); vm(f"a{i}")
    k += 1; maybe_flagB()
for i in range(DEP): act_load(i); fill(6)
PB = 28 - DEP - args.pbk
redw = [(ni, g) for ni in range(2) for g in range(4)]
R = 192
def red_reads(mi, base):
    return [f"ds_read_b128 v[{base+8*src+4*e_}:{base+8*src+4*e_+3}], v{[v_redr, vT[4]][e_]} offset:{src*4096 + 32768*mi}" for src in range(4) for e_ in range(2)]
def out_store(b_): A(f"buffer_store_dwordx4 v[{b_+8}:{b_+11}], v{v_outo}, {srd(sB)}, s{s_outb} offen {args.outsc}")
side = []; TJ = args.tailj
def p2mfma(i, ni):
    mi, ks = divmod(i, 28)
    Dr = acc(mi, ni); wr = (ks * 2 + ni) * 4
    C = "0" if ks == 0 else f"v[{Dr}:{Dr+15}]"
    A(f"v_mfma_f32_32x32x16_bf16 v[{Dr}:{Dr+15}], a[{wr}:{wr+3}], v[{af(i)}:{af(i)+3}], {C}"); lastw[(mi, ni)] = len(L) - 1
def redwr(mi, ni, g):
    pad_after((mi, ni), 12)
    r = acc(mi, ni) + 4 * g
    A(f"ds_write_b128 v{v_redw if g == 0 else vT[g]}, v[{r}:{r+3}] offset:{32768*mi+128*ni}")
for i in range(NF):
    mi, ks = divmod(i, 28)
    wait_vm(f"a{i}")
    if i == 0: stamp("a0")
    if mi == 0 and ks % 2 == 0: need_pos(ks >> 1)
    for ni in range(2 if i < NF - TJ else 1):
        p2mfma(i, ni); fill(2)
        for _ in range(3):
            if side: A(side.pop(0))
    if i == PB:
        A(f"s_add_u32 s{s_flagC}, s{s_flagC}, {M32S}"); poll_issue()
    if i + DEP < NF: act_load(i + DEP)
    if i == 26:
        for gg in range(1, 4): A(f"v_xor_b32 v{vT[gg]}, {32*gg}, v{v_redw}")
        A(f"s_mov_b64 s[{sB}:{sB+1}], s[64:65]\ns_mov_b32 s{sB+2}, 2097152")
        A(f"v_xor_b32 v{vT[4]}, 16, v{v_redr}")
    if mi == 1 and 3 <= ks < 11: redwr(0, *redw[ks - 3])
    if i == args.redi:
        A("s_waitcnt lgkmcnt(0)"); A("s_barrier"); side = red_reads(0, R)
    if i == args.redi + 3:
        A("s_waitcnt lgkmcnt(0)")
        side = [f"v_add_f32 v{R+j}, v{R+j}, v{R+8+j}" for j in range(8)] + [f"v_add_f32 v{R+16+j}, v{R+16+j}, v{R+24+j}" for j in range(8)]
        side += [f"v_add_f32 v{R+j}, v{R+j}, v{R+16+j}" for j in range(8)] + [f"v_cvt_pk_bf16_f32 v{R+8+p}, v{R+2*p}, v{R+2*p+1}" for p in range(4)]
    if i == args.redi + 9:
        assert not side and i + DEP >= NF - 1
        out_store(R); vm("o")
        A(f"s_add_u32 s{s_outb}, s{s_outb}, 32768")
assert flagB_done and not stream
wl = list(range(4))
for j, i in enumerate(range(NF - TJ, NF)):
    p2mfma(i, 1)
    if j == 0: A("s_nop 4")
    if j >= 1 and wl and j < TJ - 1: redwr(1, 0, wl.pop(0))
stamp("p2done")
while wl: redwr(1, 0, wl.pop(0))
for g in range(4): redwr(1, 1, g)
A("s_waitcnt lgkmcnt(0)")
A("s_barrier")
b_ = 160
for r in red_reads(1, b_): A(r)
A("s_waitcnt lgkmcnt(4)")
for p in range(4): A(f"v_pk_add_f32 {P(b_+2*p)}, {P(b_+2*p)}, {P(b_+8+2*p)}")
A("s_waitcnt lgkmcnt(0)")
for p in range(4): A(f"v_pk_add_f32 {P(b_+16+2*p)}, {P(b_+16+2*p)}, {P(b_+24+2*p)}")
for p in range(4): A(f"v_pk_add_f32 {P(b_+2*p)}, {P(b_+2*p)}, {P(b_+16+2*p)}")
for p in range(4): A(f"v_cvt_pk_bf16_f32 v{b_+8+p}, v{b_+2*p}, v{b_+2*p+1}")
out_store(b_)
if args.stamps:
    A("s_waitcnt vmcnt(0)")
    stamp("end")
    A("s_memrealtime s[12:13]")
    A("s_waitcnt lgkmcnt(0)")
    n = len(stamp_names)
    A("v_mov_b32 v64, s100\nv_mov_b32 v65, s12")
    for i in range(n): A(f"v_mov_b32 v{66+i}, s{stamp_regs[i]}")
    A(f"v_mov_b32 v{66+n}, s{s_spin}")
    A(f"s_mov_b32 s{sL+2}, 0x10000000")
    A(f"s_lshl_b32 s{s_t0}, s2, 2\ns_add_u32 s{s_t0}, s{s_t0}, s{sW}\ns_lshl_b32 s{s_t0}, s{s_t0}, 7\ns_add_u32 s{s_t0}, s{s_t0}, {STAMP_OFF}")
    if args.itst:
        A("s_mov_b64 exec, 0xfff")
        A(f"s_add_u32 s{s_t1}, s{s_t0}, {1<<20}")
        for q, r in enumerate((60, 61)): A(f"buffer_store_dword v{r}, v{v_l4}, {srd(sL)}, s{s_t1} offen offset:{48*q}")
    A("s_mov_b64 exec, 1")
    for q in range(5): A(f"buffer_store_dwordx4 v[{64+4*q}:{67+4*q}], off, {srd(sL)}, s{s_t0} offset:{16*q}")
if args.pad:
    A("s_waitcnt vmcnt(0)")
    stamp("end")
    A("s_waitcnt lgkmcnt(0)")
    A("s_sub_u32 s84, s82, s80")
    A(f"s_cmp_eq_u32 s{s_fl}, 7\ns_cselect_b32 s84, 0, s84")
    if args.padwg >= 0: A(f"s_cmp_eq_u32 s2, {args.padwg}\ns_cselect_b32 s84, s84, 0")
    A("s_min_u32 s84, s84, 10000\ns_add_u32 s84, s84, 4000")
    if args.padonly >= 0: A(f"s_cmp_lg_u32 s2, {args.padonly}\ns_cbranch_scc1 L_end")
    A("L_pad:\ns_memrealtime s[86:87]\ns_waitcnt lgkmcnt(0)\ns_sub_u32 s85, s86, s80\ns_cmp_lt_u32 s85, s84\ns_cbranch_scc1 L_pad")
A("L_end:")
A("s_endpgm")
for lbl, reissue, pre in cold:
    A(f"{lbl}_slow:")
    if pre:
        A(f"s_cmp_lg_u32 s{s_t1}, 0\ns_cbranch_scc1 {lbl}_s2\ns_mov_b32 s{s_t1}, 1\ns_waitcnt vmcnt(0)")
        A(f"s_add_u32 s{s_t0}, s{s_flagP}, {M32S}")
        A("s_mov_b32 exec_hi, 0")
        A(f"buffer_store_dword v{v_one}, v{v_l4}, {srd(sA)}, s{s_t0} offen sc1")
        A("s_mov_b32 exec_hi, -1")
        A(f"{lbl}_s2:")
    A(f"s_add_u32 s{s_spin}, s{s_spin}, 1")
    A(f"s_cmp_ge_u32 s{s_spin}, 200000")
    A(f"s_cbranch_scc1 {lbl}_ok")
    if args.sleep: A(f"s_sleep {args.sleep}")
    reissue()
    if lbl == "L_arm": A("s_waitcnt vmcnt(0)")
    A(f"s_branch {lbl}")
A("L_spare:")
for x in ids: A(x)
A(f"v_lshlrev_b32 v{vT[18]}, 7, v{v_lane}")
A(f"s_and_b32 s{s_xcd}, s2, 7")
A(f"s_mul_i32 s{s_so2}, s{s_ml}, 56\ns_add_u32 s{s_so2}, s{s_so2}, s{sW}\ns_lshl_b32 s{s_so2}, s{s_so2}, 13")
A(f"s_mul_i32 s{s_t2}, s{s_xcd}, 7\ns_lshr_b32 s{s_t2}, s{s_t2}, 2\ns_lshl_b32 s{s_t2}, s{s_t2}, 15\ns_add_u32 s{s_t2}, s{s_t2}, s{s_so2}")
A(f"s_mov_b32 s{sX_+2}, 2097152")
A(f"s_and_b32 s{s_t0}, s{sW}, 2\ns_add_u32 s{s_t0}, s{s_t0}, s{sW}\ns_lshl3_add_u32 s{s_xbase}, s{s_mt}, s{s_t0}\ns_add_u32 s{s_xbase}, s{s_xbase}, 2\ns_lshl_b32 s{s_xbase}, s{s_xbase}, 14")
A("s_waitcnt lgkmcnt(0)")
for x in W2SRD: A(x)
def spf_op(op):
    if op[0] == "x":
        A(f"s_xor_b32 s{s_t0}, s{s_fg}, {int(op == 'x2')}\ns_lshl_b32 s{s_t0}, s{s_t0}, 13\ns_add_u32 s{s_t0}, s{s_t0}, s{s_xbase}")
        A(f"buffer_load_dword v{vT[24]}, v{vT[18]}, {srd(sX_)}, s{s_t0} offen")
        return
    if op[0] == "p": A(f"s_add_u32 s{s_t0}, s{s_t2}, {32768*int(op[1])}")
    elif op[0] == "g": A(f"s_add_u32 s{s_t0}, s{s_so2}, {32768*int(op[1:])}")
    else: A(f"s_add_u32 s{s_t0}, s{s_so2}, {32768*(12+int(op[1]))}")
    A(f"buffer_load_dword v{vT[24]}, v{vT[18]}, {srd(sW2)}, s{s_t0} offen")
spf = args.spf.split()
if spf: spf_op(spf.pop(0))
for x in common + S2: A(x)
A(f"s_mov_b32 s{s_flagP}, 0")
A(f"s_cmp_lg_u32 s{sW}, 0")
A("s_cbranch_scc1 L_spare2")
A(f"v_and_b32 v{vT[12]}, 15, v{v_lane}")
A(f"v_min_u32 v{vT[12]}, 13, v{vT[12]}")
A(f"v_lshlrev_b32 v{vT[12]}, 7, v{vT[12]}")
A(f"s_mov_b32 s{s_t0}, {M32S}")
A(f"v_mul_lo_u32 v{vT[13]}, v{b}, s{s_t0}")
A(f"v_add_u32 v{vT[12]}, v{vT[12]}, v{vT[13]}")
A(f"s_mul_i32 s{s_t0}, s{s_mt}, {4*M32S}\ns_mul_i32 s{s_t1}, s{s_fg}, 1792\ns_add_u32 s{s_t0}, s{s_t0}, s{s_t1}\ns_add_u32 s{s_t0}, s{s_t0}, {FLAGOFF}")
A(f"v_mov_b32 v{vT[14]}, 0")
A(f"buffer_store_dword v{vT[14]}, v{vT[12]}, {srd(sA)}, s{s_t0} offen sc1")
A("L_spare2:")
armpos = min(args.armpos, len(spf))
for k_, op in enumerate(spf + [None]):
    if k_ == armpos:
        A(f"s_cmp_lg_u32 s{sW}, 0\ns_cbranch_scc1 L_spare3\ns_waitcnt vmcnt({armpos})\ns_mov_b64 exec, 1")
        A(f"buffer_store_dword v{v_one}, v{v_armoff}, {srd(sD)}, 0 offen sc1")
        A("s_mov_b64 exec, -1\nL_spare3:")
    if op: spf_op(op)
A(f"s_mov_b32 s{sA+2}, 0")
issued = []; pend = []; known = -1
def flush_reads(upto=None):
    global known
    while pend and (upto is None or int(pend[0][2][1:]) <= upto):
        _, r, tg = pend.pop(0); p = int(tg[1:])
        if p > known:
            last = max(i for i, t_ in enumerate(issued) if t_ == f"g{p}")
            A(f"s_waitcnt vmcnt({len(issued) - 1 - last})"); known = p
        A(r)
nrec = 0
for e_ in lean:
    if e_[0] == "S": A(e_[1])
    elif e_[0] == "D": A(e_[1]); issued.append(e_[2])
    elif e_[0] == "R": pend.append(e_)
    else: flush_reads(nrec); nrec += 1; A("s_waitcnt lgkmcnt(0)")
arm_load(); issued.append("arm")
flush_reads()
A("s_waitcnt lgkmcnt(0)")
A("L_arm2:")
A("s_waitcnt vmcnt(0)")
A(f"v_cmp_eq_u32 vcc, 1, v{v_arm}")
A(f"s_add_u32 s{s_spin}, s{s_spin}, 1")
A("s_cmp_eq_u64 vcc, -1")
tgt = "L_arm2ok" if lean_poll else "L_enter2"
A(f"s_cbranch_scc1 {tgt}")
A(f"s_cmp_ge_u32 s{s_spin}, 200000")
A(f"s_cbranch_scc1 {tgt}")
arm_load()
A("s_branch L_arm2")
if lean_poll:
    A("L_arm2ok:")
    poll_issue()
    A("s_branch L_enter2")
A("L_codeend:")
A(".fill (16384-(L_codeend-L_pcref))/4, 4, 0xbf810000")
tail = f""".section .rodata,"a"
.p2align 6
.amdhsa_kernel {KN}
  .amdhsa_next_free_vgpr 512
  .amdhsa_next_free_sgpr 102
  .amdhsa_accum_offset 256
  .amdhsa_group_segment_fixed_size 0
  .amdhsa_kernarg_size 56
  .amdhsa_user_sgpr_count 2
  .amdhsa_user_sgpr_kernarg_segment_ptr 1
  .amdhsa_system_sgpr_workgroup_id_x 1
.end_amdhsa_kernel"""
text = hdr + "\n" + "\n".join(L) + "\n" + tail
if args.align:
    import alignpass
    text = alignpass.align(text, args.align)
print(text)
if args.stamps: print("; STAMPS: " + " ".join(stamp_names))
```
